```python
import torch

def _softmax(x, axis=-1):
    return torch.softmax(x, dim=axis)
def _gelu(x):
    return torch.nn.functional.gelu(x, approximate="tanh")
def _silu(x):
    return torch.nn.functional.silu(x)
def _sigmoid(x):
    return torch.sigmoid(x)
def _layernorm(x, axis=-1, eps=1e-5):
    m = x.mean(dim=axis, keepdim=True)
    v = x.var(dim=axis, keepdim=True, unbiased=False)
    return (x - m) / torch.sqrt(v + eps)
def _scatter_add(tgt, idx, src, axis=0):
    return tgt.clone().index_add_(axis, idx, src)
def _segment_sum(src, seg, n):
    out = torch.zeros((n,) + src.shape[1:], dtype=src.dtype)
    return out.index_add_(0, seg, src)
def _pad(x, pw):
    flat = tuple(v for pair in reversed(pw) for v in pair)
    return torch.nn.functional.pad(x, flat)

kernel_name = 'parallel_sum__ssm_conv_s4__dense_activation_mish__prompt'

def setup_inputs():

    _w = (lambda a: (lambda t: t.to(torch.bfloat16) if t.is_floating_point() else t)(torch.as_tensor(a)))
    def _A_setup():
        B, L, D, N = 1, 2048, 512, 128
        A_re = -(lambda _x: torch.exp(torch.as_tensor(_x)))((lambda *s: torch.randn(*s, dtype=torch.bfloat16) * 6.4)(D, N))
        A_im = torch.pi * (lambda *s: torch.randn(*s, dtype=torch.bfloat16) * 0.05)(D, N)
        B_re = (lambda *s: torch.randn(*s, dtype=torch.bfloat16) * 0.1)(D, N)
        B_im = (lambda *s: torch.randn(*s, dtype=torch.bfloat16) * 0.1)(D, N)
        C_re = (lambda *s: torch.randn(*s, dtype=torch.bfloat16) * 0.1)(D, N)
        C_im = (lambda *s: torch.randn(*s, dtype=torch.bfloat16) * 0.1)(D, N)
        log_dt = (lambda *s: torch.randn(*s, dtype=torch.bfloat16) * 0.05)(D) * 0.5 - 4.0
        Dskip = (lambda *s: torch.randn(*s, dtype=torch.bfloat16) * 0.05)(D)
        return {
            "u": _w((lambda *s: torch.randn(*s, dtype=torch.bfloat16) * 0.05)(B, L, D)),
            "A_re": _w(A_re),
            "A_im": _w(A_im),
            "B_re": _w(B_re),
            "B_im": _w(B_im),
            "C_re": _w(C_re),
            "C_im": _w(C_im),
            "log_dt": _w(log_dt),
            "Dskip": _w(Dskip),
        }
    _A_in = _A_setup()

    def _B_setup():
        B, S, D, F = 1, 2048, 512, 1792
        return {
            "x": _w((lambda *s: torch.randn(*s, dtype=torch.bfloat16) * 0.05)(B, S, D)),
            "w1": _w((lambda *s: torch.randn(*s, dtype=torch.bfloat16) * 0.8)(D, F) * (D ** -0.5)),
            "b1": _w((lambda *s: torch.randn(*s, dtype=torch.bfloat16) * 0.2)(F)),
            "w2": _w((lambda *s: torch.randn(*s, dtype=torch.bfloat16) * 0.2)(F, D) * (F ** -0.5)),
        }
    _B_in = _B_setup()

    return {
        "A_u": _A_in["u"],
        "A_A_re": _A_in["A_re"],
        "A_A_im": _A_in["A_im"],
        "A_B_re": _A_in["B_re"],
        "A_B_im": _A_in["B_im"],
        "A_C_re": _A_in["C_re"],
        "A_C_im": _A_in["C_im"],
        "A_log_dt": _A_in["log_dt"],
        "A_Dskip": _A_in["Dskip"],
        "B_x": _B_in["x"],
        "B_w1": _B_in["w1"],
        "B_b1": _B_in["b1"],
        "B_w2": _B_in["w2"],
    }

def reference(A_u, A_A_re, A_A_im, A_B_re, A_B_im, A_C_re, A_C_im, A_log_dt, A_Dskip, B_x, B_w1, B_b1, B_w2):
    def _A_ref(u, A_re, A_im, B_re, B_im, C_re, C_im, log_dt, Dskip):
        Bsz, L, D = u.shape
        dt = torch.exp(log_dt)[:, None]
        A = A_re + 1j * A_im
        Bc = B_re + 1j * B_im
        Cc = C_re + 1j * C_im
        logdA = dt * A
        dB = dt * Bc
        l = (lambda x, dt: x.to(dt))(torch.arange(L), A_re.dtype)
        P = torch.exp(logdA[:, :, None] * l[None, None, :])
        K = torch.einsum("dn,dnl,dn->dl", Cc, P, dB).real
        L2 = 2 * L
        Kp = _pad(K, ((0, 0), (0, L)))
        up = (lambda x, *d: x.permute(*d))(u, 0, 2, 1)
        up = _pad(up, ((0, 0), (0, 0), (0, L)))
        Kf = (lambda x, axes=(-2,-1): torch.fft.rfft2(x.float(), dim=axes))(Kp[:, None, :], axes=(-2, -1))
        Uf = (lambda x, axes=(-2,-1): torch.fft.rfft2(x.float(), dim=axes))(up[:, :, None, :], axes=(-2, -1))
        Yf = Uf * Kf[None, :, :, :]
        y = (lambda x, s, axes=(-2,-1): torch.fft.irfft2(x, s=s, dim=axes).to(torch.bfloat16))(Yf, (1, L2), axes=(-2, -1))[:, :, 0, :L]
        y = (lambda x, *d: x.permute(*d))(y, 0, 2, 1) + u * Dskip[None, None, :]
        return y

    def _B_ref(x, w1, b1, w2):
        h = torch.einsum("bsd,df->bsf", x, w1) + b1
        sp = torch.log1p(torch.exp(-torch.abs(h))) + torch.where(h > 0, h, torch.zeros_like(h))
        act = h * torch.tanh(sp)
        return torch.einsum("bsf,fd->bsd", act, w2)

    x = A_u
    xn = _layernorm(x, axis=-1)
    return x + _A_ref(xn, A_A_re, A_A_im, A_B_re, A_B_im, A_C_re, A_C_im, A_log_dt, A_Dskip) + _B_ref(xn, B_w1, B_b1, B_w2)
```

```python
import sys, struct

def f2u(x): return struct.unpack('<I', struct.pack('<f', x))[0]
def fhex(x): return "0x%08x" % f2u(x)

LOG2E = 1.4426950408889634
INV2PI = 0.15915494309189535

WS_XN  = 0x000000
WS_XT  = 0x200000
WS_KR  = 0x400000
KR_PITCH = 4160
WS_W1T = 0x640000
WS_W2T = 0x800000
WS_AT  = 0xA00000
WS_ACT = 0xC00000

class G:
    def __init__(self): self.L = []
    def __call__(self, s):
        for line in s.strip('\n').split('\n'):
            self.L.append("    " + line.strip())
    def label(self, s): self.L.append(s + ":")
    def raw(self, s): self.L.append(s)
    def text(self): return "\n".join(self.L) + "\n"
    def srd(self, d, pb, nbytes, off=0):
        if off:
            self(f"s_add_u32 s{d}, s{pb}, {off}")
            self(f"s_addc_u32 s{d+1}, s{pb+1}, 0")
        else:
            self(f"s_mov_b32 s{d}, s{pb}")
            self(f"s_mov_b32 s{d+1}, s{pb+1}")
        self(f"s_mov_b32 s{d+2}, {nbytes}")
        self(f"s_mov_b32 s{d+3}, 0x00020000")

def kernel_begin(g, name):
    g.raw(f".globl {name}")
    g.raw(".p2align 8")
    g.raw(f".type {name},@function")
    g.label(name)

def kernel_desc(name, vgpr, sgpr=96):
    acc = (vgpr + 3)//4*4
    return f""".amdhsa_kernel {name}
  .amdhsa_next_free_vgpr {vgpr}
  .amdhsa_next_free_sgpr {sgpr}
  .amdhsa_accum_offset {acc}
  .amdhsa_group_segment_fixed_size 0
  .amdhsa_kernarg_size 128
  .amdhsa_user_sgpr_count 2
  .amdhsa_user_sgpr_kernarg_segment_ptr 1
  .amdhsa_system_sgpr_workgroup_id_x 1
.end_amdhsa_kernel
"""

K0_NKG = 512
K0_NLN = 64
K0_NT1 = 224
K0_NT2 = 224
K0_TOTAL = K0_NKG + K0_NLN + K0_NT1 + K0_NT2
TP = 544
K0_LDS = 96*TP + 4096 + 64

def gen_k0(g):
    kernel_begin(g, "prep_kernel")
    g(f"""
    s_cmp_ge_u32 s2, {K0_TOTAL}
    s_cbranch_scc1 K0_END
    s_load_dwordx2 s[22:23], s[0:1], 120
    v_and_b32 v1, 63, v0
    v_lshrrev_b32 v2, 6, v0
    s_nop 0
    v_readfirstlane_b32 s3, v2
    s_cmp_ge_u32 s2, {K0_NKG}
    s_cbranch_scc1 K0_NOTKG
    """)
    gen_kgen(g)
    g.label("K0_NOTKG")
    g(f"""
    s_sub_u32 s2, s2, {K0_NKG}
    s_cmp_ge_u32 s2, {K0_NLN}
    s_cbranch_scc1 K0_NOTLN
    """)
    gen_ln(g)
    g.label("K0_NOTLN")
    g(f"""
    s_sub_u32 s2, s2, {K0_NLN}
    """)
    gen_tr(g)
    g.label("K0_END")
    g("s_endpgm")

def gen_kgen(g):
    g(f"""
    s_load_dwordx8 s[8:15], s[0:1], 8
    s_load_dwordx4 s[16:19], s[0:1], 40
    s_load_dwordx2 s[20:21], s[0:1], 56
    s_lshl_b32 s4, s2, 8
    v_lshlrev_b32 v3, 1, v1
    v_add_u32 v3, s4, v3
    s_lshl_b32 s5, s2, 1
    v_mov_b32 v4, s5
    s_waitcnt lgkmcnt(0)
    global_load_ushort v5, v4, s[20:21]
    """)
    for c in range(2):
        for i, sp in enumerate([8, 10, 12, 14, 16, 18]):
            g(f"global_load_ushort v{10+6*c+i}, v3, s[{sp}:{sp+1}] offset:{128*c}")
    g(f"""
    s_mov_b32 s24, 0
    s_mov_b32 s25, {fhex(16.0)}
    s_mov_b32 s26, 0
    s_mov_b32 s27, {fhex(1.0)}
    s_cmp_eq_u32 s3, 1
    s_cselect_b32 s24, {fhex(256.0)}, s24
    s_cselect_b32 s26, {fhex(8.0)}, s26
    s_cmp_eq_u32 s3, 2
    s_cselect_b32 s24, {fhex(512.0)}, s24
    s_cmp_eq_u32 s3, 3
    s_cselect_b32 s24, {fhex(1536.0)}, s24
    s_cselect_b32 s26, {fhex(32.0)}, s26
    s_cmp_ge_u32 s3, 2
    s_cselect_b32 s25, {fhex(64.0)}, s25
    s_cselect_b32 s27, {fhex(4.0)}, s27
    s_mul_i32 s28, s3, {16*TP}
    s_mul_i32 s29, s3, {8*TP}
    s_add_u32 s29, s29, {64*TP}
    v_lshlrev_b32 v6, 2, v1
    v_add_u32 v7, s29, v6
    v_add_u32 v6, s28, v6
    """)
    g(f"""
    v_and_b32 v8, 15, v1
    v_lshrrev_b32 v9, 4, v1
    v_mul_u32_u24 v8, {TP}, v8
    v_lshlrev_b32 v9, 4, v9
    v_add_u32 v8, v8, v9
    s_lshr_b32 s30, s3, 1
    s_mul_i32 s30, s30, {16*TP}
    s_add_u32 s30, s30, {64*TP}
    v_add_u32 v9, s30, v8
    v_add_u32 v8, s28, v8
    v_mov_b32 v60, 0
    v_mov_b32 v61, 0
    v_mov_b32 v62, 0
    v_mov_b32 v63, 0
    s_waitcnt vmcnt(0)
    v_lshlrev_b32 v5, 16, v5
    v_mul_f32 v5, {fhex(LOG2E)}, v5
    v_exp_f32 v5, v5
    s_nop 0
    v_cvt_pk_bf16_f32 v5, v5, v5
    v_lshlrev_b32 v5, 16, v5
    """)
    def direct(sl, vare, vaim, vr, vi, t0, t1):
        g(f"""
        v_mul_f32 v{t0}, s{sl}, v{vare}
        v_mul_f32 v{t1}, s{sl}, v{vaim}
        v_exp_f32 v{t0}, v{t0}
        v_fract_f32 v{t1}, v{t1}
        v_cos_f32 v{vr}, v{t1}
        v_sin_f32 v{vi}, v{t1}
        s_nop 0
        v_mul_f32 v{vr}, v{t0}, v{vr}
        v_mul_f32 v{vi}, v{t0}, v{vi}
        """)
    def cmul(dr, di, ar, ai, br, bi):
        g(f"""
        v_mul_f32 v{dr}, v{ar}, v{br}
        v_mul_f32 v{di}, v{ar}, v{bi}
        v_fma_f32 v{dr}, -v{ai}, v{bi}, v{dr}
        v_fma_f32 v{di}, v{ai}, v{br}, v{di}
        """)
    def emit(zr, zi, vaddr, row, t):
        g(f"""
        v_cvt_pk_bf16_f32 v{t}, v{zr}, v{zi}
        v_lshlrev_b32 v{t+1}, 16, v{t}
        v_and_b32 v{t+2}, 0xffff0000, v{t}
        v_sub_f32 v{t+1}, v{zr}, v{t+1}
        v_sub_f32 v{t+2}, v{zi}, v{t+2}
        v_cvt_pk_bf16_f32 v{t+1}, v{t+1}, v{t+2}
        ds_write_b32 v{vaddr}, v{t} offset:{row*TP}
        ds_write_b32 v{vaddr}, v{t+1} offset:{row*TP+256}
        """)
    for c in range(2):
        b = 10 + 6*c
        for i in range(6):
            g(f"v_lshlrev_b32 v{b+i}, 16, v{b+i}")
        g(f"""
        v_mul_f32 v24, v5, v{b}
        v_mul_f32 v25, v5, v{b+1}
        v_mul_f32 v24, {fhex(LOG2E)}, v24
        v_mul_f32 v25, {fhex(INV2PI)}, v25
        v_sub_f32 v26, 0, v25
        v_mul_f32 v27, v5, v{b+2}
        v_mul_f32 v28, v5, v{b+3}
        """)
        cmul(29, 30, b+4, b+5, 27, 28)
        g("v_sub_f32 v30, 0, v30")
        direct(24, 24, 26, 32, 33, 40, 41)
        direct(25, 24, 26, 34, 35, 40, 41)
        cmul(36, 37, 29, 30, 32, 33)
        z = (36, 37); zn = (38, 39)
        for k in range(16):
            emit(z[0], z[1], 6, k, 42 + 3*(k & 1))
            if k < 15:
                cmul(zn[0], zn[1], z[0], z[1], 34, 35)
                z, zn = zn, z
        direct(26, 24, 25, 36, 37, 40, 41)
        direct(27, 24, 25, 34, 35, 40, 41)
        z = (36, 37); zn = (38, 39)
        for k in range(8):
            emit(z[0], z[1], 7, k, 42 + 3*(k & 1))
            if k < 7:
                cmul(zn[0], zn[1], z[0], z[1], 34, 35)
                z, zn = zn, z
        g("s_waitcnt lgkmcnt(0)\ns_barrier")
        for gi in range(4):
            o = 64*gi
            g(f"""
            ds_read_b128 v[64:67], v8 offset:{o}
            ds_read_b128 v[68:71], v8 offset:{o+256}
            ds_read_b128 v[72:75], v9 offset:{o}
            ds_read_b128 v[76:79], v9 offset:{o+256}
            s_waitcnt lgkmcnt(0)
            v_mfma_f32_16x16x32_bf16 v[60:63], v[64:67], v[72:75], v[60:63]
            v_mfma_f32_16x16x32_bf16 v[60:63], v[64:67], v[76:79], v[60:63]
            v_mfma_f32_16x16x32_bf16 v[60:63], v[68:71], v[72:75], v[60:63]
            """)
        g("s_barrier")
    TB = 96*TP
    g(f"""
    v_and_b32 v10, 15, v1
    v_lshrrev_b32 v11, 4, v1
    v_lshlrev_b32 v11, 8, v11
    v_lshlrev_b32 v10, 2, v10
    v_add_u32 v10, v10, v11
    s_lshl_b32 s4, s3, 10
    s_add_u32 s4, s4, {TB}
    v_add_u32 v10, s4, v10
    s_nop 7
    ds_write_b32 v10, v60
    ds_write_b32 v10, v61 offset:64
    ds_write_b32 v10, v62 offset:128
    ds_write_b32 v10, v63 offset:192
    s_waitcnt lgkmcnt(0)
    s_barrier
    """)
    g(f"""
    v_lshlrev_b32 v10, 3, v0
    v_sub_u32 v10, 2047, v10
    """)
    for j in range(8):
        g(f"""
        v_subrev_u32 v11, {j}, v10
        v_cvt_f32_u32 v11, v11
        v_cvt_pk_bf16_f32 v11, v11, v11
        v_lshlrev_b32 v11, 16, v11
        v_cvt_u32_f32 v11, v11
        v_subrev_u32 v12, 512, v11
        v_lshrrev_b32 v12, 2, v12
        v_add_u32 v12, 512, v12
        v_cmp_gt_u32 vcc, 512, v11
        s_nop 1
        v_cndmask_b32 v11, v12, v11, vcc
        v_lshlrev_b32 v11, 2, v11
        ds_read_b32 v{20+j}, v11 offset:{TB}
        """)
    g.srd(24, 22, 512*KR_PITCH, WS_KR)
    g(f"""
    s_mul_i32 s4, s2, {KR_PITCH}
    v_lshlrev_b32 v10, 4, v0
    s_waitcnt lgkmcnt(0)
    v_cvt_pk_bf16_f32 v28, v20, v21
    v_cvt_pk_bf16_f32 v29, v22, v23
    v_cvt_pk_bf16_f32 v30, v24, v25
    v_cvt_pk_bf16_f32 v31, v26, v27
    v_mov_b32 v32, 0
    v_mov_b32 v33, 0
    v_mov_b32 v34, 0
    v_mov_b32 v35, 0
    buffer_store_dwordx4 v[28:31], v10, s[24:27], s4 offen
    v_cmp_gt_u32 vcc, 4, v0
    s_and_saveexec_b64 s[28:29], vcc
    s_cbranch_execz KG_SKIPZ
    s_add_u32 s4, s4, 4096
    buffer_store_dwordx4 v[32:35], v10, s[24:27], s4 offen
    """)
    g.label("KG_SKIPZ")
    g("s_endpgm")

LNP = 1056
def gen_ln(g):
    g(f"""
    s_load_dwordx2 s[4:5], s[0:1], 0
    s_lshl_b32 s6, s2, 5
    s_lshl_b32 s7, s3, 3
    s_add_u32 s6, s6, s7
    s_lshl_b32 s6, s6, 10
    v_lshlrev_b32 v3, 4, v1
    s_waitcnt lgkmcnt(0)
    """)
    g.srd(8, 4, 2048*1024)
    g.srd(12, 22, 2048*1024, WS_XN)
    g.srd(16, 22, 2048*1024, WS_XT)
    g("s_add_u32 s7, s6, 4096")
    for i in range(8):
        so = "s6" if i < 4 else "s7"
        g(f"buffer_load_dwordx4 v[{16+4*i}:{19+4*i}], v3, s[8:11], {so} offen offset:{1024*(i&3)}")
    g("s_waitcnt vmcnt(0)")
    for i in range(8):
        for j in range(4):
            g(f"v_lshlrev_b32 v{64+8*i+2*j}, 16, v{16+4*i+j}")
            g(f"v_and_b32 v{64+8*i+2*j+1}, 0xffff0000, v{16+4*i+j}")
    def reduce8(base):
        for mod in ["quad_perm:[1,0,3,2]", "quad_perm:[2,3,0,1]", "row_half_mirror", "row_mirror",
                    "row_bcast:15 row_mask:0xa", "row_bcast:31 row_mask:0xc"]:
            for i in range(8):
                g(f"v_add_f32_dpp v{base+i}, v{base+i}, v{base+i} {mod}")
    for i in range(8):
        b = 64+8*i
        g(f"v_add_f32 v{4+i}, v{b}, v{b+1}")
    for j in range(2, 8):
        for i in range(8):
            g(f"v_add_f32 v{4+i}, v{4+i}, v{64+8*i+j}")
    reduce8(4)
    for i in range(8):
        g(f"v_readlane_b32 s{32+i}, v{4+i}, 63")
    g("s_nop 1")
    for i in range(8):
        g(f"v_mul_f32 v{4+i}, s{32+i}, {fhex(1.0/512)}" if False else f"v_mov_b32 v{4+i}, s{32+i}")
    for i in range(8):
        g(f"v_mul_f32 v{4+i}, {fhex(1.0/512)}, v{4+i}")
    for i in range(8):
        g(f"v_sub_f32 v{48}, v{64+8*i}, v{4+i}")
        g(f"v_mul_f32 v{16+i}, v48, v48")
        for j in range(1, 8):
            g(f"v_sub_f32 v{48+(j&1)}, v{64+8*i+j}, v{4+i}")
            g(f"v_fma_f32 v{16+i}, v{48+(j&1)}, v{48+(j&1)}, v{16+i}")
    reduce8(16)
    for i in range(8):
        g(f"v_readlane_b32 s{32+i}, v{16+i}, 63")
    g("s_nop 1")
    for i in range(8):
        g(f"v_mov_b32 v{16+i}, s{32+i}")
    for i in range(8):
        g(f"v_mul_f32 v{16+i}, {fhex(1.0/512)}, v{16+i}")
    for i in range(8):
        g(f"v_cvt_pk_bf16_f32 v{24+i}, v{4+i}, v{16+i}")
    for i in range(8):
        g(f"v_lshlrev_b32 v{4+i}, 16, v{24+i}")
        g(f"v_and_b32 v{16+i}, 0xffff0000, v{24+i}")
    for i in range(8):
        g(f"v_add_f32 v{16+i}, {fhex(1e-5)}, v{16+i}")
    for i in range(8):
        g(f"v_cvt_pk_bf16_f32 v{16+i}, v{16+i}, v{16+i}")
    for i in range(8):
        g(f"v_lshlrev_b32 v{16+i}, 16, v{16+i}")
    for i in range(8):
        g(f"v_sqrt_f32 v{16+i}, v{16+i}")
    for i in range(8):
        g(f"v_cvt_pk_bf16_f32 v{16+i}, v{16+i}, v{16+i}")
    for i in range(8):
        g(f"v_lshlrev_b32 v{16+i}, 16, v{16+i}")
    for i in range(8):
        g(f"v_rcp_f32 v{24+i}, v{16+i}")
    g(f"""
    s_mul_i32 s20, s3, {8*LNP}
    v_add_u32 v2, s20, v3
    """)
    for i in range(8):
        b = 64+8*i
        for j in range(8):
            g(f"v_sub_f32 v{b+j}, v{b+j}, v{4+i}")
        for j in range(4):
            g(f"v_cvt_pk_bf16_f32 v{32+j}, v{b+2*j}, v{b+2*j+1}")
        for j in range(4):
            g(f"v_lshlrev_b32 v{b+2*j}, 16, v{32+j}")
            g(f"v_and_b32 v{b+2*j+1}, 0xffff0000, v{32+j}")
        for j in range(8):
            g(f"v_mul_f32 v{40+j}, v{b+j}, v{24+i}")
        for j in range(8):
            g(f"v_fma_f32 v{b+j}, -v{40+j}, v{16+i}, v{b+j}")
        for j in range(8):
            g(f"v_fma_f32 v{40+j}, v{b+j}, v{24+i}, v{40+j}")
        o = 48 + 4*(i & 1)
        for j in range(4):
            g(f"v_cvt_pk_bf16_f32 v{o+j}, v{40+2*j}, v{40+2*j+1}")
        so = "s6" if i < 4 else "s7"
        g(f"buffer_store_dwordx4 v[{o}:{o+3}], v3, s[12:15], {so} offen offset:{1024*(i&3)}")
        g(f"ds_write_b128 v2, v[{o}:{o+3}] offset:{i*LNP}")
    g("s_waitcnt lgkmcnt(0)\ns_barrier")
    g(f"""
    v_and_b32 v4, 15, v1
    v_lshrrev_b32 v5, 4, v1
    v_lshlrev_b32 v6, 3, v5
    v_lshrrev_b32 v7, 2, v4
    v_add_u32 v6, v6, v7
    v_mul_u32_u24 v6, {LNP}, v6
    v_and_b32 v7, 3, v4
    v_lshlrev_b32 v7, 3, v7
    v_add_u32 v6, v6, v7
    s_lshl_b32 s20, s3, 8
    v_add_u32 v6, s20, v6
    v_lshlrev_b32 v8, 12, v4
    v_lshlrev_b32 v9, 4, v5
    v_add_u32 v8, v8, v9
    s_lshl_b32 s21, s3, 19
    s_lshl_b32 s24, s2, 6
    s_add_u32 s21, s21, s24
    """)
    for it in range(8):
        g(f"ds_read_b64_tr_b16 v[{16+4*it}:{17+4*it}], v6 offset:{32*it}")
        g(f"ds_read_b64_tr_b16 v[{18+4*it}:{19+4*it}], v6 offset:{32*it+4*LNP}")
    g("s_waitcnt lgkmcnt(0)")
    for it in range(8):
        g(f"buffer_store_dwordx4 v[{16+4*it}:{19+4*it}], v8, s[16:19], s21 offen")
        if it < 7:
            g("s_add_u32 s21, s21, 65536")
    g("s_endpgm")

TRP = 160
def gen_tr(g):
    g(f"""
    s_load_dwordx2 s[4:5], s[0:1], 80
    s_load_dwordx2 s[6:7], s[0:1], 96
    s_waitcnt lgkmcnt(0)
    s_cmp_ge_u32 s2, {K0_NT1}
    s_cbranch_scc1 TR_W2
    s_mul_hi_u32 s24, s2, {(2**32 + 27)//28}
    s_mul_i32 s25, s24, 28
    s_sub_u32 s25, s2, s25
    s_mov_b32 s26, 3584
    s_mov_b32 s27, 1024
    """)
    g.srd(8, 4, 512*1792*2)
    g.srd(12, 22, 512*1792*2, WS_W1T)
    g("s_branch TR_GO")
    g.label("TR_W2")
    g(f"""
    s_sub_u32 s2, s2, {K0_NT1}
    s_lshr_b32 s24, s2, 3
    s_and_b32 s25, s2, 7
    s_mov_b32 s26, 1024
    s_mov_b32 s27, 3584
    """)
    g.srd(8, 6, 512*1792*2)
    g.srd(12, 22, 512*1792*2, WS_W2T)
    g.label("TR_GO")
    g(f"""
    v_lshrrev_b32 v3, 3, v0
    v_and_b32 v4, 7, v0
    v_mul_lo_u32 v5, v3, s26
    v_lshlrev_b32 v4, 4, v4
    v_add_u32 v5, v5, v4
    s_lshl_b32 s28, s24, 6
    s_mul_i32 s28, s28, s26
    s_lshl_b32 s29, s25, 7
    s_add_u32 s28, s28, s29
    s_lshl_b32 s29, s26, 5
    s_add_u32 s29, s29, s28
    buffer_load_dwordx4 v[8:11], v5, s[8:11], s28 offen
    buffer_load_dwordx4 v[12:15], v5, s[8:11], s29 offen
    v_mul_u32_u24 v6, {TRP}, v3
    v_add_u32 v6, v6, v4
    s_waitcnt vmcnt(0)
    ds_write_b128 v6, v[8:11]
    ds_write_b128 v6, v[12:15] offset:{32*TRP}
    s_waitcnt lgkmcnt(0)
    s_barrier
    """)
    g(f"""
    v_and_b32 v4, 15, v1
    v_lshrrev_b32 v5, 4, v1
    v_lshlrev_b32 v6, 3, v5
    v_lshrrev_b32 v7, 2, v4
    v_add_u32 v6, v6, v7
    v_mul_u32_u24 v6, {TRP}, v6
    v_and_b32 v7, 3, v4
    v_lshlrev_b32 v7, 3, v7
    v_add_u32 v6, v6, v7
    s_lshl_b32 s20, s3, 5
    v_add_u32 v6, s20, v6
    ds_read_b64_tr_b16 v[16:17], v6
    ds_read_b64_tr_b16 v[18:19], v6 offset:{4*TRP}
    ds_read_b64_tr_b16 v[20:21], v6 offset:{32*TRP}
    ds_read_b64_tr_b16 v[22:23], v6 offset:{36*TRP}
    v_mul_lo_u32 v8, v4, s27
    v_lshlrev_b32 v9, 4, v5
    v_add_u32 v8, v8, v9
    s_lshl_b32 s28, s25, 6
    s_lshl_b32 s29, s3, 4
    s_add_u32 s28, s28, s29
    s_mul_i32 s28, s28, s27
    s_lshl_b32 s29, s24, 7
    s_add_u32 s28, s28, s29
    s_waitcnt lgkmcnt(0)
    buffer_store_dwordx4 v[16:19], v8, s[12:15], s28 offen
    buffer_store_dwordx4 v[20:23], v8, s[12:15], s28 offen offset:64
    """)

K1_NG = 224
K1_NC = 256
K1_TOTAL = K1_NG + K1_NC
K1_LDS = 81920
CV_COPY = 8*KR_PITCH
CV_U = 95*80
CV_D = CV_COPY + CV_U

def gen_k1(g):
    kernel_begin(g, "mid_kernel")
    g(f"""
    s_cmp_ge_u32 s2, {K1_TOTAL}
    s_cbranch_scc1 K1_END
    s_load_dwordx2 s[22:23], s[0:1], 120
    v_and_b32 v1, 63, v0
    v_lshrrev_b32 v2, 6, v0
    s_nop 0
    v_readfirstlane_b32 s3, v2
    s_cmp_ge_u32 s2, {K1_NG}
    s_cbranch_scc1 K1_CONV
    """)
    gen_gemm1(g)
    g.label("K1_CONV")
    g(f"s_sub_u32 s2, s2, {K1_NG}")
    gen_conv(g)
    g.label("K1_END")
    g("s_endpgm")

def gen_gemm1(g):
    g(f"""
    s_load_dwordx2 s[4:5], s[0:1], 88
    s_mul_hi_u32 s24, s2, {(2**32 + 13)//14}
    s_mul_i32 s25, s24, 14
    s_sub_u32 s25, s2, s25
    s_waitcnt lgkmcnt(0)
    """)
    g.srd(8, 22, 1792*1024, WS_W1T)
    g.srd(12, 22, 2048*1024, WS_XN)
    g.srd(16, 22, 2048*3584, WS_ACT)
    g(f"""
    v_lshrrev_b32 v3, 3, v1
    v_and_b32 v4, 7, v1
    s_lshl_b32 s26, s3, 3
    v_add_u32 v3, s26, v3
    v_lshrrev_b32 v5, 1, v3
    v_and_b32 v5, 7, v5
    v_xor_b32 v4, v4, v5
    v_lshlrev_b32 v4, 4, v4
    v_lshlrev_b32 v3, 10, v3
    v_add_u32 v3, v3, v4
    s_lshl_b32 s26, s25, 17
    s_lshl_b32 s27, s24, 17
    v_add_u32 v8, s26, v3
    v_add_u32 v12, s27, v3
    v_add_u32 v9, 0x8000, v8
    v_add_u32 v10, 0x10000, v8
    v_add_u32 v11, 0x18000, v8
    v_add_u32 v13, 0x8000, v12
    v_add_u32 v14, 0x10000, v12
    v_add_u32 v15, 0x18000, v12
    s_lshl_b32 s28, s3, 10
    """)
    g(f"""
    v_and_b32 v3, 31, v1
    v_lshrrev_b32 v4, 5, v1
    v_lshrrev_b32 v5, 1, v3
    v_and_b32 v5, 7, v5
    v_lshlrev_b32 v6, 7, v3
    s_and_b32 s29, s3, 1
    s_lshl_b32 s29, s29, 13
    s_lshr_b32 s30, s3, 1
    s_lshl_b32 s30, s30, 13
    s_add_u32 s30, s30, 16384
    """)
    for kk in range(4):
        g(f"""
        v_add_u32 v7, {2*kk}, v4
        v_xor_b32 v7, v7, v5
        v_lshlrev_b32 v7, 4, v7
        v_add_u32 v7, v7, v6
        v_add_u32 v{16+kk}, s29, v7
        v_add_u32 v{20+kk}, s30, v7
        """)
    def issue(stage_k):
        buf = (stage_k & 1) * 32768
        g(f"s_mov_b32 s31, {128*stage_k}")
        for i in range(4):
            g(f"s_add_u32 m0, s28, {buf + 4096*i}")
            g("s_nop 0")
            g(f"buffer_load_dwordx4 v{8+i}, s[8:11], s31 offen lds")
        for i in range(4):
            g(f"s_add_u32 m0, s28, {buf + 16384 + 4096*i}")
            g("s_nop 0")
            g(f"buffer_load_dwordx4 v{12+i}, s[12:15], s31 offen lds")
    issue(0)
    issue(1)
    g(f"""
    s_lshl_b32 s26, s25, 8
    s_and_b32 s27, s3, 1
    s_lshl_b32 s27, s27, 7
    s_add_u32 s26, s26, s27
    v_lshlrev_b32 v24, 3, v4
    v_add_u32 v24, s26, v24
    """)
    for mt in range(2):
        for gi in range(4):
            g(f"global_load_dwordx2 v[{26+8*mt+2*gi}:{27+8*mt+2*gi}], v24, s[4:5] offset:{64*mt+16*gi}")
    for i in range(64):
        g(f"v_mov_b32 v{64+i}, 0")
    for k in range(8):
        buf = (k & 1) * 32768
        if k == 0:
            g("s_waitcnt vmcnt(16)")
        elif k < 7:
            g("s_waitcnt vmcnt(8)")
        else:
            g("s_waitcnt vmcnt(0)")
        g("s_barrier")
        for kk in range(4):
            fa = 128 + 16*(kk & 1)
            for mt in range(2):
                g(f"ds_read_b128 v[{fa+4*mt}:{fa+4*mt+3}], v{16+kk} offset:{buf+4096*mt}")
            for nt in range(2):
                g(f"ds_read_b128 v[{fa+8+4*nt}:{fa+8+4*nt+3}], v{20+kk} offset:{buf+4096*nt}")
            g("s_waitcnt lgkmcnt(0)")
            for mt in range(2):
                for nt in range(2):
                    a = 64 + 16*(2*mt+nt)
                    g(f"v_mfma_f32_32x32x16_bf16 v[{a}:{a+15}], v[{fa+4*mt}:{fa+4*mt+3}], v[{fa+8+4*nt}:{fa+8+4*nt+3}], v[{a}:{a+15}]")
        if k + 2 < 8:
            g("s_barrier")
            issue(k+2)
    for mt in range(2):
        for gi in range(4):
            for hh in range(2):
                src = 26+8*mt+2*gi+hh
                g(f"v_lshlrev_b32 v{128+16*mt+4*gi+2*hh}, 16, v{src}")
                g(f"v_and_b32 v{128+16*mt+4*gi+2*hh+1}, 0xffff0000, v{src}")
    g(f"""
    s_lshl_b32 s26, s24, 7
    s_lshr_b32 s27, s3, 1
    s_lshl_b32 s27, s27, 6
    s_add_u32 s26, s26, s27
    v_add_u32 v5, s26, v3
    v_mul_u32_u24 v5, 3584, v5
    v_add_u32 v5, v5, v24
    v_add_u32 v6, {32*3584}, v5
    s_mov_b32 s26, {fhex(-LOG2E)}
    s_nop 7
    """)
    for mt in range(2):
        for nt in range(2):
            a = 64 + 16*(2*mt+nt)
            for half in range(2):
                R = [a + 8*half + i for i in range(8)]
                Bv = [128 + 16*mt + 8*half + i for i in range(8)]
                T = 160
                for j in range(4):
                    g(f"v_cvt_pk_bf16_f32 v{T+j}, v{R[2*j]}, v{R[2*j+1]}")
                for j in range(4):
                    g(f"v_lshlrev_b32 v{R[2*j]}, 16, v{T+j}")
                    g(f"v_and_b32 v{R[2*j+1]}, 0xffff0000, v{T+j}")
                for j in range(8):
                    g(f"v_add_f32 v{R[j]}, v{R[j]}, v{Bv[j]}")
                for j in range(4):
                    g(f"v_cvt_pk_bf16_f32 v{T+j}, v{R[2*j]}, v{R[2*j+1]}")
                for j in range(4):
                    g(f"v_lshlrev_b32 v{R[2*j]}, 16, v{T+j}")
                    g(f"v_and_b32 v{R[2*j+1]}, 0xffff0000, v{T+j}")
                for j in range(8):
                    g(f"v_mul_f32 v{T+j}, s26, abs(v{R[j]})")
                for j in range(8):
                    g(f"v_exp_f32 v{T+j}, v{T+j}")
                for j in range(8):
                    g(f"v_mul_f32 v{T+8+j}, v{T+j}, v{T+j}")
                for j in range(8):
                    g(f"v_fma_f32 v{T+16+j}, 2.0, v{T+j}, v{T+8+j}")
                for j in range(8):
                    g(f"v_fma_f32 v{T+j}, 2.0, v{T+j}, 1.0")
                for j in range(8):
                    g(f"v_add_f32 v{T+8+j}, v{T+8+j}, v{T+8+j}")
                for j in range(8):
                    g(f"v_cmp_gt_f32 s[{40+2*j}:{41+2*j}], 0, v{R[j]}")
                for j in range(8):
                    g(f"v_cndmask_b32 v{T+j}, v{T+j}, v{T+16+j}, s[{40+2*j}:{41+2*j}]")
                for j in range(8):
                    g(f"v_cndmask_b32 v{T+8+j}, v{T+8+j}, 2.0, s[{40+2*j}:{41+2*j}]")
                for j in range(8):
                    g(f"v_add_f32 v{T+8+j}, v{T+8+j}, v{T+j}")
                for j in range(8):
                    g(f"v_rcp_f32 v{T+8+j}, v{T+8+j}")
                for j in range(8):
                    g(f"v_mul_f32 v{T+j}, v{T+j}, v{R[j]}")
                for j in range(8):
                    g(f"v_mul_f32 v{T+j}, v{T+j}, v{T+8+j}")
                for j in range(4):
                    g(f"v_cvt_pk_bf16_f32 v{R[j]}, v{T+2*j}, v{T+2*j+1}")
                va = 5 if nt == 0 else 6
                for gi2 in range(2):
                    gi = 2*half + gi2
                    g(f"buffer_store_dwordx2 v[{R[2*gi2]}:{R[2*gi2+1]}], v{va}, s[16:19], 0 offen offset:{64*mt+16*gi}")
    g("s_endpgm")

def gen_conv(g):
    g(f"""
    s_load_dwordx2 s[4:5], s[0:1], 64
    s_lshr_b32 s24, s3, 1
    s_lshl_b32 s25, s2, 1
    s_add_u32 s25, s25, s24
    s_and_b32 s26, s3, 1
    s_mul_i32 s27, s24, {CV_D}
    v_and_b32 v3, 127, v0
    s_waitcnt lgkmcnt(0)
    """)
    g.srd(8, 22, 512*KR_PITCH, WS_KR)
    g.srd(12, 22, 2048*1024, WS_XT)
    g.srd(16, 22, 2048*1024, WS_AT)
    g(f"""
    s_lshl_b32 s28, s25, 1
    v_mov_b32 v4, s28
    global_load_ushort v60, v4, s[4:5]
    s_mul_i32 s28, s25, {KR_PITCH}
    s_lshl_b32 s29, s25, 12
    v_lshlrev_b32 v4, 4, v3
    """)
    g(f"""
    buffer_load_dwordx4 v[8:11], v4, s[12:15], s29 offen
    buffer_load_dwordx4 v[12:15], v4, s[12:15], s29 offen offset:2048
    """)
    for s in range(8):
        g(f"buffer_load_dwordx4 v[{64+8*s}:{67+8*s}], v4, s[8:11], s28 offen offset:{2*s}")
        g(f"buffer_load_dwordx4 v[{68+8*s}:{71+8*s}], v4, s[8:11], s28 offen offset:{2*s+2048}")
    g(f"""
    v_lshrrev_b32 v5, 2, v3
    v_and_b32 v6, 3, v3
    v_lshlrev_b32 v7, 1, v5
    v_lshlrev_b32 v6, 4, v6
    v_add_u32 v7, v7, v6
    v_add_u32 v7, 4096, v7
    v_mul_u32_u24 v5, {KR_PITCH}, v5
    v_add_u32 v5, v5, v6
    v_add_u32 v5, 4096, v5
    v_add_u32 v5, s27, v5
    v_cmp_gt_u32 vcc, 32, v3
    s_nop 1
    v_cndmask_b32 v7, 0, v7, vcc
    buffer_load_dwordx4 v[16:19], v7, s[8:11], s28 offen
    v_mov_b32 v20, 0
    v_mov_b32 v21, 0
    v_mov_b32 v22, 0
    v_mov_b32 v23, 0
    v_add_u32 v6, s27, v4
    """)
    g(f"""
    ds_write_b128 v6, v[20:23] offset:{CV_COPY}
    v_cmp_gt_u32 vcc, 27, v3
    s_and_saveexec_b64 s[30:31], vcc
    ds_write_b128 v6, v[20:23] offset:{CV_COPY+2048}
    s_mov_b64 exec, s[30:31]
    """)
    g(f"""
    v_lshrrev_b32 v24, 2, v3
    v_and_b32 v25, 3, v3
    v_mul_u32_u24 v24, 80, v24
    v_lshlrev_b32 v25, 4, v25
    v_add_u32 v24, v24, v25
    v_add_u32 v24, s27, v24
    s_waitcnt vmcnt(17)
    ds_write_b128 v24, v[8:11] offset:{CV_COPY+31*80}
    ds_write_b128 v24, v[12:15] offset:{CV_COPY+31*80+32*80}
    """)
    for s in range(8):
        g(f"s_waitcnt vmcnt({15-2*s})")
        g(f"ds_write_b128 v6, v[{64+8*s}:{67+8*s}] offset:{s*KR_PITCH}")
        g(f"ds_write_b128 v6, v[{68+8*s}:{71+8*s}] offset:{s*KR_PITCH+2048}")
    g(f"""
    s_waitcnt vmcnt(0)
    v_cmp_gt_u32 vcc, 32, v3
    s_and_saveexec_b64 s[30:31], vcc
    ds_write_b128 v5, v[16:19]
    s_mov_b64 exec, s[30:31]
    """)
    g(f"""
    v_and_b32 v3, 31, v1
    v_lshrrev_b32 v4, 5, v1
    v_and_b32 v5, 7, v3
    v_sub_u32 v5, 7, v5
    v_mul_u32_u24 v5, {KR_PITCH}, v5
    v_lshrrev_b32 v6, 3, v3
    v_sub_u32 v6, v4, v6
    v_lshlrev_b32 v6, 4, v6
    v_add_u32 v5, v5, v6
    s_lshl_b32 s28, s26, 10
    s_sub_u32 s28, {4080 - 64*47}, s28
    s_add_u32 s28, s28, s27
    v_add_u32 v5, s28, v5
    v_mul_u32_u24 v6, 80, v3
    v_lshlrev_b32 v7, 4, v4
    v_add_u32 v6, v6, v7
    s_mul_i32 s28, s26, {16*80}
    s_sub_u32 s28, {CV_COPY + 16*80}, s28
    s_add_u32 s28, s28, s27
    v_add_u32 v6, s28, v6
    """)
    for i in range(32):
        g(f"v_mov_b32 v{64+i}, 0")
    g("s_waitcnt lgkmcnt(0)\ns_barrier")
    for dl in range(16):
        ao = (15-dl)*64
        bo = (15-dl)*80
        fb = 96 + 32*(dl & 1)
        for kk in range(2):
            f = fb + 16*kk
            g(f"ds_read_b128 v[{f}:{f+3}], v5 offset:{ao+32*kk+2048}")
            g(f"ds_read_b128 v[{f+4}:{f+7}], v5 offset:{ao+32*kk}")
            g(f"ds_read_b128 v[{f+8}:{f+11}], v6 offset:{bo+32*kk}")
            g(f"ds_read_b128 v[{f+12}:{f+15}], v6 offset:{bo+32*kk+2560}")
        for kk in range(2):
            f = fb + 16*kk
            g(f"s_waitcnt lgkmcnt({4*(1-kk)})")
            g(f"v_mfma_f32_32x32x16_bf16 v[64:79], v[{f}:{f+3}], v[{f+8}:{f+11}], v[64:79]")
            g(f"v_mfma_f32_32x32x16_bf16 v[80:95], v[{f}:{f+3}], v[{f+12}:{f+15}], v[80:95]")
            g(f"v_mfma_f32_32x32x16_bf16 v[80:95], v[{f+4}:{f+7}], v[{f+8}:{f+11}], v[80:95]")
    g(f"""
    s_barrier
    v_lshlrev_b32 v7, 4, v1
    s_lshl_b32 s28, s26, 12
    s_add_u32 s28, s28, s27
    v_add_u32 v8, s28, v7
    s_xor_b32 s29, s26, 1
    s_lshl_b32 s29, s29, 12
    s_add_u32 s29, s29, s27
    v_add_u32 v9, s29, v7
    s_cmp_eq_u32 s26, 0
    s_cbranch_scc1 CV_W0
    s_nop 7
    """)
    for i in range(4):
        g(f"ds_write_b128 v8, v[{64+4*i}:{67+4*i}] offset:{1024*i}")
    for i in range(16):
        g(f"v_mov_b32 v{64+i}, v{80+i}")
    g("s_branch CV_J")
    g.label("CV_W0")
    g("s_nop 7")
    for i in range(4):
        g(f"ds_write_b128 v8, v[{80+4*i}:{83+4*i}] offset:{1024*i}")
    g.label("CV_J")
    g("s_waitcnt lgkmcnt(0)\ns_barrier")
    for i in range(4):
        g(f"ds_read_b128 v[{80+4*i}:{83+4*i}], v9 offset:{1024*i}")
    g(f"""
    v_mul_u32_u24 v10, 80, v3
    v_lshlrev_b32 v11, 3, v4
    v_add_u32 v10, v10, v11
    s_mul_i32 s28, s26, 2560
    s_add_u32 s28, s28, {CV_COPY + 31*80}
    s_add_u32 s28, s28, s27
    v_add_u32 v10, s28, v10
    """)
    for gi in range(4):
        g(f"ds_read_b64 v[{96+2*gi}:{97+2*gi}], v10 offset:{16*gi}")
    g(f"""
    v_lshlrev_b32 v60, 16, v60
    v_lshlrev_b32 v12, 6, v3
    v_add_u32 v12, v12, v11
    s_lshl_b32 s28, s26, 11
    s_lshl_b32 s29, s25, 12
    s_add_u32 s28, s28, s29
    s_waitcnt lgkmcnt(0)
    """)
    for i in range(16):
        g(f"v_add_f32 v{64+i}, v{64+i}, v{80+i}")
    for j in range(8):
        g(f"v_cvt_pk_bf16_f32 v{80+j}, v{64+2*j}, v{64+2*j+1}")
    for j in range(8):
        g(f"v_lshlrev_b32 v{64+2*j}, 16, v{80+j}")
        g(f"v_and_b32 v{64+2*j+1}, 0xffff0000, v{80+j}")
    for j in range(8):
        g(f"v_lshlrev_b32 v{104+2*j}, 16, v{96+j}")
        g(f"v_and_b32 v{104+2*j+1}, 0xffff0000, v{96+j}")
    for i in range(16):
        g(f"v_mul_f32 v{104+i}, v{104+i}, v60")
    for j in range(8):
        g(f"v_cvt_pk_bf16_f32 v{80+j}, v{104+2*j}, v{104+2*j+1}")
    for j in range(8):
        g(f"v_lshlrev_b32 v{104+2*j}, 16, v{80+j}")
        g(f"v_and_b32 v{104+2*j+1}, 0xffff0000, v{80+j}")
    for i in range(16):
        g(f"v_add_f32 v{64+i}, v{64+i}, v{104+i}")
    for j in range(8):
        g(f"v_cvt_pk_bf16_f32 v{80+j}, v{64+2*j}, v{64+2*j+1}")
    for gi in range(4):
        g(f"buffer_store_dwordx2 v[{80+2*gi}:{81+2*gi}], v12, s[16:19], s28 offen offset:{16*gi}")
    g("s_endpgm")

K2_TOTAL = 256
K2_LDS = 65536
def gen_k2(g):
    kernel_begin(g, "fin_kernel")
    g(f"""
    s_cmp_ge_u32 s2, {K2_TOTAL}
    s_cbranch_scc1 K2_END
    s_load_dwordx2 s[22:23], s[0:1], 120
    s_load_dwordx2 s[4:5], s[0:1], 0
    s_load_dwordx2 s[6:7], s[0:1], 104
    v_and_b32 v1, 63, v0
    v_lshrrev_b32 v2, 6, v0
    s_nop 0
    v_readfirstlane_b32 s3, v2
    s_and_b32 s24, s2, 7
    s_lshr_b32 s25, s2, 3
    s_waitcnt lgkmcnt(0)
    """)
    g.srd(8, 22, 512*3584, WS_W2T)
    g.srd(12, 22, 2048*3584, WS_ACT)
    g.srd(16, 22, 2048*1024, WS_AT)
    g.srd(28, 4, 2048*1024)
    g.srd(32, 6, 2048*1024)
    g(f"""
    v_and_b32 v3, 15, v1
    v_lshrrev_b32 v4, 4, v1
    v_mul_u32_u24 v5, 3584, v3
    v_lshlrev_b32 v6, 4, v4
    v_add_u32 v5, v5, v6
    s_mul_i32 s26, s24, {64*3584}
    s_mul_i32 s27, s25, {64*3584}
    s_mul_i32 s36, s3, 896
    """)
    for i in range(4):
        g(f"v_add_u32 v{8+i}, s26, v5" if i == 0 else f"v_add_u32 v{8+i}, {16*3584}, v{8+i-1}")
    for i in range(4):
        g(f"v_add_u32 v{12+i}, s27, v5" if i == 0 else f"v_add_u32 v{12+i}, {16*3584}, v{12+i-1}")
    NS = 3
    def issue(step):
        fb = 128 + 32*(step % NS)
        for i in range(4):
            g(f"buffer_load_dwordx4 v[{fb+4*i}:{fb+4*i+3}], v{8+i}, s[8:11], s36 offen offset:{64*step}")
        for i in range(4):
            g(f"buffer_load_dwordx4 v[{fb+16+4*i}:{fb+16+4*i+3}], v{12+i}, s[12:15], s36 offen offset:{64*step}")
    for st in range(NS):
        issue(st)
    g(f"""
    s_lshl_b32 s37, s25, 6
    s_lshl_b32 s38, s3, 4
    s_add_u32 s37, s37, s38
    v_add_u32 v16, s37, v3
    v_lshlrev_b32 v17, 10, v16
    v_lshlrev_b32 v18, 3, v4
    v_add_u32 v17, v17, v18
    s_lshl_b32 s38, s24, 7
    v_add_u32 v17, s38, v17
    v_lshlrev_b32 v18, 14, v4
    v_lshlrev_b32 v19, 1, v16
    v_add_u32 v18, v18, v19
    s_lshl_b32 s38, s24, 18
    v_add_u32 v18, s38, v18
    v_add_u32 v19, 8192, v18
    """)
    for i in range(4):
        g(f"buffer_load_dwordx2 v[{24+2*i}:{25+2*i}], v17, s[28:31], 0 offen offset:{32*i}")
    for i in range(4):
        g(f"s_mov_b32 s39, {65536*i}")
        for r in range(4):
            va = 18 if r < 2 else 19
            g(f"buffer_load_ushort v{32+4*i+r}, v{va}, s[16:19], s39 offen offset:{4096*(r&1) if False else 0}" if False else
              f"buffer_load_ushort v{32+4*i+r}, v{va}, s[16:19], s39 offen offset:{(r&1)*4095 if False else 0}")
    g.L = g.L[:-20]
    g("v_add_u32 v20, 4096, v18\nv_add_u32 v21, 4096, v19")
    for i in range(4):
        g(f"s_mov_b32 s39, {65536*i}")
        for r in range(4):
            va = [18, 20, 19, 21][r]
            g(f"buffer_load_ushort v{32+4*i+r}, v{va}, s[16:19], s39 offen")
    for i in range(64):
        g(f"v_mov_b32 v{64+i}, 0")
    NEP = 4 + 16
    for st in range(14):
        fb = 128 + 32*(st % NS)
        rem = min(14, st + NS) - (st + 1)
        cnt = 8*rem + (NEP if st == 0 else 0)
        if st == 0:
            cnt = 8*(NS-1) + NEP
        elif st < NS:
            cnt = 8*rem
        else:
            cnt = 8*rem
        g(f"s_waitcnt vmcnt({cnt})")
        for i in range(4):
            for j in range(4):
                a = 64 + 4*(4*i+j)
                g(f"v_mfma_f32_16x16x32_bf16 v[{a}:{a+3}], v[{fb+4*i}:{fb+4*i+3}], v[{fb+16+4*j}:{fb+16+4*j+3}], v[{a}:{a+3}]")
        if st + NS < 14:
            issue(st + NS)
    g(f"""
    v_lshlrev_b32 v5, 4, v1
    s_lshl_b32 s36, s3, 14
    v_add_u32 v6, s36, v5
    s_lshl_b32 s37, s3, 10
    v_add_u32 v7, s37, v5
    s_nop 7
    """)
    for i in range(4):
        for j in range(4):
            a = 64 + 4*(4*i+j)
            g(f"ds_write_b128 v6, v[{a}:{a+3}] offset:{(4*i+j)*1024}")
    g("s_waitcnt lgkmcnt(0)\ns_barrier")
    for i in range(4):
        for w in range(4):
            g(f"ds_read_b128 v[{128+16*i+4*w}:{131+16*i+4*w}], v7 offset:{w*16384+i*4096}")
    g("s_waitcnt lgkmcnt(0)")
    for i in range(4):
        for r in range(4):
            b = 128+16*i+r
            g(f"v_add_f32 v{b}, v{b}, v{b+4}")
            g(f"v_add_f32 v{b+8}, v{b+8}, v{b+12}")
            g(f"v_add_f32 v{b}, v{b}, v{b+8}")
    g("s_waitcnt vmcnt(0)")
    for i in range(4):
        b = 128+16*i
        g(f"""
        v_cvt_pk_bf16_f32 v{b+4}, v{b}, v{b+1}
        v_cvt_pk_bf16_f32 v{b+5}, v{b+2}, v{b+3}
        v_lshlrev_b32 v{b}, 16, v{b+4}
        v_and_b32 v{b+1}, 0xffff0000, v{b+4}
        v_lshlrev_b32 v{b+2}, 16, v{b+5}
        v_and_b32 v{b+3}, 0xffff0000, v{b+5}
        v_lshlrev_b32 v{b+4}, 16, v{24+2*i}
        v_and_b32 v{b+5}, 0xffff0000, v{24+2*i}
        v_lshlrev_b32 v{b+6}, 16, v{25+2*i}
        v_and_b32 v{b+7}, 0xffff0000, v{25+2*i}
        v_lshlrev_b32 v{b+8}, 16, v{32+4*i}
        v_lshlrev_b32 v{b+9}, 16, v{33+4*i}
        v_lshlrev_b32 v{b+10}, 16, v{34+4*i}
        v_lshlrev_b32 v{b+11}, 16, v{35+4*i}
        v_add_f32 v{b+4}, v{b+4}, v{b+8}
        v_add_f32 v{b+5}, v{b+5}, v{b+9}
        v_add_f32 v{b+6}, v{b+6}, v{b+10}
        v_add_f32 v{b+7}, v{b+7}, v{b+11}
        v_cvt_pk_bf16_f32 v{b+8}, v{b+4}, v{b+5}
        v_cvt_pk_bf16_f32 v{b+9}, v{b+6}, v{b+7}
        v_lshlrev_b32 v{b+4}, 16, v{b+8}
        v_and_b32 v{b+5}, 0xffff0000, v{b+8}
        v_lshlrev_b32 v{b+6}, 16, v{b+9}
        v_and_b32 v{b+7}, 0xffff0000, v{b+9}
        v_add_f32 v{b+4}, v{b+4}, v{b}
        v_add_f32 v{b+5}, v{b+5}, v{b+1}
        v_add_f32 v{b+6}, v{b+6}, v{b+2}
        v_add_f32 v{b+7}, v{b+7}, v{b+3}
        v_cvt_pk_bf16_f32 v{b+8}, v{b+4}, v{b+5}
        v_cvt_pk_bf16_f32 v{b+9}, v{b+6}, v{b+7}
        buffer_store_dwordx2 v[{b+8}:{b+9}], v17, s[32:35], 0 offen offset:{32*i}
        """)
    g.label("K2_END")
    g("s_endpgm")

HEADER = open("parallel_sum__ssm_conv_s4__dense_activation_mish__prompt.s.ref").read().split("; Override launch")[0]

def build():
    g = G()
    g.raw(HEADER.rstrip("\n"))
    g.raw(f"; @launch kernel=prep_kernel grid=({K0_TOTAL},1,1) block=(256,1,1) lds={K0_LDS}")
    g.raw(f"; @launch kernel=mid_kernel grid=({K1_TOTAL},1,1) block=(256,1,1) lds={K1_LDS}")
    g.raw(f"; @launch kernel=fin_kernel grid=({K2_TOTAL},1,1) block=(256,1,1) lds={K2_LDS}")
    g.raw('.amdgcn_target "amdgcn-amd-amdhsa--gfx950"')
    g.raw(".text")
    gen_k0(g)
    gen_k1(g)
    gen_k2(g)
    g.raw('.section .rodata,"a"')
    g.raw(".p2align 6")
    g.raw(kernel_desc("prep_kernel", 128))
    g.raw(".p2align 6")
    g.raw(kernel_desc("mid_kernel", 192))
    g.raw(".p2align 6")
    g.raw(kernel_desc("fin_kernel", 224))
    return g.text()

if __name__ == "__main__":
    out = sys.argv[1] if len(sys.argv) > 1 else "parallel_sum__ssm_conv_s4__dense_activation_mish__prompt.s"
    open(out, "w").write(build())
    print("written", out)
```

```python
import sys, struct, os
STAMP = os.environ.get('STAMP') is not None
STAMP_WG = int(os.environ.get('STAMP', '0'))
TL = os.environ.get('TL') is not None

def f2u(x): return struct.unpack('<I', struct.pack('<f', x))[0]
def fhex(x): return "0x%08x" % f2u(x)
LOG2E = 1.4426950408889634
INV2PI = 0.15915494309189535

WS_ST  = 0x000000
WS_CS  = 0x010000
WS_XT  = 0x200000
WS_KR  = 0x400000
KR_PITCH = 4160
WS_KS  = 0x620000
WS_W2F = 0x800000
WS_AT  = 0xA00000
WS_ACT = 0xC00000

class G:
    def __init__(self): self.L = []
    def __call__(self, s):
        for line in s.strip('\n').split('\n'):
            if line.strip(): self.L.append("    " + line.strip())
    def label(self, s): self.L.append(s + ":")
    def raw(self, s): self.L.append(s)
    def text(self): return "\n".join(self.L) + "\n"
    def stamp(self, i):
        if STAMP: self(f"s_memtime s[{64+2*i}:{65+2*i}]")
    def stamp_end(self, n, tag):
        if TL:
            base = 0x3000000 if G.kname == 'a_kernel' else 0x3100000
            self(f"""
            s_waitcnt vmcnt(0) lgkmcnt(0)
            s_memrealtime s[90:91]
            s_memtime s[92:93]
            s_waitcnt lgkmcnt(0)
            s_cmp_lg_u32 s94, 0
            s_cbranch_scc1 TL_SKIP_{tag}
            s_lshl_b32 s85, s95, 4
            s_add_u32 s85, s85, {base}
            v_mov_b32 v0, s85
            v_mov_b32 v4, s88
            v_mov_b32 v5, s90
            s_sub_u32 s92, s92, s86
            v_mov_b32 v6, s92
            v_mov_b32 v7, 0
            global_store_dwordx4 v0, v[4:7], s[22:23]
            """)
            self.label(f"TL_SKIP_{tag}")
        if not STAMP: return
        self(f"""
        s_waitcnt vmcnt(0) lgkmcnt(0)
        s_memtime s[{64+2*n}:{65+2*n}]
        s_waitcnt lgkmcnt(0)
        s_cmp_lg_u32 s95, {STAMP_WG}
        s_cbranch_scc1 ST_SKIP_{tag}
        s_cmp_lg_u32 s94, 0
        s_cbranch_scc1 ST_SKIP_{tag}
        v_mov_b32 v0, {0x3200000 if G.kname == 'a_kernel' else 0x3200100}
        """)
        for i in range(n+1):
            self(f"s_sub_u32 s93, s{64+2*i}, s64")
            self(f"v_mov_b32 v1, s93")
            self(f"global_store_dword v0, v1, s[22:23] offset:{4*i}")
        self.label(f"ST_SKIP_{tag}")
    def srd(self, d, pb, nbytes, off=0):
        if off:
            self(f"s_add_u32 s{d}, s{pb}, {off}")
            self(f"s_addc_u32 s{d+1}, s{pb+1}, 0")
        else:
            self(f"s_mov_b32 s{d}, s{pb}")
            self(f"s_mov_b32 s{d+1}, s{pb+1}")
        self(f"s_mov_b32 s{d+2}, {nbytes}")
        self(f"s_mov_b32 s{d+3}, 0x00020000")
    def poll(self, tag, soff, target, vt, vz):
        self(f"v_mov_b32 v{vz}, s{soff}")
        self.label(f"POLL_{tag}")
        self(f"""
        global_load_dword v{vt}, v{vz}, s[20:21] sc1
        s_waitcnt vmcnt(0)
        v_readfirstlane_b32 s{soff+1}, v{vt}
        s_nop 3
        s_cmp_ge_u32 s{soff+1}, {target}
        s_cbranch_scc1 POLLD_{tag}
        s_sleep 8
        s_branch POLL_{tag}
        """)
        self.label(f"POLLD_{tag}")

def poll_flags(g, tag, soff, ndw, vt, vz):
    g(f"""
    v_min_u32 v{vz}, {ndw-1}, v1
    v_lshlrev_b32 v{vz}, 2, v{vz}
    v_add_u32 v{vz}, s{soff}, v{vz}
    s_mov_b32 s{soff+1}, 0x01010101
    """)
    g.label(f"POLL_{tag}")
    g(f"""
    global_load_dword v{vt}, v{vz}, s[20:21] sc1
    s_waitcnt vmcnt(0)
    v_cmp_ne_u32 vcc, s{soff+1}, v{vt}
    s_nop 3
    s_cmp_eq_u64 vcc, 0
    s_cbranch_scc1 POLLD_{tag}
    s_sleep 8
    s_branch POLL_{tag}
    """)
    g.label(f"POLLD_{tag}")

def kernel_begin(g, name):
    g.raw(f".globl {name}")
    g.raw(".p2align 8")
    g.raw(f".type {name},@function")
    g.label(name)
    g.stamp(0)
    G.kname = name
    if TL:
        g("s_memrealtime s[88:89]\ns_memtime s[86:87]")

def kernel_desc(name, vgpr, sgpr=96):
    acc = (vgpr + 3)//4*4
    return f""".amdhsa_kernel {name}
  .amdhsa_next_free_vgpr {vgpr}
  .amdhsa_next_free_sgpr {sgpr}
  .amdhsa_accum_offset {acc}
  .amdhsa_group_segment_fixed_size 0
  .amdhsa_kernarg_size 128
  .amdhsa_user_sgpr_count 2
  .amdhsa_user_sgpr_kernarg_segment_ptr 1
  .amdhsa_system_sgpr_workgroup_id_x 1
.end_amdhsa_kernel
"""
DPP = ["quad_perm:[1,0,3,2]", "quad_perm:[2,3,0,1]", "row_half_mirror", "row_mirror",
       "row_bcast:15 row_mask:0xa", "row_bcast:31 row_mask:0xc"]

KA_NL = 64
KA_NW = 112
KA_NG = 224
KA_TOTAL = KA_NL + KA_NW + KA_NG
KA_LDS = 81920
TP = 272
TCH = 96*TP
LNP = 1056
TRP = 288

def gen_ka(g):
    kernel_begin(g, "a_kernel")
    g(f"""
    s_cmp_ge_u32 s2, {KA_TOTAL}
    s_cbranch_scc1 KA_END
    s_load_dwordx4 s[20:23], s[0:1], 112
    v_and_b32 v1, 63, v0
    v_lshrrev_b32 v2, 6, v0
    s_nop 0
    v_readfirstlane_b32 s3, v2
    s_mov_b32 s95, s2
    s_mov_b32 s94, s3
    s_cmp_ge_u32 s2, {KA_NL}
    s_cbranch_scc1 KA_NOTLN
    """)
    gen_ln(g)
    g.label("KA_NOTLN")
    g(f"""
    s_sub_u32 s2, s2, {KA_NL}
    s_cmp_ge_u32 s2, {KA_NW}
    s_cbranch_scc1 KA_G1
    """)
    gen_w2f(g)
    g.label("KA_G1")
    g(f"s_sub_u32 s2, s2, {KA_NW}")
    gen_gemm1(g)
    g.label("KA_END")
    g("s_endpgm")

def gen_ln(g):
    NR = 4
    g(f"""
    s_load_dwordx2 s[4:5], s[0:1], 0
    s_lshl_b32 s6, s2, 5
    s_lshl_b32 s7, s3, 2
    s_add_u32 s6, s6, s7
    s_lshl_b32 s7, s6, 10
    v_lshlrev_b32 v3, 4, v1
    s_waitcnt lgkmcnt(0)
    """)
    g.srd(8, 4, 2048*1024)
    g.srd(16, 22, 2048*1024, WS_XT)
    for i in range(NR):
        g(f"buffer_load_dwordx4 v[{16+4*i}:{19+4*i}], v3, s[8:11], s7 offen offset:{1024*i}")
    g("s_waitcnt vmcnt(0)")
    X = 32
    for i in range(NR):
        for j in range(4):
            g(f"v_lshlrev_b32 v{X+8*i+2*j}, 16, v{16+4*i+j}")
            g(f"v_and_b32 v{X+8*i+2*j+1}, 0xffff0000, v{16+4*i+j}")
    def reduce(base):
        for mod in DPP:
            for i in range(NR):
                g(f"v_add_f32_dpp v{base+i}, v{base+i}, v{base+i} {mod}")
        g("s_nop 0")
    for i in range(NR):
        b = X+8*i
        g(f"v_add_f32 v{4+i}, v{b}, v{b+1}")
        g(f"v_add_f32 v{8+i}, v{b+2}, v{b+3}")
        g(f"v_add_f32 v{12+i}, v{b+4}, v{b+5}")
        g(f"v_add_f32 v{64+i}, v{b+6}, v{b+7}")
    for i in range(NR):
        g(f"v_add_f32 v{4+i}, v{4+i}, v{8+i}")
        g(f"v_add_f32 v{12+i}, v{12+i}, v{64+i}")
    for i in range(NR):
        g(f"v_add_f32 v{4+i}, v{4+i}, v{12+i}")
    g("s_nop 1")
    reduce(4)
    for i in range(NR):
        g(f"v_readlane_b32 s{32+i}, v{4+i}, 63")
    g("s_nop 1")
    for i in range(NR):
        g(f"v_mov_b32 v{4+i}, s{32+i}")
    for i in range(NR):
        g(f"v_mul_f32 v{4+i}, {fhex(1.0/512)}, v{4+i}")
    for i in range(NR):
        for j in range(8):
            g(f"v_sub_f32 v{64+j}, v{X+8*i+j}, v{4+i}")
        g(f"v_mul_f32 v{8+i}, v64, v64")
        g(f"v_mul_f32 v{12+i}, v65, v65")
        for j in range(2, 8):
            g(f"v_fma_f32 v{8+i+4*(j&1)}, v{64+j}, v{64+j}, v{8+i+4*(j&1)}")
        g(f"v_add_f32 v{8+i}, v{8+i}, v{12+i}")
    g("s_nop 1")
    reduce(8)
    for i in range(NR):
        g(f"v_readlane_b32 s{32+i}, v{8+i}, 63")
    g("s_nop 1")
    for i in range(NR):
        g(f"v_mov_b32 v{8+i}, s{32+i}")
    for i in range(NR):
        g(f"v_mul_f32 v{8+i}, {fhex(1.0/512)}, v{8+i}")
    for i in range(NR):
        g(f"v_cvt_pk_bf16_f32 v{12+i}, v{4+i}, v{8+i}")
    for i in range(NR):
        g(f"v_lshlrev_b32 v{4+i}, 16, v{12+i}")
        g(f"v_and_b32 v{8+i}, 0xffff0000, v{12+i}")
    for i in range(NR):
        g(f"v_add_f32 v{8+i}, {fhex(1e-5)}, v{8+i}")
    for i in range(NR):
        g(f"v_cvt_pk_bf16_f32 v{8+i}, v{8+i}, v{8+i}")
    for i in range(NR):
        g(f"v_lshlrev_b32 v{8+i}, 16, v{8+i}")
    for i in range(NR):
        g(f"v_sqrt_f32 v{8+i}, v{8+i}")
    for i in range(NR):
        g(f"v_cvt_pk_bf16_f32 v{8+i}, v{8+i}, v{8+i}")
    for i in range(NR):
        g(f"v_lshlrev_b32 v{8+i}, 16, v{8+i}")
    for i in range(NR):
        g(f"v_rcp_f32 v{12+i}, v{8+i}")
    g("s_nop 0")
    for i in range(NR):
        g(f"v_fma_f32 v{64+i}, -v{8+i}, v{12+i}, 1.0")
    for i in range(NR):
        g(f"v_fma_f32 v{17+2*i}, v{64+i}, v{12+i}, v{12+i}")
    for i in range(NR):
        g(f"v_mul_f32 v{16+2*i}, v{4+i}, v{17+2*i}")
    g(f"""
    s_lshl_b32 s42, s6, 3
    v_mov_b32 v24, s42
    s_add_u32 s44, s22, {WS_ST}
    s_addc_u32 s45, s23, 0
    v_cmp_eq_u32 vcc, 0, v1
    s_and_saveexec_b64 s[46:47], vcc
    global_store_dwordx4 v24, v[16:19], s[44:45] sc1
    global_store_dwordx4 v24, v[20:23], s[44:45] offset:16 sc1
    s_mov_b64 exec, s[46:47]
    s_mul_i32 s36, s3, {NR*LNP}
    v_add_u32 v2, s36, v3
    """)
    for i in range(NR):
        b = X+8*i
        for j in range(8):
            g(f"v_sub_f32 v{b+j}, v{b+j}, v{4+i}")
        for j in range(4):
            g(f"v_cvt_pk_bf16_f32 v{64+j}, v{b+2*j}, v{b+2*j+1}")
        for j in range(4):
            g(f"v_lshlrev_b32 v{b+2*j}, 16, v{64+j}")
            g(f"v_and_b32 v{b+2*j+1}, 0xffff0000, v{64+j}")
        for j in range(8):
            g(f"v_mul_f32 v{64+j}, v{b+j}, v{12+i}")
        for j in range(8):
            g(f"v_fma_f32 v{b+j}, -v{64+j}, v{8+i}, v{b+j}")
        for j in range(8):
            g(f"v_fma_f32 v{64+j}, v{b+j}, v{12+i}, v{64+j}")
        for j in range(4):
            g(f"v_cvt_pk_bf16_f32 v{72+j}, v{64+2*j}, v{64+2*j+1}")
        for j in range(4):
            g(f"v_lshlrev_b32 v{64+2*j}, 16, v{72+j}")
            g(f"v_and_b32 v{64+2*j+1}, 0xffff0000, v{72+j}")
        o = 76 + 4*(i & 1)
        for j in range(4):
            g(f"v_cvt_pk_f16_f32 v{o+j}, v{64+2*j}, v{64+2*j+1}")
        g(f"ds_write_b128 v2, v[{o}:{o+3}] offset:{i*LNP}")
    g(f"""
    s_waitcnt vmcnt(0) lgkmcnt(0)
    s_barrier
    s_cmp_lg_u32 s3, 0
    s_cbranch_scc1 LN_NOSIG
    v_mov_b32 v12, s2
    v_mov_b32 v13, 1
    v_cmp_eq_u32 vcc, 0, v1
    s_and_saveexec_b64 s[46:47], vcc
    global_store_byte v12, v13, s[20:21] sc1
    s_mov_b64 exec, s[46:47]
    """)
    g.label("LN_NOSIG")
    g(f"""
    v_and_b32 v4, 15, v1
    v_lshrrev_b32 v5, 4, v1
    v_lshlrev_b32 v6, 3, v5
    v_lshrrev_b32 v7, 2, v4
    v_add_u32 v6, v6, v7
    v_mul_u32_u24 v6, {LNP}, v6
    v_and_b32 v7, 3, v4
    v_lshlrev_b32 v7, 3, v7
    v_add_u32 v6, v6, v7
    s_lshl_b32 s36, s3, 7
    v_add_u32 v6, s36, v6
    v_lshlrev_b32 v8, 6, v4
    v_lshlrev_b32 v9, 4, v5
    v_add_u32 v8, v8, v9
    s_lshl_b32 s36, s2, 15
    s_lshl_b32 s37, s3, 12
    s_add_u32 s36, s36, s37
    """)
    for it in range(4):
        g(f"ds_read_b64_tr_b16 v[{16+4*it}:{17+4*it}], v6 offset:{32*it}")
        g(f"ds_read_b64_tr_b16 v[{18+4*it}:{19+4*it}], v6 offset:{32*it+4*LNP}")
    g("s_waitcnt lgkmcnt(0)")
    for it in range(4):
        g(f"buffer_store_dwordx4 v[{16+4*it}:{19+4*it}], v8, s[16:19], s36 offen offset:{1024*it}")
    g.stamp_end(1, "ln")
    g("s_endpgm")

def gen_w2f(g):
    g(f"""
    s_load_dwordx2 s[6:7], s[0:1], 96
    v_and_b32 v4, 15, v1
    v_lshrrev_b32 v5, 4, v1
    s_lshr_b32 s24, s2, 2
    s_and_b32 s25, s2, 3
    v_lshlrev_b32 v8, 4, v1
    s_lshl_b32 s28, s25, 3
    s_add_u32 s28, s28, s3
    s_mul_i32 s28, s28, 56
    s_lshl_b32 s29, s24, 1
    s_add_u32 s28, s28, s29
    s_lshl_b32 s28, s28, 10
    v_lshrrev_b32 v3, 4, v0
    v_and_b32 v6, 15, v0
    v_lshlrev_b32 v7, 10, v3
    v_lshlrev_b32 v6, 4, v6
    v_add_u32 v7, v7, v6
    s_lshl_b32 s30, s24, 16
    s_lshl_b32 s31, s25, 8
    s_add_u32 s30, s30, s31
    s_add_u32 s31, s30, 32768
    s_waitcnt lgkmcnt(0)
    """)
    g.srd(8, 6, 512*1792*2)
    g.srd(12, 22, 512*1792*2, WS_W2F)
    g(f"""
    buffer_load_dwordx4 v[12:15], v7, s[8:11], s30 offen
    buffer_load_dwordx4 v[16:19], v7, s[8:11], s31 offen
    v_mul_u32_u24 v10, {TRP}, v3
    v_add_u32 v10, v10, v6
    v_lshlrev_b32 v6, 3, v5
    v_lshrrev_b32 v7, 2, v4
    v_add_u32 v6, v6, v7
    v_mul_u32_u24 v6, {TRP}, v6
    v_and_b32 v7, 3, v4
    v_lshlrev_b32 v7, 3, v7
    v_add_u32 v6, v6, v7
    s_lshl_b32 s36, s3, 5
    v_add_u32 v6, s36, v6
    s_waitcnt vmcnt(0)
    ds_write_b128 v10, v[12:15]
    ds_write_b128 v10, v[16:19] offset:{32*TRP}
    s_waitcnt lgkmcnt(0)
    s_barrier
    ds_read_b64_tr_b16 v[20:21], v6
    ds_read_b64_tr_b16 v[22:23], v6 offset:{4*TRP}
    ds_read_b64_tr_b16 v[24:25], v6 offset:{32*TRP}
    ds_read_b64_tr_b16 v[26:27], v6 offset:{36*TRP}
    s_waitcnt lgkmcnt(0)
    buffer_store_dwordx4 v[20:23], v8, s[12:15], s28 offen
    buffer_store_dwordx4 v[24:27], v8, s[12:15], s28 offen offset:1024
    """)
    g.stamp_end(1, "w2")
    g("s_endpgm")

L_SC = 2*TCH
L_T = L_SC + 64
L_P = L_T + 16384
L_R = L_P + 3072
def gen_kgen_setup(g):
    g(f"""
    s_lshr_b32 s31, s3, 2
    s_and_b32 s30, s3, 3
    s_mov_b32 s40, 0
    s_mov_b32 s41, {fhex(16.0)}
    s_mov_b32 s42, 0
    s_mov_b32 s43, {fhex(1.0)}
    s_cmp_eq_u32 s30, 1
    s_cselect_b32 s40, {fhex(256.0)}, s40
    s_cselect_b32 s42, {fhex(8.0)}, s42
    s_cmp_eq_u32 s30, 2
    s_cselect_b32 s40, {fhex(512.0)}, s40
    s_cmp_eq_u32 s30, 3
    s_cselect_b32 s40, {fhex(1536.0)}, s40
    s_cselect_b32 s42, {fhex(32.0)}, s42
    s_cmp_ge_u32 s30, 2
    s_cselect_b32 s41, {fhex(64.0)}, s41
    s_cselect_b32 s43, {fhex(4.0)}, s43
    s_mul_i32 s32, s31, {TCH}
    s_mul_i32 s28, s30, {16*TP}
    s_add_u32 s28, s28, s32
    s_mul_i32 s29, s30, {8*TP}
    s_add_u32 s29, s29, {64*TP}
    s_add_u32 s29, s29, s32
    v_lshlrev_b32 v6, 2, v1
    v_add_u32 v7, s29, v6
    v_add_u32 v6, s28, v6
    v_and_b32 v8, 15, v1
    v_lshrrev_b32 v9, 4, v1
    v_mul_u32_u24 v8, {TP}, v8
    v_lshlrev_b32 v9, 4, v9
    v_add_u32 v8, v8, v9
    s_lshr_b32 s33, s30, 1
    s_mul_i32 s33, s33, {16*TP}
    s_add_u32 s33, s33, {64*TP}
    s_add_u32 s33, s33, s32
    v_add_u32 v9, s33, v8
    v_add_u32 v8, s28, v8
    v_and_b32 v10, 15, v1
    v_lshrrev_b32 v11, 4, v1
    v_lshlrev_b32 v11, 8, v11
    v_lshlrev_b32 v10, 2, v10
    v_add_u32 v10, v10, v11
    s_lshl_b32 s28, s30, 10
    s_lshl_b32 s29, s31, 12
    s_add_u32 s28, s28, s29
    s_add_u32 s28, s28, {L_T}
    v_add_u32 v10, s28, v10
    v_lshlrev_b32 v11, 2, v0
    v_sub_u32 v11, 2047, v11
    """)
    for j in range(4):
        g(f"""
        v_subrev_u32 v{16+j}, {j}, v11
        v_cvt_f32_u32 v{16+j}, v{16+j}
        v_cvt_pk_bf16_f32 v{16+j}, v{16+j}, v{16+j}
        v_lshlrev_b32 v{16+j}, 16, v{16+j}
        v_cvt_u32_f32 v{16+j}, v{16+j}
        v_subrev_u32 v12, 512, v{16+j}
        v_lshrrev_b32 v12, 2, v12
        v_add_u32 v12, 512, v12
        v_cmp_gt_u32 vcc, 512, v{16+j}
        s_nop 1
        v_cndmask_b32 v{16+j}, v12, v{16+j}, vcc
        v_lshlrev_b32 v{16+j}, 2, v{16+j}
        """)

def gen_kgen(g, dd):
    b = 52 + 8*dd
    def direct(sl, vare, vaim, vr, vi, t0, t1):
        g(f"""
        v_mul_f32 v{t0}, s{sl}, v{vare}
        v_mul_f32 v{t1}, s{sl}, v{vaim}
        v_exp_f32 v{t0}, v{t0}
        v_fract_f32 v{t1}, v{t1}
        v_cos_f32 v{vr}, v{t1}
        v_sin_f32 v{vi}, v{t1}
        s_nop 0
        v_mul_f32 v{vr}, v{t0}, v{vr}
        v_mul_f32 v{vi}, v{t0}, v{vi}
        """)
    def cmul(dr, di, ar, ai, br, bi):
        g(f"""
        v_mul_f32 v{dr}, v{ar}, v{br}
        v_mul_f32 v{di}, v{ar}, v{bi}
        v_fma_f32 v{dr}, -v{ai}, v{bi}, v{dr}
        v_fma_f32 v{di}, v{ai}, v{br}, v{di}
        """)
    def emit(zr, zi, vaddr, row, t):
        g(f"""
        v_cvt_pk_f16_f32 v{t}, v{zr}, v{zi}
        ds_write_b32 v{vaddr}, v{t} offset:{row*TP}
        """)
    g(f"""
    v_lshlrev_b32 v5, 16, v{b+6}
    v_mul_f32 v5, {fhex(LOG2E)}, v5
    v_exp_f32 v5, v5
    s_nop 0
    v_cvt_pk_bf16_f32 v5, v5, v5
    v_lshlrev_b32 v5, 16, v5
    """)
    for i in range(6):
        g(f"v_lshlrev_b32 v{b+i}, 16, v{b+i}")
    g(f"""
    v_mul_f32 v24, v5, v{b}
    v_mul_f32 v25, v5, v{b+1}
    v_mul_f32 v24, {fhex(LOG2E)}, v24
    v_mul_f32 v25, {fhex(INV2PI)}, v25
    v_sub_f32 v26, 0, v25
    v_mul_f32 v27, v5, v{b+2}
    v_mul_f32 v28, v5, v{b+3}
    """)
    cmul(29, 30, b+4, b+5, 27, 28)
    g(f"""
    v_max_f32 v31, abs(v29), abs(v30)
    v_max_f32 v31, {fhex(1e-30)}, v31
    """)
    direct(40, 24, 26, 32, 33, 40, 41)
    g(f"v_max_f32_dpp v31, v31, v31 {DPP[0]}")
    direct(41, 24, 26, 34, 35, 40, 41)
    g(f"v_max_f32_dpp v31, v31, v31 {DPP[1]}")
    direct(42, 24, 25, 44, 45, 40, 41)
    g(f"v_max_f32_dpp v31, v31, v31 {DPP[2]}")
    direct(43, 24, 25, 46, 47, 40, 41)
    for mod in DPP[3:]:
        g(f"v_max_f32_dpp v31, v31, v31 {mod}\ns_nop 1")
    g(f"""
    v_readlane_b32 s34, v31, 63
    s_nop 3
    v_mov_b32 v31, s34
    v_rcp_f32 v40, v31
    s_lshl_b32 s34, s31, 2
    s_add_u32 s34, s34, {L_SC + 8*dd}
    v_mov_b32 v41, s34
    ds_write_b32 v41, v31
    v_mul_f32 v29, v29, v40
    v_mul_f32 v30, v30, v40
    v_sub_f32 v30, 0, v30
    v_mov_b32 v68, 0
    v_mov_b32 v69, 0
    v_mov_b32 v70, 0
    v_mov_b32 v71, 0
    """)
    cmul(36, 37, 29, 30, 32, 33)
    if dd == 1:
        g("s_barrier")
    z = (36, 37); zn = (38, 39)
    y = (44, 45); yn = (48, 49)
    for k in range(16):
        emit(z[0], z[1], 6, k, 42 + (k & 1))
        if k < 8:
            emit(y[0], y[1], 7, k, 50 + (k & 1))
        if k < 15:
            cmul(zn[0], zn[1], z[0], z[1], 34, 35)
            z, zn = zn, z
        if k < 7:
            cmul(yn[0], yn[1], y[0], y[1], 46, 47)
            y, yn = yn, y
    g("s_waitcnt lgkmcnt(0)\ns_barrier")
    for gi in range(4):
        g(f"ds_read_b128 v[{72+8*gi}:{75+8*gi}], v8 offset:{64*gi}")
        g(f"ds_read_b128 v[{76+8*gi}:{79+8*gi}], v9 offset:{64*gi}")
    g(f"v_mov_b32 v12, {L_SC+8*dd}\nds_read_b64 v[14:15], v12")
    for gi in range(4):
        g(f"s_waitcnt lgkmcnt({7-2*gi})")
        g(f"v_mfma_f32_16x16x32_f16 v[68:71], v[{72+8*gi}:{75+8*gi}], v[{76+8*gi}:{79+8*gi}], v[68:71]")
    g(f"""
    s_waitcnt lgkmcnt(0)
    v_add_f32 v{104+dd}, v14, v15
    v_rcp_f32 v{106+dd}, v{104+dd}
    s_nop 6
    v_mul_f32 v68, v68, v31
    v_mul_f32 v69, v69, v31
    v_mul_f32 v70, v70, v31
    v_mul_f32 v71, v71, v31
    ds_write_b32 v10, v68 offset:{8192*dd}
    ds_write_b32 v10, v69 offset:{8192*dd+64}
    ds_write_b32 v10, v70 offset:{8192*dd+128}
    ds_write_b32 v10, v71 offset:{8192*dd+192}
    """)

NST = 5
def gen_gemm1(g):
    if os.environ.get('PRIO'): g("s_setprio 2")
    g(f"""
    s_load_dwordx2 s[4:5], s[0:1], 88
    s_load_dwordx2 s[6:7], s[0:1], 0
    s_load_dwordx2 s[36:37], s[0:1], 80
    s_lshr_b32 s25, s2, 3
    s_mul_i32 s26, s25, 37
    s_lshr_b32 s26, s26, 8
    s_mul_i32 s27, s26, 7
    s_sub_u32 s25, s25, s27
    s_and_b32 s24, s2, 6
    s_lshl_b32 s24, s24, 1
    s_add_u32 s24, s24, s26
    s_and_b32 s27, s2, 1
    s_mul_i32 s27, s27, 7
    s_add_u32 s25, s25, s27
    """)
    g(f"""
    v_lshrrev_b32 v3, 4, v1
    v_and_b32 v4, 15, v1
    v_lshlrev_b32 v5, 2, v3
    v_xor_b32 v4, v4, v5
    v_lshlrev_b32 v4, 4, v4
    s_lshl_b32 s26, s3, 2
    v_add_u32 v3, s26, v3
    v_mul_u32_u24 v3, 3584, v3
    v_add_u32 v3, v3, v4
    s_lshl_b32 s26, s25, 8
    """)
    if os.environ.get('E1'): g("s_mov_b32 s26, 0")
    g(f"""
    v_add_u32 v8, s26, v3
    v_lshrrev_b32 v3, 2, v1
    v_and_b32 v4, 3, v1
    v_lshrrev_b32 v5, 2, v3
    v_xor_b32 v4, v4, v5
    v_lshlrev_b32 v4, 4, v4
    s_lshl_b32 s26, s3, 4
    v_add_u32 v3, s26, v3
    v_lshlrev_b32 v3, 10, v3
    v_add_u32 v3, v3, v4
    s_lshl_b32 s26, s24, 17
    """)
    if os.environ.get('E1'): g("s_mov_b32 s26, 0")
    g(f"""
    v_add_u32 v9, s26, v3
    s_lshl_b32 s28, s3, 10
    s_waitcnt lgkmcnt(0)
    """)
    g.srd(8, 36, 512*3584)
    g.srd(12, 6, 2048*1024)
    g.srd(16, 22, 2048*3584, WS_ACT)
    g.stamp(1)
    g(f"""
    s_lshl_b32 s26, s25, 8
    v_and_b32 v24, 127, v0
    v_lshlrev_b32 v24, 1, v24
    v_add_u32 v24, s26, v24
    s_cmp_ge_u32 s3, 2
    s_cbranch_scc1 G1_NOB
    global_load_ushort v60, v24, s[4:5]
    """)
    g.label("G1_NOB")
    def issue(k):
        buf = (k % NST) * 16384
        g(f"""
        s_mov_b32 s30, {32*3584*k}
        s_mov_b32 s31, {64*k}
        s_add_u32 m0, s28, {buf}
        s_nop 0
        buffer_load_dwordx4 v8, s[8:11], s30 offen lds
        s_add_u32 m0, s28, {buf + 8192}
        s_nop 0
        buffer_load_dwordx4 v9, s[12:15], s31 offen lds
        """)
    for k in range(NST):
        issue(k)
    g(f"""
    v_lshrrev_b32 v3, 4, v1
    v_and_b32 v4, 15, v1
    v_lshrrev_b32 v5, 2, v4
    v_lshrrev_b32 v6, 1, v3
    v_lshlrev_b32 v6, 3, v6
    v_add_u32 v6, v6, v5
    v_lshlrev_b32 v6, 8, v6
    v_and_b32 v7, 1, v4
    v_lshlrev_b32 v7, 3, v7
    v_add_u32 v6, v6, v7
    v_and_b32 v7, 1, v3
    v_lshlrev_b32 v7, 1, v7
    v_bfe_u32 v10, v4, 1, 1
    v_add_u32 v7, v7, v10
    s_and_b32 s29, s3, 1
    s_lshl_b32 s29, s29, 3
    v_add_u32 v7, s29, v7
    v_lshlrev_b32 v5, 2, v5
    v_xor_b32 v10, v7, v5
    v_lshlrev_b32 v10, 4, v10
    v_add_u32 v16, v6, v10
    v_add_u32 v7, 4, v7
    v_xor_b32 v10, v7, v5
    v_lshlrev_b32 v10, 4, v10
    v_add_u32 v17, v6, v10
    v_and_b32 v3, 31, v1
    v_lshrrev_b32 v4, 5, v1
    v_lshrrev_b32 v5, 2, v3
    v_and_b32 v5, 3, v5
    v_lshlrev_b32 v6, 6, v3
    s_lshr_b32 s30, s3, 1
    s_lshl_b32 s30, s30, 11
    s_add_u32 s30, s30, 8192
    v_add_u32 v6, s30, v6
    v_xor_b32 v7, v4, v5
    v_lshlrev_b32 v7, 4, v7
    v_add_u32 v18, v6, v7
    v_add_u32 v7, 2, v4
    v_xor_b32 v7, v7, v5
    v_lshlrev_b32 v7, 4, v7
    v_add_u32 v19, v6, v7
    """)
    A0 = 64
    for i in range(32):
        g(f"v_mov_b32 v{A0+i}, 0")
    for i in range(4):
        g(f"v_add_u32 v{11+i}, 0x10000, v{16+i}")
    FS = [96, 26]
    def rd(k, kk):
        buf = (k % NST) * 16384
        F = FS[k & 1]
        vb = 16
        if buf >= 65536:
            buf -= 65536; vb = 11
        f = F + 12*kk
        for mt in range(2):
            g(f"ds_read_b64_tr_b16 v[{f+4*mt}:{f+4*mt+1}], v{vb+mt} offset:{buf+4096*kk}")
            g(f"ds_read_b64_tr_b16 v[{f+4*mt+2}:{f+4*mt+3}], v{vb+mt} offset:{buf+4096*kk+1024}")
        g(f"ds_read_b128 v[{f+8}:{f+11}], v{vb+2+kk} offset:{buf}")
    g(f"""
    v_mov_b32 v58, 0
    v_mov_b32 v59, 0
    s_mov_b32 s33, 0x3f803f80
    s_lshr_b32 s34, s3, 1
    s_add_u32 s44, s22, {WS_ST}
    s_addc_u32 s45, s23, 0
    s_lshl_b32 s26, s24, 7
    s_lshl_b32 s27, s34, 5
    s_add_u32 s26, s26, s27
    v_add_u32 v22, s26, v3
    v_lshlrev_b32 v22, 3, v22
    s_lshl_b32 s40, s24, 2
    s_waitcnt vmcnt({2*(NST-1)})
    s_barrier
    """)
    g.stamp(2)
    rd(0, 0); rd(0, 1)
    for k in range(16):
        F = FS[k & 1]
        def mf(kk, mt):
            f = F + 12*kk
            a = A0 + 16*mt
            g(f"v_mfma_f32_32x32x16_bf16 v[{a}:{a+15}], v[{f+4*mt}:{f+4*mt+3}], v[{f+8}:{f+11}], v[{a}:{a+15}]")
        if k < 15:
            younger = 2*(min(k+NST-1, 15) - (k+1))
            if k > 11: younger += 1
            g(f"s_waitcnt vmcnt({younger}) lgkmcnt(0)")
            g("s_barrier")
            if k < 3: g.stamp(3+k)
            if k == 8: g.stamp(7)
            mf(0, 0)
            rd(k+1, 0)
            mf(0, 1)
            rd(k+1, 1)
            mf(1, 0)
            if k + NST < 16 and not os.environ.get('E2'):
                issue(k + NST)
            mf(1, 1)
        else:
            g("s_waitcnt lgkmcnt(0)")
            mf(0, 0); mf(0, 1); mf(1, 0); mf(1, 1)
        if k == 10 and not os.environ.get('E3'):
            g("s_cmp_lg_u32 s3, 0\ns_cbranch_scc1 G1_NOPOLL")
            poll_flags(g, "g1a", 40, 1, 20, 21)
            g.label("G1_NOPOLL")
        if k == 11:
            g("global_load_dwordx2 v[20:21], v22, s[44:45] sc1")
        g(f"s_cmp_lg_u32 s34, {k & 3}\ns_cbranch_scc1 G1_NOCS{k}")
        for kk in range(2):
            f = F + 12*kk
            for mt in range(2):
                for j in range(4):
                    g(f"v_dot2_f32_bf16 v{58+mt}, v{f+4*mt+j}, s33, v{58+mt}")
        g.label(f"G1_NOCS{k}")
    g.stamp(6)
    g(f"""
    s_barrier
    v_lshlrev_b32 v5, 2, v3
    v_lshlrev_b32 v6, 9, v4
    v_add_u32 v5, v5, v6
    s_lshl_b32 s26, s34, 10
    s_and_b32 s27, s3, 1
    s_lshl_b32 s27, s27, 8
    s_add_u32 s26, s26, s27
    v_add_u32 v5, s26, v5
    ds_write_b32 v5, v58
    ds_write_b32 v5, v59 offset:128
    v_lshlrev_b32 v6, 2, v0
    v_and_b32 v6, 511, v6
    s_waitcnt lgkmcnt(0)
    s_barrier
    """)
    g("s_cmp_ge_u32 s3, 2\ns_cbranch_scc1 G1_NOSUM")
    for p in range(8):
        g(f"ds_read_b32 v{96+p}, v6 offset:{512*p}")
    g(f"""
    s_waitcnt lgkmcnt(0)
    v_add_f32 v96, v96, v97
    v_add_f32 v98, v98, v99
    v_add_f32 v100, v100, v101
    v_add_f32 v102, v102, v103
    v_add_f32 v96, v96, v98
    v_add_f32 v100, v100, v102
    v_add_f32 v96, v96, v100
    v_lshlrev_b32 v60, 16, v60
    ds_write_b32 v6, v96 offset:4096
    ds_write_b32 v6, v60 offset:4608
    """)
    g.label("G1_NOSUM")
    g(f"""
    v_lshlrev_b32 v25, 4, v4
    v_add_u32 v25, s27, v25
    s_lshl_b32 s26, s24, 3
    s_lshr_b32 s27, s3, 1
    s_lshl_b32 s27, s27, 1
    s_add_u32 s26, s26, s27
    v_lshrrev_b32 v5, 4, v3
    v_add_u32 v5, s26, v5
    v_mul_u32_u24 v5, {56*1024}, v5
    v_and_b32 v6, 15, v3
    v_lshlrev_b32 v6, 4, v6
    v_add_u32 v5, v5, v6
    v_lshlrev_b32 v6, 8, v4
    v_add_u32 v5, v5, v6
    s_lshl_b32 s26, s25, 2
    s_and_b32 s27, s3, 1
    s_lshl_b32 s27, s27, 1
    s_add_u32 s26, s26, s27
    s_lshl_b32 s26, s26, 10
    s_mov_b32 s27, {fhex(LOG2E)}
    s_mov_b32 s32, {fhex(20.0)}
    s_waitcnt lgkmcnt(0)
    s_barrier
    """)
    for mt in range(2):
        for gi in range(4):
            g(f"ds_read_b128 v[{96+16*mt+4*gi}:{99+16*mt+4*gi}], v25 offset:{4096+128*mt+32*gi}")
    for gi in range(4):
        g(f"ds_read_b128 v[{26+4*gi}:{29+4*gi}], v25 offset:{4608+32*gi}")
    g("s_waitcnt vmcnt(0) lgkmcnt(0)")
    g.stamp(8)
    T = 42
    for mt in range(2):
        a = A0 + 16*mt
        if mt == 1:
            for gi in range(4):
                g(f"ds_read_b128 v[{26+4*gi}:{29+4*gi}], v25 offset:{4608+128+32*gi}")
            g("s_waitcnt lgkmcnt(0)")
        for half in range(2):
            R = [a + 8*half + i for i in range(8)]
            CSv = [96 + 16*mt + 8*half + i for i in range(8)]
            Bv = [26 + 8*half + i for i in range(8)]
            for j in range(8):
                g(f"v_fma_f32 v{CSv[j]}, -v20, v{CSv[j]}, v{Bv[j]}")
            for j in range(8):
                g(f"v_fma_f32 v{R[j]}, v{R[j]}, v21, v{CSv[j]}")
            for j in range(4):
                g(f"v_cvt_pk_bf16_f32 v{T+j}, v{R[2*j]}, v{R[2*j+1]}")
            for j in range(4):
                g(f"v_lshlrev_b32 v{R[2*j]}, 16, v{T+j}")
                g(f"v_and_b32 v{R[2*j+1]}, 0xffff0000, v{T+j}")
            for j in range(8):
                g(f"v_mul_f32 v{T+j}, s27, v{R[j]}")
            for j in range(8):
                g(f"v_exp_f32 v{T+j}, v{T+j}")
            for j in range(8):
                g(f"v_add_f32 v{T+8+j}, 2.0, v{T+j}")
            for j in range(8):
                g(f"v_fma_f32 v{T+j}, v{T+j}, v{T+8+j}, 2.0")
            for j in range(8):
                g(f"v_rcp_f32 v{T+j}, v{T+j}")
            for j in range(8):
                g(f"v_fma_f32 v{T+j}, -2.0, v{T+j}, 1.0")
            for j in range(8):
                g(f"v_mul_f32 v{T+j}, v{T+j}, v{R[j]}")
            for j in range(4):
                g(f"v_cvt_pk_bf16_f32 v{R[j]}, v{T+2*j}, v{T+2*j+1}")
            g(f"""
            s_nop 1
            v_permlane32_swap_b32 v{R[0]}, v{R[2]}
            v_permlane32_swap_b32 v{R[1]}, v{R[3]}
            s_nop 0
            buffer_store_dwordx4 v[{R[0]}:{R[3]}], v5, s[16:19], s26 offen offset:{1024*mt+512*half} {os.environ.get('ACTF','')}
            """)
    g.stamp(9)
    g.stamp_end(10, "g1")
    g("s_endpgm")

KB_NG = 256
KB_NC = 256
KB_TOTAL = KB_NG + KB_NC
KB_LDS = 81920
CV_COPY = 8*KR_PITCH
CV_U = 95*80
CV_D = CV_COPY + CV_U

def gen_kb(g):
    kernel_begin(g, "b_kernel")
    g(f"""
    s_cmp_ge_u32 s2, {KB_TOTAL}
    s_cbranch_scc1 KB_END
    s_load_dwordx4 s[20:23], s[0:1], 112
    v_and_b32 v1, 63, v0
    v_lshrrev_b32 v2, 6, v0
    s_nop 0
    v_readfirstlane_b32 s3, v2
    s_mov_b32 s95, s2
    s_mov_b32 s94, s3
    s_cmp_ge_u32 s2, {KB_NC}
    s_cbranch_scc1 KB_G2
    """)
    if os.environ.get('NOCV'):
        g("""
        s_waitcnt lgkmcnt(0)
        s_cmp_lg_u32 s3, 0
        s_cbranch_scc1 KB_END
        v_mov_b32 v12, s2
        v_mov_b32 v13, 1
        v_cmp_eq_u32 vcc, 0, v1
        s_and_saveexec_b64 s[30:31], vcc
        global_store_byte v12, v13, s[20:21] sc1
        s_endpgm
        """)
    gen_conv(g)
    g.label("KB_G2")
    if os.environ.get('NOG2'): g("s_endpgm")
    g(f"s_sub_u32 s2, s2, {KB_NC}")
    gen_gemm2(g)
    g.label("KB_END")
    g("s_endpgm")

def gen_conv(g):
    if os.environ.get('PRIO'): g("s_setprio 2")
    g(f"""
    s_load_dwordx4 s[4:7], s[0:1], 56
    s_min_u32 s36, s3, 5
    s_lshl_b32 s36, s36, 3
    s_add_u32 s36, s36, 8
    s_load_dwordx2 s[8:9], s[0:1], s36
    s_lshr_b32 s24, s3, 2
    s_lshl_b32 s25, s2, 1
    s_add_u32 s25, s25, s24
    s_and_b32 s26, s3, 3
    s_mul_i32 s27, s24, {CV_D}
    v_and_b32 v3, 255, v0
    s_lshl_b32 s28, s2, 2
    s_lshl_b32 s36, s2, 9
    v_and_b32 v5, 31, v1
    v_lshlrev_b32 v5, 4, v5
    v_add_u32 v6, s36, v5
    s_waitcnt lgkmcnt(0)
    s_load_dword s35, s[4:5], s28
    s_load_dword s36, s[6:7], s28
    global_load_dwordx4 v[52:55], v6, s[8:9]
    """)
    g.stamp(1)
    g.srd(12, 22, 2048*1024, WS_XT)
    g.srd(16, 22, 2048*1024, WS_AT)
    g(f"""
    v_lshrrev_b32 v7, 2, v3
    v_lshlrev_b32 v7, 15, v7
    v_and_b32 v8, 3, v3
    v_lshlrev_b32 v8, 4, v8
    v_add_u32 v7, v7, v8
    s_lshl_b32 s29, s25, 6
    buffer_load_dwordx4 v[108:111], v7, s[12:15], s29 offen
    s_min_u32 s37, s3, 5
    s_lshl_b32 s37, s37, 9
    s_add_u32 s37, s37, {L_P}
    v_add_u32 v56, s37, v5
    """)
    gen_kgen_setup(g)
    g(f"""
    s_waitcnt vmcnt(1)
    ds_write_b128 v56, v[52:55]
    v_lshlrev_b32 v12, 1, v1
    s_lshl_b32 s28, s31, 7
    s_add_u32 s28, s28, {L_P}
    v_add_u32 v12, s28, v12
    s_waitcnt lgkmcnt(0)
    s_barrier
    """)
    for dd in range(2):
        for i in range(6):
            g(f"ds_read_u16 v{52+8*dd+i}, v12 offset:{512*i+256*dd}")
    g(f"""
    s_and_b32 s28, s35, 0xffff
    s_lshr_b32 s29, s35, 16
    v_mov_b32 v58, s28
    v_mov_b32 v66, s29
    s_waitcnt lgkmcnt(0)
    """)
    g.stamp(2)
    gen_kgen(g, 0)
    gen_kgen(g, 1)
    g("s_waitcnt lgkmcnt(0)\ns_barrier")
    g.stamp(3)
    for dd in range(2):
        for j in range(4):
            g(f"ds_read_b32 v{20+8*dd+j}, v{16+j} offset:{L_T+8192*dd}")
            g(f"ds_read_b32 v{24+8*dd+j}, v{16+j} offset:{L_T+8192*dd+4096}")
    g(f"""
    v_lshlrev_b32 v12, 3, v0
    v_add_u32 v12, {L_R}, v12
    v_mov_b32 v40, 0
    v_mov_b32 v41, 0
    v_mov_b32 v42, 0
    v_mov_b32 v43, 0
    v_lshlrev_b32 v4, 4, v3
    s_mul_i32 s28, s24, {KR_PITCH}
    s_add_u32 s28, s28, {L_R}
    v_add_u32 v13, s28, v4
    s_waitcnt lgkmcnt(0)
    """)
    for dd in range(2):
        for j in range(4):
            g(f"v_add_f32 v{20+8*dd+j}, v{20+8*dd+j}, v{24+8*dd+j}")
        for j in range(4):
            g(f"v_mul_f32 v{20+8*dd+j}, v{20+8*dd+j}, v{106+dd}")
        g(f"v_cvt_pk_f16_f32 v{36+2*dd}, v{20+8*dd}, v{21+8*dd}")
        g(f"v_cvt_pk_f16_f32 v{37+2*dd}, v{22+8*dd}, v{23+8*dd}")
        g(f"ds_write_b64 v12, v[{36+2*dd}:{37+2*dd}] offset:{KR_PITCH*dd}")
    g(f"""
    v_cmp_gt_u32 vcc, 8, v0
    s_and_saveexec_b64 s[30:31], vcc
    ds_write_b64 v12, v[40:41] offset:4096
    ds_write_b64 v12, v[40:41] offset:{KR_PITCH+4096}
    s_mov_b64 exec, s[30:31]
    s_waitcnt lgkmcnt(0)
    s_barrier
    ds_read_b128 v[64:67], v13
    ds_read_b128 v[68:71], v13 offset:16
    v_lshrrev_b32 v5, 2, v3
    v_and_b32 v6, 3, v3
    v_lshlrev_b32 v6, 4, v6
    v_mul_u32_u24 v5, {KR_PITCH}, v5
    v_add_u32 v5, v5, v6
    v_add_u32 v5, 4096, v5
    v_add_u32 v5, s27, v5
    v_add_u32 v6, s27, v4
    v_lshrrev_b32 v24, 2, v3
    v_and_b32 v25, 3, v3
    v_mul_u32_u24 v24, 80, v24
    v_lshlrev_b32 v25, 4, v25
    v_add_u32 v24, v24, v25
    v_add_u32 v24, s27, v24
    s_waitcnt lgkmcnt(0)
    s_barrier
    v_cmp_gt_u32 vcc, 155, v3
    s_and_saveexec_b64 s[30:31], vcc
    ds_write_b128 v6, v[40:43] offset:{CV_COPY}
    s_mov_b64 exec, s[30:31]
    v_cmp_gt_u32 vcc, 32, v3
    s_and_saveexec_b64 s[30:31], vcc
    ds_write_b128 v5, v[40:43]
    s_mov_b64 exec, s[30:31]
    ds_write_b128 v6, v[64:67]
    ds_write_b128 v6, v[66:69] offset:{4*KR_PITCH}
    """)
    for j in range(1, 7):
        g(f"v_mov_b32 v{73+j}, v{64+j}")
    for j in range(7):
        g(f"v_alignbit_b32 v{80+j}, v{65+j}, v{64+j}, 16")
    for j in range(1, 7):
        g(f"v_alignbit_b32 v{87+j}, v{65+j}, v{64+j}, 16")
    g(f"""
    ds_write_b128 v6, v[74:77] offset:{2*KR_PITCH}
    ds_write_b128 v6, v[76:79] offset:{6*KR_PITCH}
    ds_write_b128 v6, v[80:83] offset:{1*KR_PITCH}
    ds_write_b128 v6, v[82:85] offset:{5*KR_PITCH}
    ds_write_b128 v6, v[88:91] offset:{3*KR_PITCH}
    ds_write_b128 v6, v[90:93] offset:{7*KR_PITCH}
    s_waitcnt vmcnt(0)
    ds_write_b128 v24, v[108:111] offset:{CV_COPY+31*80}
    s_lshr_b32 s30, s36, 16
    s_and_b32 s31, s36, 0xffff
    s_cmp_eq_u32 s24, 0
    s_cselect_b32 s36, s31, s30
    v_mov_b32 v60, s36
    s_cselect_b64 vcc, -1, 0
    v_cndmask_b32 v61, v105, v104, vcc
    """)
    g(f"""
    v_and_b32 v3, 31, v1
    v_lshrrev_b32 v4, 5, v1
    v_and_b32 v5, 7, v3
    v_sub_u32 v5, 7, v5
    v_mul_u32_u24 v5, {KR_PITCH}, v5
    v_lshrrev_b32 v6, 3, v3
    v_sub_u32 v6, v4, v6
    v_lshlrev_b32 v6, 4, v6
    v_add_u32 v5, v5, v6
    s_lshl_b32 s28, s26, 9
    s_sub_u32 s28, {4080 - 64*39}, s28
    s_add_u32 s28, s28, s27
    v_add_u32 v5, s28, v5
    v_mul_u32_u24 v6, 80, v3
    v_lshlrev_b32 v7, 4, v4
    v_add_u32 v6, v6, v7
    s_mul_i32 s28, s26, {8*80}
    s_sub_u32 s28, {CV_COPY + 24*80}, s28
    s_add_u32 s28, s28, s27
    v_add_u32 v6, s28, v6
    """)
    for i in range(32):
        g(f"v_mov_b32 v{24+i}, 0")
    g("s_waitcnt lgkmcnt(0)\ns_barrier")
    g.stamp(4)
    AC = 24
    def rd(step):
        dl, kk = step >> 1, step & 1
        ao = (7-dl)*64 + 32*kk
        bo = (7-dl)*80 + 32*kk
        f = 64 + 16*(step % 3)
        g(f"ds_read_b128 v[{f}:{f+3}], v5 offset:{ao+2048}")
        g(f"ds_read_b128 v[{f+4}:{f+7}], v5 offset:{ao}")
        g(f"ds_read_b128 v[{f+8}:{f+11}], v6 offset:{bo}")
        g(f"ds_read_b128 v[{f+12}:{f+15}], v6 offset:{bo+2560}")
    rd(0); rd(1)
    for step in range(16):
        if step + 2 < 16:
            rd(step+2)
            g("s_waitcnt lgkmcnt(8)")
        elif step + 1 < 16:
            g("s_waitcnt lgkmcnt(4)")
        else:
            g("s_waitcnt lgkmcnt(0)")
        f = 64 + 16*(step % 3)
        g(f"v_mfma_f32_32x32x16_f16 v[{AC}:{AC+15}], v[{f}:{f+3}], v[{f+8}:{f+11}], v[{AC}:{AC+15}]")
        g(f"v_mfma_f32_32x32x16_f16 v[{AC+16}:{AC+31}], v[{f}:{f+3}], v[{f+12}:{f+15}], v[{AC+16}:{AC+31}]")
        g(f"v_mfma_f32_32x32x16_f16 v[{AC+16}:{AC+31}], v[{f+4}:{f+7}], v[{f+8}:{f+11}], v[{AC+16}:{AC+31}]")
    g.stamp(5)
    g(f"""
    s_barrier
    v_lshlrev_b32 v7, 4, v1
    s_lshl_b32 s28, s26, 13
    s_add_u32 s28, s28, s27
    v_add_u32 v8, s28, v7
    s_lshl_b32 s29, s26, 11
    s_add_u32 s29, s29, s27
    v_add_u32 v9, s29, v7
    v_mul_u32_u24 v10, 80, v3
    v_lshlrev_b32 v11, 3, v4
    v_add_u32 v10, v10, v11
    s_lshr_b32 s28, s26, 1
    s_mul_i32 s28, s28, 2560
    s_and_b32 s29, s26, 1
    s_lshl_b32 s29, s29, 5
    s_add_u32 s28, s28, s29
    s_add_u32 s28, s28, {CV_COPY + 31*80}
    s_add_u32 s28, s28, s27
    v_add_u32 v10, s28, v10
    s_nop 4
    """)
    for i in range(8):
        g(f"ds_write_b128 v8, v[{AC+4*i}:{AC+4*i+3}] offset:{1024*i}")
    g("ds_read_b64 v[12:13], v10\nds_read_b64 v[14:15], v10 offset:16")
    g.stamp(7)
    g("s_waitcnt lgkmcnt(0)\ns_barrier")
    g.stamp(8)
    for w in range(4):
        g(f"ds_read_b128 v[{64+8*w}:{67+8*w}], v9 offset:{8192*w}")
        g(f"ds_read_b128 v[{68+8*w}:{71+8*w}], v9 offset:{8192*w+1024}")
    g(f"""
    v_lshlrev_b32 v60, 16, v60
    v_lshlrev_b32 v16, 6, v3
    v_lshlrev_b32 v17, 4, v4
    v_add_u32 v16, v16, v17
    s_lshr_b32 s28, s26, 1
    s_lshl_b32 s28, s28, 11
    s_and_b32 s29, s26, 1
    s_lshl_b32 s29, s29, 5
    s_add_u32 s28, s28, s29
    s_lshl_b32 s29, s25, 12
    s_add_u32 s28, s28, s29
    v_cvt_f32_f16 v24, v12
    v_cvt_f32_f16_sdwa v25, v12 dst_sel:DWORD dst_unused:UNUSED_PAD src0_sel:WORD_1
    v_cvt_f32_f16 v26, v13
    v_cvt_f32_f16_sdwa v27, v13 dst_sel:DWORD dst_unused:UNUSED_PAD src0_sel:WORD_1
    v_cvt_f32_f16 v28, v14
    v_cvt_f32_f16_sdwa v29, v14 dst_sel:DWORD dst_unused:UNUSED_PAD src0_sel:WORD_1
    v_cvt_f32_f16 v30, v15
    v_cvt_f32_f16_sdwa v31, v15 dst_sel:DWORD dst_unused:UNUSED_PAD src0_sel:WORD_1
    """)
    for i in range(8):
        g(f"v_mul_f32 v{24+i}, v{24+i}, v60")
    for j in range(4):
        g(f"v_cvt_pk_bf16_f32 v{32+j}, v{24+2*j}, v{24+2*j+1}")
    for j in range(4):
        g(f"v_lshlrev_b32 v{24+2*j}, 16, v{32+j}")
        g(f"v_and_b32 v{24+2*j+1}, 0xffff0000, v{32+j}")
    g("s_waitcnt lgkmcnt(0)")
    for i in range(8):
        g(f"v_add_f32 v{64+i}, v{64+i}, v{72+i}")
        g(f"v_add_f32 v{80+i}, v{80+i}, v{88+i}")
    for i in range(8):
        g(f"v_add_f32 v{64+i}, v{64+i}, v{80+i}")
    for i in range(8):
        g(f"v_mul_f32 v{64+i}, v{64+i}, v61")
    for j in range(4):
        g(f"v_cvt_pk_bf16_f32 v{32+j}, v{64+2*j}, v{64+2*j+1}")
    for j in range(4):
        g(f"v_lshlrev_b32 v{64+2*j}, 16, v{32+j}")
        g(f"v_and_b32 v{64+2*j+1}, 0xffff0000, v{32+j}")
    for i in range(8):
        g(f"v_add_f32 v{64+i}, v{64+i}, v{24+i}")
    for j in range(4):
        g(f"v_cvt_pk_bf16_f32 v{32+j}, v{64+2*j}, v{64+2*j+1}")
    g(f"""
    s_nop 1
    v_permlane32_swap_b32 v32, v34
    v_permlane32_swap_b32 v33, v35
    s_nop 0
    buffer_store_dwordx4 v[32:35], v16, s[16:19], s28 offen sc1
    """)
    g.stamp(9)
    g(f"""
    s_waitcnt vmcnt(0)
    """)
    g.stamp(10)
    g(f"""
    s_barrier
    s_cmp_lg_u32 s3, 0
    s_cbranch_scc1 CV_NOSIG
    v_mov_b32 v12, s2
    v_mov_b32 v13, 1
    v_cmp_eq_u32 vcc, 0, v1
    s_and_saveexec_b64 s[30:31], vcc
    global_store_byte v12, v13, s[20:21] sc1
    s_mov_b64 exec, s[30:31]
    """)
    g.label("CV_NOSIG")
    g.stamp(6)
    g.stamp_end(11, "cv")
    g("s_endpgm")

def gen_gemm2(g):
    g(f"""
    s_load_dwordx2 s[4:5], s[0:1], 0
    s_load_dwordx2 s[6:7], s[0:1], 104
    s_and_b32 s25, s2, 6
    s_lshl_b32 s25, s25, 2
    s_lshr_b32 s24, s2, 3
    s_lshr_b32 s26, s24, 2
    s_add_u32 s25, s25, s26
    s_and_b32 s24, s24, 3
    s_and_b32 s26, s2, 1
    s_lshl_b32 s26, s26, 2
    s_add_u32 s24, s24, s26
    s_mul_i32 s36, s3, {7*1024}
    v_lshlrev_b32 v5, 4, v1
    v_add_u32 v8, s36, v5
    v_add_u32 v9, 4096, v8
    s_mul_i32 s40, s24, {4*56*1024}
    s_add_u32 s41, s40, {56*1024}
    s_add_u32 s42, s40, {2*56*1024}
    s_add_u32 s43, s40, {3*56*1024}
    s_mul_i32 s44, s25, {4*56*1024}
    s_add_u32 s45, s44, {56*1024}
    s_add_u32 s46, s44, {2*56*1024}
    s_add_u32 s47, s44, {3*56*1024}
    s_waitcnt lgkmcnt(0)
    """)
    g.srd(8, 22, 512*3584, WS_W2F)
    g.srd(12, 22, 2048*3584, WS_ACT)
    g.srd(16, 22, 2048*1024, WS_AT)
    g.srd(28, 4, 2048*1024)
    g.srd(32, 6, 2048*1024)
    g.stamp(1)
    AC = 16
    AR = [80, 96]
    BR = 112
    def ldA(st):
        fb = AR[st & 1]; va = 8 + (st >> 2)
        for i in range(4):
            g(f"buffer_load_dwordx4 v[{fb+4*i}:{fb+4*i+3}], v{va}, s[8:11], s{40+i} offen offset:{1024*(st&3)}")
    def ldB(st, j):
        va = 8 + (st >> 2)
        g(f"buffer_load_dwordx4 v[{BR+4*j}:{BR+4*j+3}], v{va}, s[12:15], s{44+j} offen offset:{1024*(st&3)}")
    ldA(0)
    for j in range(4): ldB(0, j)
    ldA(1)
    for i in range(64):
        g(f"v_mov_b32 v{AC+i}, 0")
    order = ['A0']*1
    seq = [('A',0)]*4 + [('B',0,j) for j in range(4)] + [('A',1)]*4
    for st in range(7):
        for j in range(4):
            last = max(i for i, e in enumerate(seq) if (e[0]=='A' and e[1]==st) or (e[0]=='B' and e[1]==st and e[2]==j))
            g(f"s_waitcnt vmcnt({len(seq)-1-last})")
            if st == 0 and j == 0: g.stamp(2)
            fa = AR[st & 1]
            for i in range(4):
                a = AC + 4*(4*i+j)
                g(f"v_mfma_f32_16x16x32_bf16 v[{a}:{a+3}], v[{fa+4*i}:{fa+4*i+3}], v[{BR+4*j}:{BR+4*j+3}], v[{a}:{a+3}]")
            if st + 1 < 7:
                ldB(st+1, j); seq.append(('B', st+1, j))
        if st + 2 < 7:
            ldA(st+2); seq += [('A', st+2)]*4
    g.stamp(5)
    g(f"""
    v_and_b32 v3, 15, v1
    v_lshrrev_b32 v4, 4, v1
    s_lshl_b32 s37, s25, 6
    s_lshr_b32 s38, s3, 1
    s_lshl_b32 s38, s38, 4
    s_add_u32 s37, s37, s38
    v_add_u32 v12, s37, v3
    v_lshlrev_b32 v13, 10, v12
    v_lshlrev_b32 v14, 3, v4
    v_add_u32 v13, v13, v14
    s_lshl_b32 s38, s24, 7
    s_and_b32 s39, s3, 1
    s_lshl_b32 s48, s39, 6
    s_add_u32 s38, s38, s48
    v_add_u32 v13, s38, v13
    v_lshlrev_b32 v14, 14, v4
    v_lshlrev_b32 v12, 1, v12
    v_add_u32 v14, v14, v12
    s_lshl_b32 s38, s24, 18
    s_lshl_b32 s48, s39, 17
    s_add_u32 s38, s38, s48
    v_add_u32 v14, s38, v14
    v_add_u32 v10, 4096, v14
    v_add_u32 v11, 8192, v14
    v_add_u32 v12, 12288, v14
    buffer_load_dwordx2 v[112:113], v13, s[28:31], 0 offen
    buffer_load_dwordx2 v[114:115], v13, s[28:31], 0 offen offset:32
    s_and_b32 s36, s3, 3
    s_lshl_b32 s36, s36, 14
    v_add_u32 v6, s36, v5
    s_lshl_b32 s48, s24, 5
    s_cmp_lt_u32 s3, 4
    s_cbranch_scc1 G2_LOW1
    """)
    for t in range(16):
        g(f"ds_write_b128 v6, v[{AC+4*t}:{AC+4*t+3}] offset:{t*1024}")
    g("s_branch G2_J1")
    g.label("G2_LOW1")
    g("s_cmp_lg_u32 s3, 0\ns_cbranch_scc1 G2_J1")
    poll_flags(g, "g2", 48, 8, 2, 15)
    g.label("G2_J1")
    g("s_waitcnt lgkmcnt(0)\ns_barrier")
    g.stamp(6)
    g("s_mov_b32 s39, 65536")
    for i in range(2):
        for r in range(4):
            va = [14, 10, 11, 12][r]
            g(f"buffer_load_ushort v{116+4*i+r}, v{va}, s[16:19], {'0' if i == 0 else 's39'} offen sc1")
    g("s_cmp_ge_u32 s3, 4\ns_cbranch_scc1 G2_J2")
    for h in range(2):
        for t in range(8):
            g(f"ds_read_b128 v[{80+4*t}:{83+4*t}], v6 offset:{(8*h+t)*1024}")
        g("s_waitcnt lgkmcnt(0)")
        for t in range(8):
            for r in range(4):
                g(f"v_add_f32 v{AC+32*h+4*t+r}, v{AC+32*h+4*t+r}, v{80+4*t+r}")
    for t in range(16):
        g(f"ds_write_b128 v6, v[{AC+4*t}:{AC+4*t+3}] offset:{t*1024}")
    g.label("G2_J2")
    g(f"""
    s_and_b32 s37, s3, 1
    s_lshl_b32 s37, s37, 13
    s_lshr_b32 s38, s3, 1
    s_lshl_b32 s38, s38, 10
    s_add_u32 s37, s37, s38
    v_add_u32 v7, s37, v5
    s_waitcnt lgkmcnt(0)
    s_barrier
    """)
    for i in range(2):
        for w in range(4):
            g(f"ds_read_b128 v[{16+16*i+4*w}:{19+16*i+4*w}], v7 offset:{w*16384+i*4096}")
    g("s_waitcnt lgkmcnt(0)")
    for i in range(2):
        for r in range(4):
            b = 16+16*i+r
            g(f"v_add_f32 v{b}, v{b}, v{b+4}")
            g(f"v_add_f32 v{b+8}, v{b+8}, v{b+12}")
        for r in range(4):
            b = 16+16*i+r
            g(f"v_add_f32 v{b}, v{b}, v{b+8}")
    g.stamp(7)
    g("s_waitcnt vmcnt(0)")
    g.stamp(8)
    for i in range(2):
        b = 16+16*i
        g(f"""
        v_cvt_pk_bf16_f32 v{b+4}, v{b}, v{b+1}
        v_cvt_pk_bf16_f32 v{b+5}, v{b+2}, v{b+3}
        v_lshlrev_b32 v{b}, 16, v{b+4}
        v_and_b32 v{b+1}, 0xffff0000, v{b+4}
        v_lshlrev_b32 v{b+2}, 16, v{b+5}
        v_and_b32 v{b+3}, 0xffff0000, v{b+5}
        v_lshlrev_b32 v{b+4}, 16, v{112+2*i}
        v_and_b32 v{b+5}, 0xffff0000, v{112+2*i}
        v_lshlrev_b32 v{b+6}, 16, v{113+2*i}
        v_and_b32 v{b+7}, 0xffff0000, v{113+2*i}
        v_lshlrev_b32 v{b+8}, 16, v{116+4*i}
        v_lshlrev_b32 v{b+9}, 16, v{117+4*i}
        v_lshlrev_b32 v{b+10}, 16, v{118+4*i}
        v_lshlrev_b32 v{b+11}, 16, v{119+4*i}
        v_add_f32 v{b+4}, v{b+4}, v{b+8}
        v_add_f32 v{b+5}, v{b+5}, v{b+9}
        v_add_f32 v{b+6}, v{b+6}, v{b+10}
        v_add_f32 v{b+7}, v{b+7}, v{b+11}
        v_cvt_pk_bf16_f32 v{b+8}, v{b+4}, v{b+5}
        v_cvt_pk_bf16_f32 v{b+9}, v{b+6}, v{b+7}
        v_lshlrev_b32 v{b+4}, 16, v{b+8}
        v_and_b32 v{b+5}, 0xffff0000, v{b+8}
        v_lshlrev_b32 v{b+6}, 16, v{b+9}
        v_and_b32 v{b+7}, 0xffff0000, v{b+9}
        v_add_f32 v{b+4}, v{b+4}, v{b}
        v_add_f32 v{b+5}, v{b+5}, v{b+1}
        v_add_f32 v{b+6}, v{b+6}, v{b+2}
        v_add_f32 v{b+7}, v{b+7}, v{b+3}
        v_cvt_pk_bf16_f32 v{b+8}, v{b+4}, v{b+5}
        v_cvt_pk_bf16_f32 v{b+9}, v{b+6}, v{b+7}
        buffer_store_dwordx2 v[{b+8}:{b+9}], v13, s[32:35], 0 offen offset:{32*i}
        """)
    g.stamp(9)
    g.stamp_end(10, "g2")
    g("s_endpgm")

HEADER = open("parallel_sum__ssm_conv_s4__dense_activation_mish__prompt.s.ref").read().split("; Override launch")[0]

def build():
    g = G()
    g.raw(HEADER.rstrip("\n"))
    g.raw(f"; @launch kernel=a_kernel grid=({KA_TOTAL},1,1) block=(512,1,1) lds={KA_LDS}")
    g.raw(f"; @launch kernel=b_kernel grid=({KB_TOTAL},1,1) block=(512,1,1) lds={KB_LDS}")
    g.raw('.amdgcn_target "amdgcn-amd-amdhsa--gfx950"')
    g.raw(".text")
    gen_ka(g)
    gen_kb(g)
    g.raw('.section .rodata,"a"')
    g.raw(".p2align 6")
    g.raw(kernel_desc("a_kernel", 128))
    g.raw(".p2align 6")
    g.raw(kernel_desc("b_kernel", 128))
    return g.text()

if __name__ == "__main__":
    out = sys.argv[1] if len(sys.argv) > 1 else "parallel_sum__ssm_conv_s4__dense_activation_mish__prompt.s"
    open(out, "w").write(build())
    print("written", out)
```

```python
import sys, struct, os

def f2u(x): return struct.unpack('<I', struct.pack('<f', x))[0]
def fhex(x): return "0x%08x" % f2u(x)
LOG2E = 1.4426950408889634
INV2PI = 0.15915494309189535

WS_XN  = 0x000000
WS_XT  = 0x200000
WS_KR  = 0x400000
KR_PITCH = 4160
WS_KS  = 0x620000
WS_W1T = 0x640000
WS_W2F = 0x800000
WS_AT  = 0xA00000
WS_ACT = 0xC00000

class G:
    def __init__(self): self.L = []
    def __call__(self, s):
        for line in s.strip('\n').split('\n'):
            if line.strip(): self.L.append("    " + line.strip())
    def label(self, s): self.L.append(s + ":")
    def raw(self, s): self.L.append(s)
    def text(self): return "\n".join(self.L) + "\n"
    def srd(self, d, pb, nbytes, off=0):
        if off:
            self(f"s_add_u32 s{d}, s{pb}, {off}")
            self(f"s_addc_u32 s{d+1}, s{pb+1}, 0")
        else:
            self(f"s_mov_b32 s{d}, s{pb}")
            self(f"s_mov_b32 s{d+1}, s{pb+1}")
        self(f"s_mov_b32 s{d+2}, {nbytes}")
        self(f"s_mov_b32 s{d+3}, 0x00020000")

def kernel_begin(g, name):
    g.raw(f".globl {name}")
    g.raw(".p2align 8")
    g.raw(f".type {name},@function")
    g.label(name)

def kernel_desc(name, vgpr, sgpr=96):
    acc = (vgpr + 3)//4*4
    return f""".amdhsa_kernel {name}
  .amdhsa_next_free_vgpr {vgpr}
  .amdhsa_next_free_sgpr {sgpr}
  .amdhsa_accum_offset {acc}
  .amdhsa_group_segment_fixed_size 0
  .amdhsa_kernarg_size 128
  .amdhsa_user_sgpr_count 2
  .amdhsa_user_sgpr_kernarg_segment_ptr 1
  .amdhsa_system_sgpr_workgroup_id_x 1
.end_amdhsa_kernel
"""
DPP = ["quad_perm:[1,0,3,2]", "quad_perm:[2,3,0,1]", "row_half_mirror", "row_mirror",
       "row_bcast:15 row_mask:0xa", "row_bcast:31 row_mask:0xc"]

K0_NLN = 128
K0_NW = 224
K0_NKG = 512
K0_TOTAL = K0_NLN + K0_NW + K0_NKG
TP = 272
TCH = 96*TP
K0_LDS = 2*TCH + 64

def gen_k0(g):
    kernel_begin(g, "prep_kernel")
    g(f"""
    s_cmp_ge_u32 s2, {K0_TOTAL}
    s_cbranch_scc1 K0_END
    s_load_dwordx2 s[22:23], s[0:1], 120
    v_and_b32 v1, 63, v0
    v_lshrrev_b32 v2, 6, v0
    s_nop 0
    v_readfirstlane_b32 s3, v2
    s_cmp_ge_u32 s2, {K0_NLN}
    s_cbranch_scc1 K0_NOTLN
    """)
    if os.environ.get('NOLN'): g("s_endpgm")
    gen_ln(g)
    g.label("K0_NOTLN")
    g(f"""
    s_sub_u32 s2, s2, {K0_NLN}
    s_cmp_ge_u32 s2, {K0_NW}
    s_cbranch_scc1 K0_NOTW
    """)
    if os.environ.get('NOTR'): g("s_endpgm")
    gen_tr(g)
    g.label("K0_NOTW")
    g(f"s_sub_u32 s2, s2, {K0_NW}")
    if os.environ.get('NOKG'): g("s_endpgm")
    gen_kgen(g)
    g.label("K0_END")
    g("s_endpgm")

def gen_kgen(g):
    g(f"""
    s_load_dwordx8 s[8:15], s[0:1], 8
    s_load_dwordx4 s[16:19], s[0:1], 40
    s_load_dwordx2 s[20:21], s[0:1], 56
    s_lshr_b32 s31, s3, 2
    s_and_b32 s3, s3, 3
    s_lshl_b32 s4, s2, 8
    s_lshl_b32 s5, s31, 7
    s_add_u32 s4, s4, s5
    v_lshlrev_b32 v3, 1, v1
    v_add_u32 v3, s4, v3
    s_lshl_b32 s5, s2, 1
    v_mov_b32 v4, s5
    s_waitcnt lgkmcnt(0)
    global_load_ushort v5, v4, s[20:21]
    """)
    for i, sp in enumerate([8, 10, 12, 14, 16, 18]):
        g(f"global_load_ushort v{10+i}, v3, s[{sp}:{sp+1}]")
    g(f"""
    s_mov_b32 s24, 0
    s_mov_b32 s25, {fhex(16.0)}
    s_mov_b32 s26, 0
    s_mov_b32 s27, {fhex(1.0)}
    s_cmp_eq_u32 s3, 1
    s_cselect_b32 s24, {fhex(256.0)}, s24
    s_cselect_b32 s26, {fhex(8.0)}, s26
    s_cmp_eq_u32 s3, 2
    s_cselect_b32 s24, {fhex(512.0)}, s24
    s_cmp_eq_u32 s3, 3
    s_cselect_b32 s24, {fhex(1536.0)}, s24
    s_cselect_b32 s26, {fhex(32.0)}, s26
    s_cmp_ge_u32 s3, 2
    s_cselect_b32 s25, {fhex(64.0)}, s25
    s_cselect_b32 s27, {fhex(4.0)}, s27
    s_mul_i32 s32, s31, {TCH}
    s_mul_i32 s28, s3, {16*TP}
    s_add_u32 s28, s28, s32
    s_mul_i32 s29, s3, {8*TP}
    s_add_u32 s29, s29, {64*TP}
    s_add_u32 s29, s29, s32
    v_lshlrev_b32 v6, 2, v1
    v_add_u32 v7, s29, v6
    v_add_u32 v6, s28, v6
    v_and_b32 v8, 15, v1
    v_lshrrev_b32 v9, 4, v1
    v_mul_u32_u24 v8, {TP}, v8
    v_lshlrev_b32 v9, 4, v9
    v_add_u32 v8, v8, v9
    s_lshr_b32 s30, s3, 1
    s_mul_i32 s30, s30, {16*TP}
    s_add_u32 s30, s30, {64*TP}
    s_add_u32 s30, s30, s32
    v_add_u32 v9, s30, v8
    v_add_u32 v8, s28, v8
    v_mov_b32 v60, 0
    v_mov_b32 v61, 0
    v_mov_b32 v62, 0
    v_mov_b32 v63, 0
    s_waitcnt vmcnt(0)
    v_lshlrev_b32 v5, 16, v5
    v_mul_f32 v5, {fhex(LOG2E)}, v5
    v_exp_f32 v5, v5
    s_nop 0
    v_cvt_pk_bf16_f32 v5, v5, v5
    v_lshlrev_b32 v5, 16, v5
    """)
    def direct(sl, vare, vaim, vr, vi, t0, t1):
        g(f"""
        v_mul_f32 v{t0}, s{sl}, v{vare}
        v_mul_f32 v{t1}, s{sl}, v{vaim}
        v_exp_f32 v{t0}, v{t0}
        v_fract_f32 v{t1}, v{t1}
        v_cos_f32 v{vr}, v{t1}
        v_sin_f32 v{vi}, v{t1}
        s_nop 0
        v_mul_f32 v{vr}, v{t0}, v{vr}
        v_mul_f32 v{vi}, v{t0}, v{vi}
        """)
    def cmul(dr, di, ar, ai, br, bi):
        g(f"""
        v_mul_f32 v{dr}, v{ar}, v{br}
        v_mul_f32 v{di}, v{ar}, v{bi}
        v_fma_f32 v{dr}, -v{ai}, v{bi}, v{dr}
        v_fma_f32 v{di}, v{ai}, v{br}, v{di}
        """)
    def emit(zr, zi, vaddr, row, t):
        g(f"""
        v_cvt_pk_f16_f32 v{t}, v{zr}, v{zi}
        ds_write_b32 v{vaddr}, v{t} offset:{row*TP}
        """)
    b = 10
    for i in range(6):
        g(f"v_lshlrev_b32 v{b+i}, 16, v{b+i}")
    g(f"""
    v_mul_f32 v24, v5, v{b}
    v_mul_f32 v25, v5, v{b+1}
    v_mul_f32 v24, {fhex(LOG2E)}, v24
    v_mul_f32 v25, {fhex(INV2PI)}, v25
    v_sub_f32 v26, 0, v25
    v_mul_f32 v27, v5, v{b+2}
    v_mul_f32 v28, v5, v{b+3}
    """)
    cmul(29, 30, b+4, b+5, 27, 28)
    g(f"""
    v_max_f32 v31, abs(v29), abs(v30)
    v_max_f32 v31, {fhex(1e-30)}, v31
    s_nop 1
    """)
    for mod in DPP:
        g(f"v_max_f32_dpp v31, v31, v31 {mod}\ns_nop 1")
    g(f"""
    v_readlane_b32 s33, v31, 63
    s_nop 3
    v_mov_b32 v31, s33
    v_rcp_f32 v32, v31
    s_lshl_b32 s34, s31, 2
    s_add_u32 s34, s34, {2*TCH}
    v_mov_b32 v33, s34
    ds_write_b32 v33, v31
    v_mul_f32 v29, v29, v32
    v_mul_f32 v30, v30, v32
    v_sub_f32 v30, 0, v30
    """)
    direct(24, 24, 26, 32, 33, 40, 41)
    direct(25, 24, 26, 34, 35, 40, 41)
    cmul(36, 37, 29, 30, 32, 33)
    direct(26, 24, 25, 44, 45, 40, 41)
    direct(27, 24, 25, 46, 47, 40, 41)
    z = (36, 37); zn = (38, 39)
    y = (44, 45); yn = (48, 49)
    for k in range(16):
        emit(z[0], z[1], 6, k, 42 + (k & 1))
        if k < 8:
            emit(y[0], y[1], 7, k, 50 + (k & 1))
        if k < 15:
            cmul(zn[0], zn[1], z[0], z[1], 34, 35)
            z, zn = zn, z
        if k < 7:
            cmul(yn[0], yn[1], y[0], y[1], 46, 47)
            y, yn = yn, y
    g("s_waitcnt lgkmcnt(0)\ns_barrier")
    for gi in range(4):
        g(f"ds_read_b128 v[{64+8*(gi&1)}:{67+8*(gi&1)}], v8 offset:{64*gi}")
        g(f"ds_read_b128 v[{68+8*(gi&1)}:{71+8*(gi&1)}], v9 offset:{64*gi}")
        g("s_waitcnt lgkmcnt(0)")
        g(f"v_mfma_f32_16x16x32_f16 v[60:63], v[{64+8*(gi&1)}:{67+8*(gi&1)}], v[{68+8*(gi&1)}:{71+8*(gi&1)}], v[60:63]")
    g(f"""
    v_and_b32 v10, 15, v1
    v_lshrrev_b32 v11, 4, v1
    v_lshlrev_b32 v11, 8, v11
    v_lshlrev_b32 v10, 2, v10
    v_add_u32 v10, v10, v11
    s_lshl_b32 s4, s3, 10
    s_lshl_b32 s5, s31, 12
    s_add_u32 s4, s4, s5
    v_add_u32 v10, s4, v10
    v_mov_b32 v12, {2*TCH}
    ds_read_b64 v[14:15], v12
    s_barrier
    s_nop 4
    v_mul_f32 v60, v60, v31
    v_mul_f32 v61, v61, v31
    v_mul_f32 v62, v62, v31
    v_mul_f32 v63, v63, v31
    ds_write_b32 v10, v60
    ds_write_b32 v10, v61 offset:64
    ds_write_b32 v10, v62 offset:128
    ds_write_b32 v10, v63 offset:192
    v_lshlrev_b32 v10, 2, v0
    v_sub_u32 v10, 2047, v10
    """)
    for j in range(4):
        g(f"""
        v_subrev_u32 v{16+j}, {j}, v10
        v_cvt_f32_u32 v{16+j}, v{16+j}
        v_cvt_pk_bf16_f32 v{16+j}, v{16+j}, v{16+j}
        v_lshlrev_b32 v{16+j}, 16, v{16+j}
        v_cvt_u32_f32 v{16+j}, v{16+j}
        v_subrev_u32 v12, 512, v{16+j}
        v_lshrrev_b32 v12, 2, v12
        v_add_u32 v12, 512, v12
        v_cmp_gt_u32 vcc, 512, v{16+j}
        s_nop 1
        v_cndmask_b32 v{16+j}, v12, v{16+j}, vcc
        v_lshlrev_b32 v{16+j}, 2, v{16+j}
        """)
    g(f"""
    s_waitcnt lgkmcnt(0)
    v_add_f32 v14, v14, v15
    v_rcp_f32 v15, v14
    s_barrier
    """)
    for j in range(4):
        g(f"ds_read_b32 v{20+j}, v{16+j}")
        g(f"ds_read_b32 v{24+j}, v{16+j} offset:4096")
    g.srd(24, 22, 512*KR_PITCH, WS_KR)
    g.srd(28, 22, 2048, WS_KS)
    g(f"""
    s_mul_i32 s4, s2, {KR_PITCH}
    v_lshlrev_b32 v10, 3, v0
    s_lshl_b32 s5, s2, 2
    v_mov_b32 v11, s5
    s_waitcnt lgkmcnt(0)
    v_add_f32 v20, v20, v24
    v_add_f32 v21, v21, v25
    v_add_f32 v22, v22, v26
    v_add_f32 v23, v23, v27
    v_mul_f32 v20, v20, v15
    v_mul_f32 v21, v21, v15
    v_mul_f32 v22, v22, v15
    v_mul_f32 v23, v23, v15
    v_cvt_pk_f16_f32 v28, v20, v21
    v_cvt_pk_f16_f32 v29, v22, v23
    v_mov_b32 v32, 0
    v_mov_b32 v33, 0
    buffer_store_dwordx2 v[28:29], v10, s[24:27], s4 offen
    v_cmp_gt_u32 vcc, 8, v0
    s_and_saveexec_b64 s[34:35], vcc
    s_cbranch_execz KG_SKIPZ
    s_add_u32 s4, s4, 4096
    buffer_store_dwordx2 v[32:33], v10, s[24:27], s4 offen
    buffer_store_dword v14, v11, s[28:31], 0 offen
    """)
    g.label("KG_SKIPZ")
    g("s_endpgm")

LNP = 1056
def gen_ln(g):
    g(f"""
    s_load_dwordx2 s[4:5], s[0:1], 0
    s_lshl_b32 s6, s2, 4
    s_lshl_b32 s7, s3, 1
    s_add_u32 s6, s6, s7
    s_lshl_b32 s6, s6, 10
    v_lshlrev_b32 v3, 4, v1
    s_waitcnt lgkmcnt(0)
    """)
    g.srd(8, 4, 2048*1024)
    g.srd(12, 22, 2048*1024, WS_XN)
    g.srd(16, 22, 2048*1024, WS_XT)
    NR = 2
    for i in range(NR):
        g(f"buffer_load_dwordx4 v[{16+4*i}:{19+4*i}], v3, s[8:11], s6 offen offset:{1024*i}")
    g("s_waitcnt vmcnt(0)")
    X = 24
    for i in range(NR):
        for j in range(4):
            g(f"v_lshlrev_b32 v{X+8*i+2*j}, 16, v{16+4*i+j}")
            g(f"v_and_b32 v{X+8*i+2*j+1}, 0xffff0000, v{16+4*i+j}")
    def reduce(base):
        for mod in DPP:
            g("s_nop 1")
            for i in range(NR):
                g(f"v_add_f32_dpp v{base+i}, v{base+i}, v{base+i} {mod}")
        g("s_nop 0")
    for i in range(NR):
        b = X+8*i
        g(f"v_add_f32 v{4+i}, v{b}, v{b+1}")
        g(f"v_add_f32 v{6+i}, v{b+2}, v{b+3}")
        g(f"v_add_f32 v{8+i}, v{b+4}, v{b+5}")
        g(f"v_add_f32 v{10+i}, v{b+6}, v{b+7}")
    for i in range(NR):
        g(f"v_add_f32 v{4+i}, v{4+i}, v{6+i}")
        g(f"v_add_f32 v{8+i}, v{8+i}, v{10+i}")
    for i in range(NR):
        g(f"v_add_f32 v{4+i}, v{4+i}, v{8+i}")
    reduce(4)
    for i in range(NR):
        g(f"v_readlane_b32 s{32+i}, v{4+i}, 63")
    g("s_nop 1")
    for i in range(NR):
        g(f"v_mov_b32 v{4+i}, s{32+i}")
    for i in range(NR):
        g(f"v_mul_f32 v{4+i}, {fhex(1.0/512)}, v{4+i}")
    for i in range(NR):
        for j in range(8):
            g(f"v_sub_f32 v{40+j}, v{X+8*i+j}, v{4+i}")
        g(f"v_mul_f32 v{6+i}, v40, v40")
        g(f"v_mul_f32 v{8+i}, v41, v41")
        for j in range(2, 8):
            g(f"v_fma_f32 v{6+i+2*(j&1)}, v{40+j}, v{40+j}, v{6+i+2*(j&1)}")
        g(f"v_add_f32 v{6+i}, v{6+i}, v{8+i}")
    reduce(6)
    for i in range(NR):
        g(f"v_readlane_b32 s{32+i}, v{6+i}, 63")
    g("s_nop 1")
    for i in range(NR):
        g(f"v_mov_b32 v{6+i}, s{32+i}")
    for i in range(NR):
        g(f"v_mul_f32 v{6+i}, {fhex(1.0/512)}, v{6+i}")
    for i in range(NR):
        g(f"v_cvt_pk_bf16_f32 v{8+i}, v{4+i}, v{6+i}")
    for i in range(NR):
        g(f"v_lshlrev_b32 v{4+i}, 16, v{8+i}")
        g(f"v_and_b32 v{6+i}, 0xffff0000, v{8+i}")
    for i in range(NR):
        g(f"v_add_f32 v{6+i}, {fhex(1e-5)}, v{6+i}")
    for i in range(NR):
        g(f"v_cvt_pk_bf16_f32 v{6+i}, v{6+i}, v{6+i}")
    for i in range(NR):
        g(f"v_lshlrev_b32 v{6+i}, 16, v{6+i}")
    for i in range(NR):
        g(f"v_sqrt_f32 v{6+i}, v{6+i}")
    g("s_nop 0")
    for i in range(NR):
        g(f"v_cvt_pk_bf16_f32 v{6+i}, v{6+i}, v{6+i}")
    for i in range(NR):
        g(f"v_lshlrev_b32 v{6+i}, 16, v{6+i}")
    for i in range(NR):
        g(f"v_rcp_f32 v{8+i}, v{6+i}")
    g(f"""
    s_mul_i32 s20, s3, {2*LNP}
    v_add_u32 v2, s20, v3
    """)
    for i in range(NR):
        b = X+8*i
        for j in range(8):
            g(f"v_sub_f32 v{b+j}, v{b+j}, v{4+i}")
        for j in range(4):
            g(f"v_cvt_pk_bf16_f32 v{40+j}, v{b+2*j}, v{b+2*j+1}")
        for j in range(4):
            g(f"v_lshlrev_b32 v{b+2*j}, 16, v{40+j}")
            g(f"v_and_b32 v{b+2*j+1}, 0xffff0000, v{40+j}")
        for j in range(8):
            g(f"v_mul_f32 v{40+j}, v{b+j}, v{8+i}")
        for j in range(8):
            g(f"v_fma_f32 v{b+j}, -v{40+j}, v{6+i}, v{b+j}")
        for j in range(8):
            g(f"v_fma_f32 v{40+j}, v{b+j}, v{8+i}, v{40+j}")
        o = 48 + 8*i
        for j in range(4):
            g(f"v_cvt_pk_bf16_f32 v{o+j}, v{40+2*j}, v{40+2*j+1}")
        g(f"buffer_store_dwordx4 v[{o}:{o+3}], v3, s[12:15], s6 offen offset:{1024*i}")
        for j in range(4):
            g(f"v_lshlrev_b32 v{40+2*j}, 16, v{o+j}")
            g(f"v_and_b32 v{40+2*j+1}, 0xffff0000, v{o+j}")
        for j in range(4):
            g(f"v_cvt_pk_f16_f32 v{o+4+j}, v{40+2*j}, v{40+2*j+1}")
        g(f"ds_write_b128 v2, v[{o+4}:{o+7}] offset:{i*LNP}")
    g("s_waitcnt lgkmcnt(0)\ns_barrier")
    g(f"""
    v_and_b32 v4, 15, v1
    v_lshrrev_b32 v5, 4, v1
    v_and_b32 v6, 1, v5
    v_lshrrev_b32 v5, 1, v5
    v_lshlrev_b32 v7, 3, v6
    v_lshrrev_b32 v8, 2, v4
    v_add_u32 v7, v7, v8
    v_mul_u32_u24 v7, {LNP}, v7
    v_and_b32 v8, 3, v4
    v_lshlrev_b32 v8, 3, v8
    v_add_u32 v7, v7, v8
    v_lshlrev_b32 v8, 5, v5
    v_add_u32 v7, v7, v8
    s_lshl_b32 s20, s3, 7
    v_add_u32 v7, s20, v7
    ds_read_b64_tr_b16 v[16:17], v7
    ds_read_b64_tr_b16 v[18:19], v7 offset:{4*LNP}
    ds_read_b64_tr_b16 v[20:21], v7 offset:64
    ds_read_b64_tr_b16 v[22:23], v7 offset:{4*LNP+64}
    v_lshlrev_b32 v8, 4, v5
    v_add_u32 v8, v8, v4
    v_lshlrev_b32 v8, 12, v8
    v_lshlrev_b32 v9, 4, v6
    v_add_u32 v8, v8, v9
    s_lshl_b32 s21, s3, 18
    s_lshl_b32 s24, s2, 5
    s_add_u32 s21, s21, s24
    s_add_u32 s24, s21, {32*4096}
    s_waitcnt lgkmcnt(0)
    buffer_store_dwordx4 v[16:19], v8, s[16:19], s21 offen
    buffer_store_dwordx4 v[20:23], v8, s[16:19], s24 offen
    s_endpgm
    """)

TRP = 288
def gen_tr(g):
    g(f"""
    s_load_dwordx2 s[4:5], s[0:1], 80
    s_load_dwordx2 s[6:7], s[0:1], 96
    v_and_b32 v4, 15, v1
    v_lshrrev_b32 v5, 4, v1
    s_waitcnt lgkmcnt(0)
    s_cmp_ge_u32 s2, 112
    s_cbranch_scc1 TR_W2
    s_mul_hi_u32 s24, s2, {(2**32 + 13)//14}
    s_mul_i32 s25, s24, 14
    s_sub_u32 s25, s2, s25
    s_mov_b32 s26, 3584
    """)
    g.srd(8, 4, 512*1792*2)
    g.srd(12, 22, 512*1792*2, WS_W1T)
    g(f"""
    v_lshlrev_b32 v8, 10, v4
    v_lshlrev_b32 v9, 4, v5
    v_add_u32 v8, v8, v9
    s_lshl_b32 s28, s25, 17
    s_lshl_b32 s29, s3, 14
    s_add_u32 s28, s28, s29
    s_lshl_b32 s29, s24, 7
    s_add_u32 s28, s28, s29
    s_add_u32 s29, s28, 64
    s_branch TR_GO
    """)
    g.label("TR_W2")
    g(f"""
    s_sub_u32 s2, s2, 112
    s_lshr_b32 s24, s2, 2
    s_and_b32 s25, s2, 3
    s_mov_b32 s26, 1024
    """)
    g.srd(8, 6, 512*1792*2)
    g.srd(12, 22, 512*1792*2, WS_W2F)
    g(f"""
    v_lshlrev_b32 v8, 4, v1
    s_lshl_b32 s28, s25, 3
    s_add_u32 s28, s28, s3
    s_mul_i32 s28, s28, 56
    s_lshl_b32 s29, s24, 1
    s_add_u32 s28, s28, s29
    s_lshl_b32 s28, s28, 10
    s_add_u32 s29, s28, 1024
    """)
    g.label("TR_GO")
    g(f"""
    v_lshrrev_b32 v3, 4, v0
    v_and_b32 v6, 15, v0
    v_mul_lo_u32 v7, v3, s26
    v_lshlrev_b32 v6, 4, v6
    v_add_u32 v7, v7, v6
    s_lshl_b32 s30, s24, 6
    s_mul_i32 s30, s30, s26
    s_lshl_b32 s31, s25, 8
    s_add_u32 s30, s30, s31
    s_lshl_b32 s31, s26, 5
    s_add_u32 s31, s31, s30
    buffer_load_dwordx4 v[12:15], v7, s[8:11], s30 offen
    buffer_load_dwordx4 v[16:19], v7, s[8:11], s31 offen
    v_mul_u32_u24 v10, {TRP}, v3
    v_add_u32 v10, v10, v6
    v_lshlrev_b32 v6, 3, v5
    v_lshrrev_b32 v7, 2, v4
    v_add_u32 v6, v6, v7
    v_mul_u32_u24 v6, {TRP}, v6
    v_and_b32 v7, 3, v4
    v_lshlrev_b32 v7, 3, v7
    v_add_u32 v6, v6, v7
    s_lshl_b32 s20, s3, 5
    v_add_u32 v6, s20, v6
    s_waitcnt vmcnt(0)
    ds_write_b128 v10, v[12:15]
    ds_write_b128 v10, v[16:19] offset:{32*TRP}
    s_waitcnt lgkmcnt(0)
    s_barrier
    ds_read_b64_tr_b16 v[20:21], v6
    ds_read_b64_tr_b16 v[22:23], v6 offset:{4*TRP}
    ds_read_b64_tr_b16 v[24:25], v6 offset:{32*TRP}
    ds_read_b64_tr_b16 v[26:27], v6 offset:{36*TRP}
    s_waitcnt lgkmcnt(0)
    buffer_store_dwordx4 v[20:23], v8, s[12:15], s28 offen
    buffer_store_dwordx4 v[24:27], v8, s[12:15], s29 offen
    s_endpgm
    """)

K1_NG = 224
K1_NC = 256
K1_TOTAL = K1_NG + K1_NC
K1_LDS = 81920
CV_COPY = 8*KR_PITCH
CV_U = 95*80
CV_D = CV_COPY + CV_U

def gen_k1(g):
    kernel_begin(g, "mid_kernel")
    g(f"""
    s_cmp_ge_u32 s2, {K1_TOTAL}
    s_cbranch_scc1 K1_END
    s_load_dwordx2 s[22:23], s[0:1], 120
    v_and_b32 v1, 63, v0
    v_lshrrev_b32 v2, 6, v0
    s_nop 0
    v_readfirstlane_b32 s3, v2
    s_cmp_ge_u32 s2, {K1_NG}
    s_cbranch_scc1 K1_CONV
    """)
    if os.environ.get('NOG1'): g("s_endpgm")
    gen_gemm1(g)
    g.label("K1_CONV")
    g(f"s_sub_u32 s2, s2, {K1_NG}")
    if os.environ.get('NOCV'): g("s_endpgm")
    gen_conv(g)
    g.label("K1_END")
    g("s_endpgm")

def gen_gemm1(g):
    g(f"""
    s_load_dwordx2 s[4:5], s[0:1], 88
    s_and_b32 s24, s2, 7
    s_lshl_b32 s24, s24, 1
    s_lshr_b32 s25, s2, 3
    s_cmp_ge_u32 s25, 14
    s_cselect_b32 s26, 14, 0
    s_cselect_b32 s27, 1, 0
    s_sub_u32 s25, s25, s26
    s_add_u32 s24, s24, s27
    s_waitcnt lgkmcnt(0)
    """)
    g.srd(8, 22, 1792*1024, WS_W1T)
    g.srd(12, 22, 2048*1024, WS_XN)
    g.srd(16, 22, 2048*3584, WS_ACT)
    g(f"""
    v_lshrrev_b32 v3, 3, v1
    v_and_b32 v4, 7, v1
    s_lshl_b32 s26, s3, 3
    v_add_u32 v3, s26, v3
    v_lshrrev_b32 v5, 1, v3
    v_and_b32 v5, 7, v5
    v_xor_b32 v4, v4, v5
    v_lshlrev_b32 v4, 4, v4
    v_lshlrev_b32 v3, 10, v3
    v_add_u32 v3, v3, v4
    s_lshl_b32 s26, s25, 17
    s_lshl_b32 s27, s24, 17
    v_add_u32 v8, s26, v3
    v_add_u32 v10, s27, v3
    v_add_u32 v9, 0x10000, v8
    v_add_u32 v11, 0x10000, v10
    s_lshl_b32 s28, s3, 10
    """)
    def issue(stage_k):
        buf = (stage_k & 1) * 32768
        g(f"s_mov_b32 s31, {128*stage_k}")
        for i in range(2):
            g(f"s_add_u32 m0, s28, {buf + 8192*i}")
            g("s_nop 0")
            g(f"buffer_load_dwordx4 v{8+i}, s[8:11], s31 offen lds")
        for i in range(2):
            g(f"s_add_u32 m0, s28, {buf + 16384 + 8192*i}")
            g("s_nop 0")
            g(f"buffer_load_dwordx4 v{10+i}, s[12:15], s31 offen lds")
    issue(0)
    issue(1)
    g(f"""
    v_and_b32 v3, 31, v1
    v_lshrrev_b32 v4, 5, v1
    v_lshrrev_b32 v5, 1, v3
    v_and_b32 v5, 7, v5
    v_lshlrev_b32 v6, 7, v3
    s_and_b32 s29, s3, 1
    s_lshl_b32 s29, s29, 13
    s_lshr_b32 s30, s3, 1
    s_lshl_b32 s30, s30, 12
    s_add_u32 s30, s30, 16384
    """)
    for kk in range(4):
        g(f"""
        v_add_u32 v7, {2*kk}, v4
        v_xor_b32 v7, v7, v5
        v_lshlrev_b32 v7, 4, v7
        v_add_u32 v7, v7, v6
        v_add_u32 v{16+kk}, s29, v7
        v_add_u32 v{20+kk}, s30, v7
        """)
    g(f"""
    s_lshl_b32 s26, s25, 8
    s_and_b32 s27, s3, 1
    s_lshl_b32 s27, s27, 7
    s_add_u32 s26, s26, s27
    v_lshlrev_b32 v24, 3, v4
    v_add_u32 v24, s26, v24
    """)
    for mt in range(2):
        for gi in range(4):
            g(f"global_load_dwordx2 v[{26+8*mt+2*gi}:{27+8*mt+2*gi}], v24, s[4:5] offset:{64*mt+16*gi}")
    A0 = 64
    for i in range(32):
        g(f"v_mov_b32 v{A0+i}, 0")
    F = 96
    def rd(kk, buf):
        f = F + 12*(kk & 1)
        for mt in range(2):
            g(f"ds_read_b128 v[{f+4*mt}:{f+4*mt+3}], v{16+kk} offset:{buf+4096*mt}")
        g(f"ds_read_b128 v[{f+8}:{f+11}], v{20+kk} offset:{buf}")
    for k in range(8):
        buf = (k & 1) * 32768
        if k == 0: g("s_waitcnt vmcnt(12)")
        elif k < 7: g("s_waitcnt vmcnt(4)")
        else: g("s_waitcnt vmcnt(0)")
        g("s_barrier")
        rd(0, buf)
        for kk in range(4):
            if kk < 3:
                rd(kk+1, buf)
                g("s_waitcnt lgkmcnt(3)")
            else:
                g("s_waitcnt lgkmcnt(0)")
            f = F + 12*(kk & 1)
            for mt in range(2):
                a = A0 + 16*mt
                g(f"v_mfma_f32_32x32x16_bf16 v[{a}:{a+15}], v[{f+4*mt}:{f+4*mt+3}], v[{f+8}:{f+11}], v[{a}:{a+15}]")
        if k + 2 < 8:
            g("s_barrier")
            issue(k+2)
    for mt in range(2):
        for gi in range(4):
            for hh in range(2):
                src = 26+8*mt+2*gi+hh
                g(f"v_lshlrev_b32 v{96+16*mt+4*gi+2*hh}, 16, v{src}")
                g(f"v_and_b32 v{96+16*mt+4*gi+2*hh+1}, 0xffff0000, v{src}")
    g(f"""
    s_lshl_b32 s26, s24, 3
    s_lshr_b32 s27, s3, 1
    s_lshl_b32 s27, s27, 1
    s_add_u32 s26, s26, s27
    v_lshrrev_b32 v5, 4, v3
    v_add_u32 v5, s26, v5
    v_mul_u32_u24 v5, {56*1024}, v5
    v_and_b32 v6, 15, v3
    v_lshlrev_b32 v6, 4, v6
    v_add_u32 v5, v5, v6
    v_lshlrev_b32 v6, 8, v4
    v_add_u32 v5, v5, v6
    s_lshl_b32 s26, s25, 2
    s_and_b32 s27, s3, 1
    s_lshl_b32 s27, s27, 1
    s_add_u32 s26, s26, s27
    s_lshl_b32 s26, s26, 10
    s_mov_b32 s27, {fhex(LOG2E)}
    s_mov_b32 s32, {fhex(20.0)}
    s_nop 4
    """)
    T = 26
    for mt in range(2):
        a = A0 + 16*mt
        for half in range(2):
            R = [a + 8*half + i for i in range(8)]
            Bv = [96 + 16*mt + 8*half + i for i in range(8)]
            for j in range(4):
                g(f"v_cvt_pk_bf16_f32 v{T+j}, v{R[2*j]}, v{R[2*j+1]}")
            for j in range(4):
                g(f"v_lshlrev_b32 v{R[2*j]}, 16, v{T+j}")
                g(f"v_and_b32 v{R[2*j+1]}, 0xffff0000, v{T+j}")
            for j in range(8):
                g(f"v_add_f32 v{R[j]}, v{R[j]}, v{Bv[j]}")
            for j in range(4):
                g(f"v_cvt_pk_bf16_f32 v{T+j}, v{R[2*j]}, v{R[2*j+1]}")
            for j in range(4):
                g(f"v_lshlrev_b32 v{R[2*j]}, 16, v{T+j}")
                g(f"v_and_b32 v{R[2*j+1]}, 0xffff0000, v{T+j}")
            for j in range(8):
                g(f"v_min_f32 v{T+j}, s32, v{R[j]}")
            for j in range(8):
                g(f"v_mul_f32 v{T+j}, s27, v{T+j}")
            for j in range(8):
                g(f"v_exp_f32 v{T+j}, v{T+j}")
            for j in range(8):
                g(f"v_add_f32 v{T+8+j}, 2.0, v{T+j}")
            for j in range(8):
                g(f"v_mul_f32 v{T+j}, v{T+j}, v{T+8+j}")
            for j in range(8):
                g(f"v_add_f32 v{T+8+j}, 2.0, v{T+j}")
            for j in range(8):
                g(f"v_rcp_f32 v{T+8+j}, v{T+8+j}")
            for j in range(8):
                g(f"v_mul_f32 v{T+j}, v{T+j}, v{R[j]}")
            for j in range(8):
                g(f"v_mul_f32 v{T+j}, v{T+j}, v{T+8+j}")
            for j in range(4):
                g(f"v_cvt_pk_bf16_f32 v{R[j]}, v{T+2*j}, v{T+2*j+1}")
            g(f"""
            s_nop 1
            v_permlane32_swap_b32 v{R[0]}, v{R[2]}
            v_permlane32_swap_b32 v{R[1]}, v{R[3]}
            s_nop 0
            buffer_store_dwordx4 v[{R[0]}:{R[3]}], v5, s[16:19], s26 offen offset:{1024*mt+512*half}
            """)
    g("s_endpgm")

def gen_conv(g):
    g(f"""
    s_load_dwordx2 s[4:5], s[0:1], 64
    s_lshr_b32 s24, s3, 2
    s_lshl_b32 s25, s2, 1
    s_add_u32 s25, s25, s24
    s_and_b32 s26, s3, 3
    s_mul_i32 s27, s24, {CV_D}
    v_and_b32 v3, 255, v0
    s_waitcnt lgkmcnt(0)
    """)
    g.srd(8, 22, 512*KR_PITCH, WS_KR)
    g.srd(12, 22, 2048*1024, WS_XT)
    g.srd(16, 22, 2048*1024, WS_AT)
    g.srd(32, 22, 2048, WS_KS)
    g(f"""
    s_lshl_b32 s28, s25, 1
    v_mov_b32 v4, s28
    global_load_ushort v60, v4, s[4:5]
    v_lshlrev_b32 v4, 1, v4
    buffer_load_dword v61, v4, s[32:35], 0 offen
    s_mul_i32 s28, s25, {KR_PITCH}
    s_lshl_b32 s29, s25, 12
    v_lshlrev_b32 v4, 4, v3
    buffer_load_dwordx4 v[8:11], v4, s[12:15], s29 offen
    """)
    for s in range(8):
        g(f"buffer_load_dwordx4 v[{64+4*s}:{67+4*s}], v4, s[8:11], s28 offen offset:{2*s}")
    g(f"""
    v_lshrrev_b32 v5, 2, v3
    v_and_b32 v6, 3, v3
    v_lshlrev_b32 v7, 1, v5
    v_lshlrev_b32 v6, 4, v6
    v_add_u32 v7, v7, v6
    v_add_u32 v7, 4096, v7
    v_mul_u32_u24 v5, {KR_PITCH}, v5
    v_add_u32 v5, v5, v6
    v_add_u32 v5, 4096, v5
    v_add_u32 v5, s27, v5
    v_cmp_gt_u32 vcc, 32, v3
    s_nop 1
    v_cndmask_b32 v7, 0, v7, vcc
    buffer_load_dwordx4 v[16:19], v7, s[8:11], s28 offen
    v_mov_b32 v20, 0
    v_mov_b32 v21, 0
    v_mov_b32 v22, 0
    v_mov_b32 v23, 0
    v_add_u32 v6, s27, v4
    v_cmp_gt_u32 vcc, 155, v3
    s_and_saveexec_b64 s[30:31], vcc
    ds_write_b128 v6, v[20:23] offset:{CV_COPY}
    s_mov_b64 exec, s[30:31]
    v_lshrrev_b32 v24, 2, v3
    v_and_b32 v25, 3, v3
    v_mul_u32_u24 v24, 80, v24
    v_lshlrev_b32 v25, 4, v25
    v_add_u32 v24, v24, v25
    v_add_u32 v24, s27, v24
    s_waitcnt vmcnt(9)
    ds_write_b128 v24, v[8:11] offset:{CV_COPY+31*80}
    """)
    for s in range(8):
        g(f"s_waitcnt vmcnt({8-s})")
        g(f"ds_write_b128 v6, v[{64+4*s}:{67+4*s}] offset:{s*KR_PITCH}")
    g(f"""
    s_waitcnt vmcnt(0)
    v_cmp_gt_u32 vcc, 32, v3
    s_and_saveexec_b64 s[30:31], vcc
    ds_write_b128 v5, v[16:19]
    s_mov_b64 exec, s[30:31]
    v_and_b32 v3, 31, v1
    v_lshrrev_b32 v4, 5, v1
    v_and_b32 v5, 7, v3
    v_sub_u32 v5, 7, v5
    v_mul_u32_u24 v5, {KR_PITCH}, v5
    v_lshrrev_b32 v6, 3, v3
    v_sub_u32 v6, v4, v6
    v_lshlrev_b32 v6, 4, v6
    v_add_u32 v5, v5, v6
    s_lshl_b32 s28, s26, 9
    s_sub_u32 s28, {4080 - 64*39}, s28
    s_add_u32 s28, s28, s27
    v_add_u32 v5, s28, v5
    v_mul_u32_u24 v6, 80, v3
    v_lshlrev_b32 v7, 4, v4
    v_add_u32 v6, v6, v7
    s_mul_i32 s28, s26, {8*80}
    s_sub_u32 s28, {CV_COPY + 24*80}, s28
    s_add_u32 s28, s28, s27
    v_add_u32 v6, s28, v6
    """)
    for i in range(32):
        g(f"v_mov_b32 v{24+i}, 0")
    g("s_waitcnt lgkmcnt(0)\ns_barrier")
    AC = 24
    def rd(step):
        dl, kk = step >> 1, step & 1
        ao = (7-dl)*64 + 32*kk
        bo = (7-dl)*80 + 32*kk
        f = 64 + 16*(step % 3)
        g(f"ds_read_b128 v[{f}:{f+3}], v5 offset:{ao+2048}")
        g(f"ds_read_b128 v[{f+4}:{f+7}], v5 offset:{ao}")
        g(f"ds_read_b128 v[{f+8}:{f+11}], v6 offset:{bo}")
        g(f"ds_read_b128 v[{f+12}:{f+15}], v6 offset:{bo+2560}")
    rd(0); rd(1)
    for step in range(16):
        if step + 2 < 16:
            rd(step+2)
            g("s_waitcnt lgkmcnt(8)")
        elif step + 1 < 16:
            g("s_waitcnt lgkmcnt(4)")
        else:
            g("s_waitcnt lgkmcnt(0)")
        f = 64 + 16*(step % 3)
        g(f"v_mfma_f32_32x32x16_f16 v[{AC}:{AC+15}], v[{f}:{f+3}], v[{f+8}:{f+11}], v[{AC}:{AC+15}]")
        g(f"v_mfma_f32_32x32x16_f16 v[{AC+16}:{AC+31}], v[{f}:{f+3}], v[{f+12}:{f+15}], v[{AC+16}:{AC+31}]")
        g(f"v_mfma_f32_32x32x16_f16 v[{AC+16}:{AC+31}], v[{f+4}:{f+7}], v[{f+8}:{f+11}], v[{AC+16}:{AC+31}]")
    g(f"""
    s_barrier
    v_lshlrev_b32 v7, 4, v1
    s_lshl_b32 s28, s26, 13
    s_add_u32 s28, s28, s27
    v_add_u32 v8, s28, v7
    s_lshl_b32 s29, s26, 11
    s_add_u32 s29, s29, s27
    v_add_u32 v9, s29, v7
    v_mul_u32_u24 v10, 80, v3
    v_lshlrev_b32 v11, 3, v4
    v_add_u32 v10, v10, v11
    s_lshr_b32 s28, s26, 1
    s_mul_i32 s28, s28, 2560
    s_and_b32 s29, s26, 1
    s_lshl_b32 s29, s29, 5
    s_add_u32 s28, s28, s29
    s_add_u32 s28, s28, {CV_COPY + 31*80}
    s_add_u32 s28, s28, s27
    v_add_u32 v10, s28, v10
    s_nop 4
    """)
    for i in range(8):
        g(f"ds_write_b128 v8, v[{AC+4*i}:{AC+4*i+3}] offset:{1024*i}")
    g("ds_read_b64 v[12:13], v10\nds_read_b64 v[14:15], v10 offset:16")
    g("s_waitcnt lgkmcnt(0)\ns_barrier")
    for w in range(4):
        g(f"ds_read_b128 v[{64+8*w}:{67+8*w}], v9 offset:{8192*w}")
        g(f"ds_read_b128 v[{68+8*w}:{71+8*w}], v9 offset:{8192*w+1024}")
    g(f"""
    v_lshlrev_b32 v60, 16, v60
    v_lshlrev_b32 v16, 6, v3
    v_add_u32 v16, v16, v11
    s_lshr_b32 s28, s26, 1
    s_lshl_b32 s28, s28, 11
    s_and_b32 s29, s26, 1
    s_lshl_b32 s29, s29, 5
    s_add_u32 s28, s28, s29
    s_lshl_b32 s29, s25, 12
    s_add_u32 s28, s28, s29
    v_cvt_f32_f16 v24, v12
    v_cvt_f32_f16_sdwa v25, v12 dst_sel:DWORD dst_unused:UNUSED_PAD src0_sel:WORD_1
    v_cvt_f32_f16 v26, v13
    v_cvt_f32_f16_sdwa v27, v13 dst_sel:DWORD dst_unused:UNUSED_PAD src0_sel:WORD_1
    v_cvt_f32_f16 v28, v14
    v_cvt_f32_f16_sdwa v29, v14 dst_sel:DWORD dst_unused:UNUSED_PAD src0_sel:WORD_1
    v_cvt_f32_f16 v30, v15
    v_cvt_f32_f16_sdwa v31, v15 dst_sel:DWORD dst_unused:UNUSED_PAD src0_sel:WORD_1
    """)
    for i in range(8):
        g(f"v_mul_f32 v{24+i}, v{24+i}, v60")
    for j in range(4):
        g(f"v_cvt_pk_bf16_f32 v{32+j}, v{24+2*j}, v{24+2*j+1}")
    for j in range(4):
        g(f"v_lshlrev_b32 v{24+2*j}, 16, v{32+j}")
        g(f"v_and_b32 v{24+2*j+1}, 0xffff0000, v{32+j}")
    g("s_waitcnt lgkmcnt(0)")
    for i in range(8):
        g(f"v_add_f32 v{64+i}, v{64+i}, v{72+i}")
        g(f"v_add_f32 v{80+i}, v{80+i}, v{88+i}")
    for i in range(8):
        g(f"v_add_f32 v{64+i}, v{64+i}, v{80+i}")
    for i in range(8):
        g(f"v_mul_f32 v{64+i}, v{64+i}, v61")
    for j in range(4):
        g(f"v_cvt_pk_bf16_f32 v{32+j}, v{64+2*j}, v{64+2*j+1}")
    for j in range(4):
        g(f"v_lshlrev_b32 v{64+2*j}, 16, v{32+j}")
        g(f"v_and_b32 v{64+2*j+1}, 0xffff0000, v{32+j}")
    for i in range(8):
        g(f"v_add_f32 v{64+i}, v{64+i}, v{24+i}")
    for j in range(4):
        g(f"v_cvt_pk_bf16_f32 v{32+j}, v{64+2*j}, v{64+2*j+1}")
    g("buffer_store_dwordx2 v[32:33], v16, s[16:19], s28 offen")
    g("buffer_store_dwordx2 v[34:35], v16, s[16:19], s28 offen offset:16")
    g("s_endpgm")

K2_TOTAL = 256
K2_LDS = 131072
def gen_k2(g):
    kernel_begin(g, "fin_kernel")
    g(f"""
    s_cmp_ge_u32 s2, {K2_TOTAL}
    s_cbranch_scc1 K2_END
    s_load_dwordx2 s[22:23], s[0:1], 120
    s_load_dwordx2 s[4:5], s[0:1], 0
    s_load_dwordx2 s[6:7], s[0:1], 104
    v_and_b32 v1, 63, v0
    v_lshrrev_b32 v2, 6, v0
    s_nop 0
    v_readfirstlane_b32 s3, v2
    s_and_b32 s25, s2, 7
    s_lshr_b32 s24, s2, 3
    s_lshl_b32 s25, s25, 2
    s_lshr_b32 s26, s24, 3
    s_add_u32 s25, s25, s26
    s_and_b32 s24, s24, 7
    s_mul_i32 s36, s3, {7*1024}
    v_lshlrev_b32 v5, 4, v1
    v_add_u32 v8, s36, v5
    v_add_u32 v9, 4096, v8
    s_mul_i32 s40, s24, {4*56*1024}
    s_add_u32 s41, s40, {56*1024}
    s_add_u32 s42, s40, {2*56*1024}
    s_add_u32 s43, s40, {3*56*1024}
    s_mul_i32 s44, s25, {4*56*1024}
    s_add_u32 s45, s44, {56*1024}
    s_add_u32 s46, s44, {2*56*1024}
    s_add_u32 s47, s44, {3*56*1024}
    s_waitcnt lgkmcnt(0)
    """)
    g.srd(8, 22, 512*3584, WS_W2F)
    g.srd(12, 22, 2048*3584, WS_ACT)
    g.srd(16, 22, 2048*1024, WS_AT)
    g.srd(28, 4, 2048*1024)
    g.srd(32, 6, 2048*1024)
    NS = 4
    FB = 96
    def issue(step):
        fb = FB + 32*(step % NS)
        va = 8 if step < 4 else 9
        for i in range(4):
            g(f"buffer_load_dwordx4 v[{fb+4*i}:{fb+4*i+3}], v{va}, s[8:11], s{40+i} offen offset:{1024*(step&3)}")
        for i in range(4):
            g(f"buffer_load_dwordx4 v[{fb+16+4*i}:{fb+16+4*i+3}], v{va}, s[12:15], s{44+i} offen offset:{1024*(step&3)}")
    for st in range(NS):
        issue(st)
    g(f"""
    v_and_b32 v3, 15, v1
    v_lshrrev_b32 v4, 4, v1
    s_lshl_b32 s37, s25, 6
    s_lshr_b32 s38, s3, 1
    s_lshl_b32 s38, s38, 4
    s_add_u32 s37, s37, s38
    v_add_u32 v16, s37, v3
    v_lshlrev_b32 v17, 10, v16
    v_lshlrev_b32 v18, 3, v4
    v_add_u32 v17, v17, v18
    s_lshl_b32 s38, s24, 7
    s_and_b32 s39, s3, 1
    s_lshl_b32 s48, s39, 6
    s_add_u32 s38, s38, s48
    v_add_u32 v17, s38, v17
    v_lshlrev_b32 v18, 14, v4
    v_lshlrev_b32 v19, 1, v16
    v_add_u32 v18, v18, v19
    s_lshl_b32 s38, s24, 18
    s_lshl_b32 s48, s39, 17
    s_add_u32 s38, s38, s48
    v_add_u32 v18, s38, v18
    v_add_u32 v19, 4096, v18
    v_add_u32 v20, 8192, v18
    v_add_u32 v21, 12288, v18
    s_mov_b32 s39, 65536
    buffer_load_dwordx2 v[24:25], v17, s[28:31], 0 offen
    buffer_load_dwordx2 v[26:27], v17, s[28:31], 0 offen offset:32
    """)
    for i in range(2):
        for r in range(4):
            g(f"buffer_load_ushort v{10+18*i+r}, v{18+r}, s[16:19], {'0' if i == 0 else 's39'} offen")
    NEP = 10
    for i in range(64):
        g(f"v_mov_b32 v{32+i}, 0")
    for st in range(7):
        fb = FB + 32*(st % NS)
        rem = min(7, st + NS) - (st + 1)
        cnt = 8*rem + (NEP if st == 0 else 0)
        g(f"s_waitcnt vmcnt({cnt})")
        for i in range(4):
            for j in range(4):
                a = 32 + 4*(4*i+j)
                g(f"v_mfma_f32_16x16x32_bf16 v[{a}:{a+3}], v[{fb+4*i}:{fb+4*i+3}], v[{fb+16+4*j}:{fb+16+4*j+3}], v[{a}:{a+3}]")
        if st + NS < 7:
            issue(st + NS)
    g(f"""
    s_lshl_b32 s36, s3, 14
    v_add_u32 v6, s36, v5
    s_and_b32 s37, s3, 1
    s_lshl_b32 s37, s37, 13
    s_lshr_b32 s38, s3, 1
    s_lshl_b32 s38, s38, 10
    s_add_u32 s37, s37, s38
    v_add_u32 v7, s37, v5
    v_add_u32 v22, 65536, v7
    s_nop 4
    """)
    for i in range(4):
        for j in range(4):
            a = 32 + 4*(4*i+j)
            g(f"ds_write_b128 v6, v[{a}:{a+3}] offset:{(4*i+j)*1024}")
    g("s_waitcnt lgkmcnt(0)\ns_barrier")
    for i in range(2):
        for w in range(8):
            va = 7 if w < 4 else 22
            g(f"ds_read_b128 v[{96+32*i+4*w}:{99+32*i+4*w}], v{va} offset:{(w&3)*16384+i*4096}")
    g("s_waitcnt lgkmcnt(0)")
    for i in range(2):
        for r in range(4):
            b = 96+32*i+r
            g(f"v_add_f32 v{b}, v{b}, v{b+4}")
            g(f"v_add_f32 v{b+8}, v{b+8}, v{b+12}")
            g(f"v_add_f32 v{b+16}, v{b+16}, v{b+20}")
            g(f"v_add_f32 v{b+24}, v{b+24}, v{b+28}")
        for r in range(4):
            b = 96+32*i+r
            g(f"v_add_f32 v{b}, v{b}, v{b+8}")
            g(f"v_add_f32 v{b+16}, v{b+16}, v{b+24}")
        for r in range(4):
            b = 96+32*i+r
            g(f"v_add_f32 v{b}, v{b}, v{b+16}")
    g("s_waitcnt vmcnt(0)")
    for i in range(2):
        b = 96+32*i
        g(f"""
        v_cvt_pk_bf16_f32 v{b+4}, v{b}, v{b+1}
        v_cvt_pk_bf16_f32 v{b+5}, v{b+2}, v{b+3}
        v_lshlrev_b32 v{b}, 16, v{b+4}
        v_and_b32 v{b+1}, 0xffff0000, v{b+4}
        v_lshlrev_b32 v{b+2}, 16, v{b+5}
        v_and_b32 v{b+3}, 0xffff0000, v{b+5}
        v_lshlrev_b32 v{b+4}, 16, v{24+2*i}
        v_and_b32 v{b+5}, 0xffff0000, v{24+2*i}
        v_lshlrev_b32 v{b+6}, 16, v{25+2*i}
        v_and_b32 v{b+7}, 0xffff0000, v{25+2*i}
        v_lshlrev_b32 v{b+8}, 16, v{10+18*i}
        v_lshlrev_b32 v{b+9}, 16, v{11+18*i}
        v_lshlrev_b32 v{b+10}, 16, v{12+18*i}
        v_lshlrev_b32 v{b+11}, 16, v{13+18*i}
        v_add_f32 v{b+4}, v{b+4}, v{b+8}
        v_add_f32 v{b+5}, v{b+5}, v{b+9}
        v_add_f32 v{b+6}, v{b+6}, v{b+10}
        v_add_f32 v{b+7}, v{b+7}, v{b+11}
        v_cvt_pk_bf16_f32 v{b+8}, v{b+4}, v{b+5}
        v_cvt_pk_bf16_f32 v{b+9}, v{b+6}, v{b+7}
        v_lshlrev_b32 v{b+4}, 16, v{b+8}
        v_and_b32 v{b+5}, 0xffff0000, v{b+8}
        v_lshlrev_b32 v{b+6}, 16, v{b+9}
        v_and_b32 v{b+7}, 0xffff0000, v{b+9}
        v_add_f32 v{b+4}, v{b+4}, v{b}
        v_add_f32 v{b+5}, v{b+5}, v{b+1}
        v_add_f32 v{b+6}, v{b+6}, v{b+2}
        v_add_f32 v{b+7}, v{b+7}, v{b+3}
        v_cvt_pk_bf16_f32 v{b+8}, v{b+4}, v{b+5}
        v_cvt_pk_bf16_f32 v{b+9}, v{b+6}, v{b+7}
        buffer_store_dwordx2 v[{b+8}:{b+9}], v17, s[32:35], 0 offen offset:{32*i}
        """)
    g.label("K2_END")
    g("s_endpgm")

HEADER = open("parallel_sum__ssm_conv_s4__dense_activation_mish__prompt.s.ref").read().split("; Override launch")[0]

def build():
    g = G()
    g.raw(HEADER.rstrip("\n"))
    g.raw(f"; @launch kernel=prep_kernel grid=({K0_TOTAL},1,1) block=(512,1,1) lds={K0_LDS}")
    g.raw(f"; @launch kernel=mid_kernel grid=({K1_TOTAL},1,1) block=(512,1,1) lds={K1_LDS}")
    g.raw(f"; @launch kernel=fin_kernel grid=({K2_TOTAL},1,1) block=(512,1,1) lds={K2_LDS}")
    g.raw('.amdgcn_target "amdgcn-amd-amdhsa--gfx950"')
    g.raw(".text")
    gen_k0(g)
    gen_k1(g)
    gen_k2(g)
    g.raw('.section .rodata,"a"')
    g.raw(".p2align 6")
    g.raw(kernel_desc("prep_kernel", 80))
    g.raw(".p2align 6")
    g.raw(kernel_desc("mid_kernel", 128))
    g.raw(".p2align 6")
    g.raw(kernel_desc("fin_kernel", 224))
    return g.text()

if __name__ == "__main__":
    out = sys.argv[1] if len(sys.argv) > 1 else "parallel_sum__ssm_conv_s4__dense_activation_mish__prompt.s"
    open(out, "w").write(build())
    print("written", out)
```

```python
import sys, struct, os
STAMP = os.environ.get('STAMP') is not None
STAMP_WG = int(os.environ.get('STAMP', '0'))
TL = os.environ.get('TL') is not None

def f2u(x): return struct.unpack('<I', struct.pack('<f', x))[0]
def fhex(x): return "0x%08x" % f2u(x)
LOG2E = 1.4426950408889634
INV2PI = 0.15915494309189535

WS_ST  = 0x000000
WS_CS  = 0x010000
WS_XT  = 0x200000
WS_KR  = 0x400000
KR_PITCH = 4160
WS_KS  = 0x620000
WS_FL  = 0x640000
WS_W2F = 0x800000
WS_AT  = 0xA00000
WS_ACT = 0xC00000

class G:
    def __init__(self): self.L = []
    def __call__(self, s):
        for line in s.strip('\n').split('\n'):
            if line.strip(): self.L.append("    " + line.strip())
    def label(self, s): self.L.append(s + ":")
    def raw(self, s): self.L.append(s)
    def text(self): return "\n".join(self.L) + "\n"
    def stamp(self, i):
        if STAMP: self(f"s_memtime s[{64+2*i}:{65+2*i}]")
    def stamp_end(self, n, tag):
        if TL:
            base = 0x3000000
            self(f"""
            s_waitcnt vmcnt(0) lgkmcnt(0)
            s_memrealtime s[90:91]
            s_memtime s[92:93]
            s_waitcnt lgkmcnt(0)
            s_cmp_lg_u32 s94, 0
            s_cbranch_scc1 TL_SKIP_{tag}
            s_lshl_b32 s85, s95, 4
            s_add_u32 s85, s85, {base}
            v_mov_b32 v0, s85
            v_mov_b32 v4, s88
            v_mov_b32 v5, s90
            s_sub_u32 s92, s92, s86
            v_mov_b32 v6, s92
            v_mov_b32 v7, 0
            global_store_dwordx4 v0, v[4:7], s[22:23]
            """)
            self.label(f"TL_SKIP_{tag}")
        if not STAMP: return
        self(f"""
        s_waitcnt vmcnt(0) lgkmcnt(0)
        s_memtime s[{64+2*n}:{65+2*n}]
        s_waitcnt lgkmcnt(0)
        s_cmp_lg_u32 s95, {STAMP_WG}
        s_cbranch_scc1 ST_SKIP_{tag}
        s_cmp_lg_u32 s94, 0
        s_cbranch_scc1 ST_SKIP_{tag}
        v_mov_b32 v0, 0x3200000
        """)
        for i in range(n+1):
            self(f"s_sub_u32 s93, s{64+2*i}, s64")
            self(f"v_mov_b32 v1, s93")
            self(f"global_store_dword v0, v1, s[22:23] offset:{4*i}")
        self.label(f"ST_SKIP_{tag}")
    def srd(self, d, pb, nbytes, off=0):
        if off:
            self(f"s_add_u32 s{d}, s{pb}, {off}")
            self(f"s_addc_u32 s{d+1}, s{pb+1}, 0")
        else:
            self(f"s_mov_b32 s{d}, s{pb}")
            self(f"s_mov_b32 s{d+1}, s{pb+1}")
        self(f"s_mov_b32 s{d+2}, {nbytes}")
        self(f"s_mov_b32 s{d+3}, 0x00020000")
    def poll(self, tag, soff, target, vt, vz):
        self(f"v_mov_b32 v{vz}, s{soff}")
        self.label(f"POLL_{tag}")
        self(f"""
        global_load_dword v{vt}, v{vz}, s[20:21] sc1
        s_waitcnt vmcnt(0)
        v_readfirstlane_b32 s{soff+1}, v{vt}
        s_nop 3
        s_cmp_ge_u32 s{soff+1}, {target}
        s_cbranch_scc1 POLLD_{tag}
        s_sleep 8
        s_branch POLL_{tag}
        """)
        self.label(f"POLLD_{tag}")

def poll_flags(g, tag, soff, ndw, vt, vz, base='s[20:21]', slp=8):
    g(f"""
    v_min_u32 v{vz}, {ndw-1}, v1
    v_lshlrev_b32 v{vz}, 2, v{vz}
    v_add_u32 v{vz}, s{soff}, v{vz}
    s_mov_b32 s{soff+1}, 0x01010101
    """)
    g.label(f"POLL_{tag}")
    g(f"""
    global_load_dword v{vt}, v{vz}, {base} sc1
    s_waitcnt vmcnt(0)
    v_cmp_ne_u32 vcc, s{soff+1}, v{vt}
    s_nop 3
    s_cmp_eq_u64 vcc, 0
    s_cbranch_scc1 POLLD_{tag}
    s_sleep {slp}
    s_branch POLL_{tag}
    """)
    g.label(f"POLLD_{tag}")

def wait_zero(g, tag, vt, vz):
    g(f"v_mov_b32 v{vz}, 0")
    g.label(f"WZ_{tag}")
    g(f"""
    global_load_dword v{vt}, v{vz}, s[20:21] sc1
    s_waitcnt vmcnt(0)
    v_cmp_eq_u32 vcc, 0, v{vt}
    s_nop 3
    s_cmp_eq_u64 vcc, 0
    s_cbranch_scc1 WZD_{tag}
    s_sleep 8
    s_branch WZ_{tag}
    """)
    g.label(f"WZD_{tag}")

def set_flag(g, sreg, va, vb):
    g(f"""
    v_mov_b32 v{va}, s{sreg}
    v_mov_b32 v{vb}, 0x01010101
    v_cmp_eq_u32 vcc, 0, v1
    s_and_saveexec_b64 s[50:51], vcc
    global_store_dword v{va}, v{vb}, s[22:23] sc1
    s_mov_b64 exec, s[50:51]
    """)

def kernel_begin(g, name):
    g.raw(f".globl {name}")
    g.raw(".p2align 8")
    g.raw(f".type {name},@function")
    g.label(name)
    g.stamp(0)
    G.kname = name
    if TL:
        g("s_memrealtime s[88:89]\ns_memtime s[86:87]")

def kernel_desc(name, vgpr, sgpr=96):
    acc = (vgpr + 3)//4*4
    return f""".amdhsa_kernel {name}
  .amdhsa_next_free_vgpr {vgpr}
  .amdhsa_next_free_sgpr {sgpr}
  .amdhsa_accum_offset {acc}
  .amdhsa_group_segment_fixed_size 0
  .amdhsa_kernarg_size 128
  .amdhsa_user_sgpr_count 2
  .amdhsa_user_sgpr_kernarg_segment_ptr 1
  .amdhsa_system_sgpr_workgroup_id_x 1
.end_amdhsa_kernel
"""
DPP = ["quad_perm:[1,0,3,2]", "quad_perm:[2,3,0,1]", "row_half_mirror", "row_mirror",
       "row_bcast:15 row_mask:0xa", "row_bcast:31 row_mask:0xc"]

KA_NL = 128
KA_NW = 112
KA_NG = 224
KA_TOTAL = KA_NL + KA_NW + KA_NG
KA_LDS = 81920
TP = 272
TCH = 96*TP
LNP = 1056
TRP = 288

def gen_mega(g):
    kernel_begin(g, "parallel_sum__ssm_conv_s4__dense_activation_mish__prompt_kernel")
    g(f"""
    s_cmp_ge_u32 s2, 512
    s_cbranch_scc1 M_END
    s_load_dwordx4 s[20:23], s[0:1], 112
    v_and_b32 v1, 63, v0
    v_lshrrev_b32 v2, 6, v0
    s_nop 0
    v_readfirstlane_b32 s3, v2
    s_mov_b32 s95, s2
    s_mov_b32 s94, s3
    s_cmp_ge_u32 s2, 256
    s_cbranch_scc1 M_G
    """)
    g(f"""
    s_load_dwordx4 s[4:7], s[0:1], 56
    s_min_u32 s36, s3, 5
    s_lshl_b32 s36, s36, 3
    s_add_u32 s36, s36, 8
    s_load_dwordx2 s[8:9], s[0:1], s36
    s_lshl_b32 s28, s2, 2
    s_lshl_b32 s36, s2, 9
    v_and_b32 v5, 31, v1
    v_lshlrev_b32 v5, 4, v5
    v_add_u32 v6, s36, v5
    s_waitcnt lgkmcnt(0)
    s_load_dword s52, s[4:5], s28
    s_load_dword s53, s[6:7], s28
    global_load_dwordx4 v[112:115], v6, s[8:9]
    s_cmp_lg_u32 s2, 0
    s_cbranch_scc1 M_NOZ
    v_lshrrev_b32 v4, 6, v0
    v_lshlrev_b32 v4, 12, v4
    v_lshlrev_b32 v5, 2, v1
    v_add_u32 v4, v4, v5
    v_add_u32 v4, {WS_FL}, v4
    v_add_u32 v5, 0x8000, v4
    v_add_u32 v6, 0x10000, v4
    v_add_u32 v7, 0x18000, v4
    v_mov_b32 v8, 0
    global_store_dword v4, v8, s[22:23] sc1
    global_store_dword v5, v8, s[22:23] sc1
    global_store_dword v6, v8, s[22:23] sc1
    global_store_dword v7, v8, s[22:23] sc1
    s_waitcnt vmcnt(0)
    s_barrier
    s_cmp_lg_u32 s3, 0
    s_cbranch_scc1 M_NOZ
    v_mov_b32 v4, 0
    v_mov_b32 v5, 1
    v_cmp_eq_u32 vcc, 0, v1
    s_and_saveexec_b64 s[50:51], vcc
    global_store_dword v4, v5, s[20:21] sc1
    s_mov_b64 exec, s[50:51]
    """)
    g.label("M_NOZ")
    g(f"""
    s_cmp_ge_u32 s2, {KA_NL}
    s_cbranch_scc1 M_NOTLN
    """)
    gen_ln(g)
    g("s_branch M_CONV")
    g.label("M_NOTLN")
    g(f"""
    s_cmp_ge_u32 s2, {KA_NL+KA_NW}
    s_cbranch_scc1 M_CONV
    """)
    gen_w2f(g)
    g.label("M_CONV")
    gen_conv(g)
    g.label("M_G")
    g(f"""
    s_setprio 2
    s_sub_u32 s2, s2, 256
    s_cmp_ge_u32 s2, {KA_NG}
    s_cbranch_scc1 M_G2
    """)
    gen_gemm1(g)
    g.label("M_G2")
    gen_gemm2(g)
    g.label("M_END")
    g("s_endpgm")

def gen_ln(g):
    NR = 2
    g(f"""
    s_setprio 3
    s_load_dwordx2 s[4:5], s[0:1], 0
    s_lshl_b32 s6, s2, 4
    s_lshl_b32 s7, s3, 1
    s_add_u32 s6, s6, s7
    s_lshl_b32 s7, s6, 10
    v_lshlrev_b32 v3, 4, v1
    s_waitcnt lgkmcnt(0)
    """)
    g.srd(8, 4, 2048*1024)
    g.srd(16, 22, 2048*1024, WS_XT)
    for i in range(NR):
        g(f"buffer_load_dwordx4 v[{16+4*i}:{19+4*i}], v3, s[8:11], s7 offen offset:{1024*i}")
    g("s_waitcnt vmcnt(0)")
    X = 32
    for i in range(NR):
        for j in range(4):
            g(f"v_lshlrev_b32 v{X+8*i+2*j}, 16, v{16+4*i+j}")
            g(f"v_and_b32 v{X+8*i+2*j+1}, 0xffff0000, v{16+4*i+j}")
    def reduce(base):
        for mod in DPP:
            for i in range(NR):
                g(f"v_add_f32_dpp v{base+i}, v{base+i}, v{base+i} {mod}")
            g("s_nop 0")
    for i in range(NR):
        b = X+8*i
        g(f"v_add_f32 v{4+i}, v{b}, v{b+1}")
        g(f"v_add_f32 v{8+i}, v{b+2}, v{b+3}")
        g(f"v_add_f32 v{12+i}, v{b+4}, v{b+5}")
        g(f"v_add_f32 v{64+i}, v{b+6}, v{b+7}")
    for i in range(NR):
        g(f"v_add_f32 v{4+i}, v{4+i}, v{8+i}")
        g(f"v_add_f32 v{12+i}, v{12+i}, v{64+i}")
    for i in range(NR):
        g(f"v_add_f32 v{4+i}, v{4+i}, v{12+i}")
    g("s_nop 1")
    reduce(4)
    for i in range(NR):
        g(f"v_readlane_b32 s{32+i}, v{4+i}, 63")
    g("s_nop 1")
    for i in range(NR):
        g(f"v_mov_b32 v{4+i}, s{32+i}")
    for i in range(NR):
        g(f"v_mul_f32 v{4+i}, {fhex(1.0/512)}, v{4+i}")
    for i in range(NR):
        for j in range(8):
            g(f"v_sub_f32 v{64+j}, v{X+8*i+j}, v{4+i}")
        g(f"v_mul_f32 v{8+i}, v64, v64")
        g(f"v_mul_f32 v{12+i}, v65, v65")
        for j in range(2, 8):
            g(f"v_fma_f32 v{8+i+4*(j&1)}, v{64+j}, v{64+j}, v{8+i+4*(j&1)}")
        g(f"v_add_f32 v{8+i}, v{8+i}, v{12+i}")
    g("s_nop 1")
    reduce(8)
    for i in range(NR):
        g(f"v_readlane_b32 s{32+i}, v{8+i}, 63")
    g("s_nop 1")
    for i in range(NR):
        g(f"v_mov_b32 v{8+i}, s{32+i}")
    for i in range(NR):
        g(f"v_mul_f32 v{8+i}, {fhex(1.0/512)}, v{8+i}")
    for i in range(NR):
        g(f"v_cvt_pk_bf16_f32 v{12+i}, v{4+i}, v{8+i}")
    for i in range(NR):
        g(f"v_lshlrev_b32 v{4+i}, 16, v{12+i}")
        g(f"v_and_b32 v{8+i}, 0xffff0000, v{12+i}")
    for i in range(NR):
        g(f"v_add_f32 v{8+i}, {fhex(1e-5)}, v{8+i}")
    for i in range(NR):
        g(f"v_cvt_pk_bf16_f32 v{8+i}, v{8+i}, v{8+i}")
    for i in range(NR):
        g(f"v_lshlrev_b32 v{8+i}, 16, v{8+i}")
    for i in range(NR):
        g(f"v_sqrt_f32 v{8+i}, v{8+i}")
    g("s_nop 0")
    for i in range(NR):
        g(f"v_cvt_pk_bf16_f32 v{8+i}, v{8+i}, v{8+i}")
    for i in range(NR):
        g(f"v_lshlrev_b32 v{8+i}, 16, v{8+i}")
    for i in range(NR):
        g(f"v_rcp_f32 v{12+i}, v{8+i}")
    g("s_nop 0")
    for i in range(NR):
        g(f"v_fma_f32 v{64+i}, -v{8+i}, v{12+i}, 1.0")
    for i in range(NR):
        g(f"v_fma_f32 v{17+2*i}, v{64+i}, v{12+i}, v{12+i}")
    for i in range(NR):
        g(f"v_mul_f32 v{16+2*i}, v{4+i}, v{17+2*i}")
    g(f"""
    s_lshl_b32 s42, s6, 3
    v_mov_b32 v24, s42
    s_add_u32 s44, s22, {WS_ST}
    s_addc_u32 s45, s23, 0
    v_cmp_eq_u32 vcc, 0, v1
    s_and_saveexec_b64 s[46:47], vcc
    global_store_dwordx4 v24, v[16:19], s[44:45] sc1
    s_mov_b64 exec, s[46:47]
    s_mul_i32 s36, s3, {NR*LNP}
    v_add_u32 v2, s36, v3
    """)
    for i in range(NR):
        b = X+8*i
        for j in range(8):
            g(f"v_sub_f32 v{b+j}, v{b+j}, v{4+i}")
        for j in range(4):
            g(f"v_cvt_pk_bf16_f32 v{64+j}, v{b+2*j}, v{b+2*j+1}")
        for j in range(4):
            g(f"v_lshlrev_b32 v{b+2*j}, 16, v{64+j}")
            g(f"v_and_b32 v{b+2*j+1}, 0xffff0000, v{64+j}")
        for j in range(8):
            g(f"v_mul_f32 v{64+j}, v{b+j}, v{12+i}")
        for j in range(8):
            g(f"v_fma_f32 v{b+j}, -v{64+j}, v{8+i}, v{b+j}")
        for j in range(8):
            g(f"v_fma_f32 v{64+j}, v{b+j}, v{12+i}, v{64+j}")
        for j in range(4):
            g(f"v_cvt_pk_bf16_f32 v{72+j}, v{64+2*j}, v{64+2*j+1}")
        for j in range(4):
            g(f"v_lshlrev_b32 v{64+2*j}, 16, v{72+j}")
            g(f"v_and_b32 v{64+2*j+1}, 0xffff0000, v{72+j}")
        o = 76 + 4*(i & 1)
        for j in range(4):
            g(f"v_cvt_pk_f16_f32 v{o+j}, v{64+2*j}, v{64+2*j+1}")
        g(f"ds_write_b128 v2, v[{o}:{o+3}] offset:{i*LNP}")
    g("s_waitcnt lgkmcnt(0)\ns_barrier")
    g(f"""
    v_and_b32 v4, 15, v1
    v_lshrrev_b32 v5, 4, v1
    v_and_b32 v6, 1, v5
    v_lshrrev_b32 v5, 1, v5
    v_lshlrev_b32 v7, 3, v6
    v_lshrrev_b32 v8, 2, v4
    v_add_u32 v7, v7, v8
    v_mul_u32_u24 v7, {LNP}, v7
    v_and_b32 v8, 3, v4
    v_lshlrev_b32 v8, 3, v8
    v_add_u32 v7, v7, v8
    v_lshlrev_b32 v8, 5, v5
    v_add_u32 v7, v7, v8
    s_lshl_b32 s36, s3, 7
    v_add_u32 v7, s36, v7
    ds_read_b64_tr_b16 v[16:17], v7
    ds_read_b64_tr_b16 v[18:19], v7 offset:{4*LNP}
    ds_read_b64_tr_b16 v[20:21], v7 offset:64
    ds_read_b64_tr_b16 v[22:23], v7 offset:{4*LNP+64}
    v_lshlrev_b32 v8, 4, v5
    v_add_u32 v8, v8, v4
    v_lshlrev_b32 v8, 5, v8
    v_lshlrev_b32 v9, 4, v6
    v_add_u32 v8, v8, v9
    s_lshl_b32 s36, s2, 14
    s_lshl_b32 s37, s3, 11
    s_add_u32 s36, s36, s37
    s_waitcnt lgkmcnt(0)
    buffer_store_dwordx4 v[16:19], v8, s[16:19], s36 offen sc1
    buffer_store_dwordx4 v[20:23], v8, s[16:19], s36 offen offset:1024 sc1
    """)
    g(f"""
    s_waitcnt vmcnt(0)
    s_barrier
    s_cmp_lg_u32 s3, 0
    s_cbranch_scc1 LN_NOSIG
    """)
    wait_zero(g, "ln", 4, 5)
    g(f"""
    s_and_b32 s36, s2, 63
    s_lshl_b32 s36, s36, 2
    s_lshr_b32 s37, s2, 6
    s_mul_i32 s37, s37, {29*4096}
    s_add_u32 s36, s36, s37
    s_add_u32 s36, s36, {WS_FL}
    """)
    set_flag(g, 36, 4, 5)
    g.label("LN_NOSIG")
    g("s_setprio 0")

def gen_w2f(g):
    g(f"""
    s_load_dwordx2 s[6:7], s[0:1], 96
    v_and_b32 v4, 15, v1
    v_lshrrev_b32 v5, 4, v1
    s_sub_u32 s38, s2, {KA_NL}
    s_lshr_b32 s24, s38, 2
    s_and_b32 s25, s38, 3
    v_lshlrev_b32 v8, 4, v1
    s_lshl_b32 s28, s25, 3
    s_add_u32 s28, s28, s3
    s_mul_i32 s28, s28, 56
    s_lshl_b32 s29, s24, 1
    s_add_u32 s28, s28, s29
    s_lshl_b32 s28, s28, 10
    v_lshrrev_b32 v3, 4, v0
    v_and_b32 v6, 15, v0
    v_lshlrev_b32 v7, 10, v3
    v_lshlrev_b32 v6, 4, v6
    v_add_u32 v7, v7, v6
    s_lshl_b32 s30, s24, 16
    s_lshl_b32 s31, s25, 8
    s_add_u32 s30, s30, s31
    s_add_u32 s31, s30, 32768
    s_waitcnt lgkmcnt(0)
    """)
    g.srd(8, 6, 512*1792*2)
    g.srd(12, 22, 512*1792*2, WS_W2F)
    g(f"""
    buffer_load_dwordx4 v[12:15], v7, s[8:11], s30 offen
    buffer_load_dwordx4 v[16:19], v7, s[8:11], s31 offen
    v_mul_u32_u24 v10, {TRP}, v3
    v_add_u32 v10, v10, v6
    v_lshlrev_b32 v6, 3, v5
    v_lshrrev_b32 v7, 2, v4
    v_add_u32 v6, v6, v7
    v_mul_u32_u24 v6, {TRP}, v6
    v_and_b32 v7, 3, v4
    v_lshlrev_b32 v7, 3, v7
    v_add_u32 v6, v6, v7
    s_lshl_b32 s36, s3, 5
    v_add_u32 v6, s36, v6
    s_waitcnt vmcnt(0)
    ds_write_b128 v10, v[12:15]
    ds_write_b128 v10, v[16:19] offset:{32*TRP}
    s_waitcnt lgkmcnt(0)
    s_barrier
    ds_read_b64_tr_b16 v[20:21], v6
    ds_read_b64_tr_b16 v[22:23], v6 offset:{4*TRP}
    ds_read_b64_tr_b16 v[24:25], v6 offset:{32*TRP}
    ds_read_b64_tr_b16 v[26:27], v6 offset:{36*TRP}
    s_waitcnt lgkmcnt(0)
    buffer_store_dwordx4 v[20:23], v8, s[12:15], s28 offen sc1
    buffer_store_dwordx4 v[24:27], v8, s[12:15], s28 offen offset:1024 sc1
    s_waitcnt vmcnt(0)
    s_barrier
    s_cmp_lg_u32 s3, 0
    s_cbranch_scc1 W2_NOSIG
    """)
    wait_zero(g, "w2", 4, 5)
    g(f"""
    s_add_u32 s36, s25, 1
    s_lshl_b32 s36, s36, 12
    s_lshl_b32 s37, s24, 2
    s_add_u32 s36, s36, s37
    s_add_u32 s36, s36, {WS_FL}
    """)
    set_flag(g, 36, 4, 5)
    g.label("W2_NOSIG")

L_SC = 2*TCH
L_T = L_SC + 64
L_P = L_T + 16384
L_R = L_P + 3072
def gen_kgen_setup(g):
    g(f"""
    s_lshr_b32 s31, s3, 2
    s_and_b32 s30, s3, 3
    s_mov_b32 s40, 0
    s_mov_b32 s41, {fhex(16.0)}
    s_mov_b32 s42, 0
    s_mov_b32 s43, {fhex(1.0)}
    s_cmp_eq_u32 s30, 1
    s_cselect_b32 s40, {fhex(256.0)}, s40
    s_cselect_b32 s42, {fhex(8.0)}, s42
    s_cmp_eq_u32 s30, 2
    s_cselect_b32 s40, {fhex(512.0)}, s40
    s_cmp_eq_u32 s30, 3
    s_cselect_b32 s40, {fhex(1536.0)}, s40
    s_cselect_b32 s42, {fhex(32.0)}, s42
    s_cmp_ge_u32 s30, 2
    s_cselect_b32 s41, {fhex(64.0)}, s41
    s_cselect_b32 s43, {fhex(4.0)}, s43
    s_mul_i32 s32, s31, {TCH}
    s_mul_i32 s28, s30, {16*TP}
    s_add_u32 s28, s28, s32
    s_mul_i32 s29, s30, {8*TP}
    s_add_u32 s29, s29, {64*TP}
    s_add_u32 s29, s29, s32
    v_lshlrev_b32 v6, 2, v1
    v_add_u32 v7, s29, v6
    v_add_u32 v6, s28, v6
    v_and_b32 v8, 15, v1
    v_lshrrev_b32 v9, 4, v1
    v_mul_u32_u24 v8, {TP}, v8
    v_lshlrev_b32 v9, 4, v9
    v_add_u32 v8, v8, v9
    s_lshr_b32 s33, s30, 1
    s_mul_i32 s33, s33, {16*TP}
    s_add_u32 s33, s33, {64*TP}
    s_add_u32 s33, s33, s32
    v_add_u32 v9, s33, v8
    v_add_u32 v8, s28, v8
    v_and_b32 v10, 15, v1
    v_lshrrev_b32 v11, 4, v1
    v_lshlrev_b32 v11, 8, v11
    v_lshlrev_b32 v10, 2, v10
    v_add_u32 v10, v10, v11
    s_lshl_b32 s28, s30, 10
    s_lshl_b32 s29, s31, 12
    s_add_u32 s28, s28, s29
    s_add_u32 s28, s28, {L_T}
    v_add_u32 v10, s28, v10
    v_lshlrev_b32 v11, 2, v0
    v_sub_u32 v11, 2047, v11
    """)
    for j in range(4):
        g(f"""
        v_subrev_u32 v{16+j}, {j}, v11
        v_cvt_f32_u32 v{16+j}, v{16+j}
        v_cvt_pk_bf16_f32 v{16+j}, v{16+j}, v{16+j}
        v_lshlrev_b32 v{16+j}, 16, v{16+j}
        v_cvt_u32_f32 v{16+j}, v{16+j}
        v_subrev_u32 v12, 512, v{16+j}
        v_lshrrev_b32 v12, 2, v12
        v_add_u32 v12, 512, v12
        v_cmp_gt_u32 vcc, 512, v{16+j}
        s_nop 1
        v_cndmask_b32 v{16+j}, v12, v{16+j}, vcc
        v_lshlrev_b32 v{16+j}, 2, v{16+j}
        """)

def gen_kgen(g, dd):
    b = 52 + 8*dd
    def direct(sl, vare, vaim, vr, vi, t0, t1):
        g(f"""
        v_mul_f32 v{t0}, s{sl}, v{vare}
        v_mul_f32 v{t1}, s{sl}, v{vaim}
        v_exp_f32 v{t0}, v{t0}
        v_fract_f32 v{t1}, v{t1}
        v_cos_f32 v{vr}, v{t1}
        v_sin_f32 v{vi}, v{t1}
        s_nop 0
        v_mul_f32 v{vr}, v{t0}, v{vr}
        v_mul_f32 v{vi}, v{t0}, v{vi}
        """)
    def cmul(dr, di, ar, ai, br, bi):
        g(f"""
        v_mul_f32 v{dr}, v{ar}, v{br}
        v_mul_f32 v{di}, v{ar}, v{bi}
        v_fma_f32 v{dr}, -v{ai}, v{bi}, v{dr}
        v_fma_f32 v{di}, v{ai}, v{br}, v{di}
        """)
    def emit(zr, zi, vaddr, row, t):
        g(f"""
        v_cvt_pk_f16_f32 v{t}, v{zr}, v{zi}
        ds_write_b32 v{vaddr}, v{t} offset:{row*TP}
        """)
    g(f"""
    v_lshlrev_b32 v5, 16, v{b+6}
    v_mul_f32 v5, {fhex(LOG2E)}, v5
    v_exp_f32 v5, v5
    s_nop 0
    v_cvt_pk_bf16_f32 v5, v5, v5
    v_lshlrev_b32 v5, 16, v5
    """)
    for i in range(6):
        g(f"v_lshlrev_b32 v{b+i}, 16, v{b+i}")
    g(f"""
    v_mul_f32 v24, v5, v{b}
    v_mul_f32 v25, v5, v{b+1}
    v_mul_f32 v24, {fhex(LOG2E)}, v24
    v_mul_f32 v25, {fhex(INV2PI)}, v25
    v_sub_f32 v26, 0, v25
    v_mul_f32 v27, v5, v{b+2}
    v_mul_f32 v28, v5, v{b+3}
    """)
    cmul(29, 30, b+4, b+5, 27, 28)
    g(f"""
    v_max_f32 v31, abs(v29), abs(v30)
    v_max_f32 v31, {fhex(1e-30)}, v31
    """)
    direct(40, 24, 26, 32, 33, 40, 41)
    g(f"v_max_f32_dpp v31, v31, v31 {DPP[0]}")
    direct(41, 24, 26, 34, 35, 40, 41)
    g(f"v_max_f32_dpp v31, v31, v31 {DPP[1]}")
    direct(42, 24, 25, 44, 45, 40, 41)
    g(f"v_max_f32_dpp v31, v31, v31 {DPP[2]}")
    direct(43, 24, 25, 46, 47, 40, 41)
    for mod in DPP[3:]:
        g(f"v_max_f32_dpp v31, v31, v31 {mod}\ns_nop 1")
    g(f"""
    v_readlane_b32 s34, v31, 63
    s_nop 3
    v_mov_b32 v31, s34
    v_rcp_f32 v40, v31
    s_lshl_b32 s34, s31, 2
    s_add_u32 s34, s34, {L_SC + 8*dd}
    v_mov_b32 v41, s34
    ds_write_b32 v41, v31
    v_mul_f32 v29, v29, v40
    v_mul_f32 v30, v30, v40
    v_sub_f32 v30, 0, v30
    v_mov_b32 v68, 0
    v_mov_b32 v69, 0
    v_mov_b32 v70, 0
    v_mov_b32 v71, 0
    """)
    cmul(36, 37, 29, 30, 32, 33)
    if dd == 1:
        g("s_barrier")
    z = (36, 37); zn = (38, 39)
    y = (44, 45); yn = (48, 49)
    for k in range(16):
        emit(z[0], z[1], 6, k, 42 + (k & 1))
        if k < 8:
            emit(y[0], y[1], 7, k, 50 + (k & 1))
        if k < 15:
            cmul(zn[0], zn[1], z[0], z[1], 34, 35)
            z, zn = zn, z
        if k < 7:
            cmul(yn[0], yn[1], y[0], y[1], 46, 47)
            y, yn = yn, y
    g("s_waitcnt lgkmcnt(0)\ns_barrier")
    for gi in range(4):
        g(f"ds_read_b128 v[{72+8*gi}:{75+8*gi}], v8 offset:{64*gi}")
        g(f"ds_read_b128 v[{76+8*gi}:{79+8*gi}], v9 offset:{64*gi}")
    g(f"v_mov_b32 v12, {L_SC+8*dd}\nds_read_b64 v[14:15], v12")
    for gi in range(4):
        g(f"s_waitcnt lgkmcnt({7-2*gi})")
        g(f"v_mfma_f32_16x16x32_f16 v[68:71], v[{72+8*gi}:{75+8*gi}], v[{76+8*gi}:{79+8*gi}], v[68:71]")
    g(f"""
    s_waitcnt lgkmcnt(0)
    v_add_f32 v{104+dd}, v14, v15
    v_rcp_f32 v{106+dd}, v{104+dd}
    s_nop 6
    v_mul_f32 v68, v68, v31
    v_mul_f32 v69, v69, v31
    v_mul_f32 v70, v70, v31
    v_mul_f32 v71, v71, v31
    ds_write_b32 v10, v68 offset:{8192*dd}
    ds_write_b32 v10, v69 offset:{8192*dd+64}
    ds_write_b32 v10, v70 offset:{8192*dd+128}
    ds_write_b32 v10, v71 offset:{8192*dd+192}
    """)

NST = 5
def gen_gemm1(g):
    if os.environ.get('PRIO'): g("s_setprio 2")
    g(f"""
    s_load_dwordx2 s[4:5], s[0:1], 88
    s_load_dwordx2 s[6:7], s[0:1], 0
    s_load_dwordx2 s[36:37], s[0:1], 80
    s_lshr_b32 s25, s2, 3
    s_mul_i32 s26, s25, 37
    s_lshr_b32 s26, s26, 8
    s_mul_i32 s27, s26, 7
    s_sub_u32 s25, s25, s27
    s_and_b32 s24, s2, 6
    s_lshl_b32 s24, s24, 1
    s_add_u32 s24, s24, s26
    s_and_b32 s27, s2, 1
    s_mul_i32 s27, s27, 7
    s_add_u32 s25, s25, s27
    """)
    g(f"""
    v_lshrrev_b32 v3, 4, v1
    v_and_b32 v4, 15, v1
    v_lshlrev_b32 v5, 2, v3
    v_xor_b32 v4, v4, v5
    v_lshlrev_b32 v4, 4, v4
    s_lshl_b32 s26, s3, 2
    v_add_u32 v3, s26, v3
    v_mul_u32_u24 v3, 3584, v3
    v_add_u32 v3, v3, v4
    s_lshl_b32 s26, s25, 8
    """)
    if os.environ.get('E1'): g("s_mov_b32 s26, 0")
    g(f"""
    v_add_u32 v8, s26, v3
    v_lshrrev_b32 v3, 2, v1
    v_and_b32 v4, 3, v1
    v_lshrrev_b32 v5, 2, v3
    v_xor_b32 v4, v4, v5
    v_lshlrev_b32 v4, 4, v4
    s_lshl_b32 s26, s3, 4
    v_add_u32 v3, s26, v3
    v_lshlrev_b32 v3, 10, v3
    v_add_u32 v3, v3, v4
    s_lshl_b32 s26, s24, 17
    """)
    if os.environ.get('E1'): g("s_mov_b32 s26, 0")
    g(f"""
    v_add_u32 v9, s26, v3
    s_lshl_b32 s28, s3, 10
    s_waitcnt lgkmcnt(0)
    """)
    g.srd(8, 36, 512*3584)
    g.srd(12, 6, 2048*1024)
    g.srd(16, 22, 2048*3584, WS_ACT)
    g.stamp(1)
    g(f"""
    s_lshl_b32 s26, s25, 8
    v_and_b32 v24, 127, v0
    v_lshlrev_b32 v24, 1, v24
    v_add_u32 v24, s26, v24
    s_cmp_ge_u32 s3, 2
    s_cbranch_scc1 G1_NOB
    global_load_ushort v60, v24, s[4:5]
    """)
    g.label("G1_NOB")
    def issue(k):
        buf = (k % NST) * 16384
        g(f"""
        s_mov_b32 s30, {32*3584*k}
        s_mov_b32 s31, {64*k}
        s_add_u32 m0, s28, {buf}
        s_nop 0
        buffer_load_dwordx4 v8, s[8:11], s30 offen lds
        s_add_u32 m0, s28, {buf + 8192}
        s_nop 0
        buffer_load_dwordx4 v9, s[12:15], s31 offen lds
        """)
    for k in range(NST):
        issue(k)
    g(f"""
    v_lshrrev_b32 v3, 4, v1
    v_and_b32 v4, 15, v1
    v_lshrrev_b32 v5, 2, v4
    v_lshrrev_b32 v6, 1, v3
    v_lshlrev_b32 v6, 3, v6
    v_add_u32 v6, v6, v5
    v_lshlrev_b32 v6, 8, v6
    v_and_b32 v7, 1, v4
    v_lshlrev_b32 v7, 3, v7
    v_add_u32 v6, v6, v7
    v_and_b32 v7, 1, v3
    v_lshlrev_b32 v7, 1, v7
    v_bfe_u32 v10, v4, 1, 1
    v_add_u32 v7, v7, v10
    s_and_b32 s29, s3, 1
    s_lshl_b32 s29, s29, 3
    v_add_u32 v7, s29, v7
    v_lshlrev_b32 v5, 2, v5
    v_xor_b32 v10, v7, v5
    v_lshlrev_b32 v10, 4, v10
    v_add_u32 v16, v6, v10
    v_add_u32 v7, 4, v7
    v_xor_b32 v10, v7, v5
    v_lshlrev_b32 v10, 4, v10
    v_add_u32 v17, v6, v10
    v_and_b32 v3, 31, v1
    v_lshrrev_b32 v4, 5, v1
    v_lshrrev_b32 v5, 2, v3
    v_and_b32 v5, 3, v5
    v_lshlrev_b32 v6, 6, v3
    s_lshr_b32 s30, s3, 1
    s_lshl_b32 s30, s30, 11
    s_add_u32 s30, s30, 8192
    v_add_u32 v6, s30, v6
    v_xor_b32 v7, v4, v5
    v_lshlrev_b32 v7, 4, v7
    v_add_u32 v18, v6, v7
    v_add_u32 v7, 2, v4
    v_xor_b32 v7, v7, v5
    v_lshlrev_b32 v7, 4, v7
    v_add_u32 v19, v6, v7
    """)
    A0 = 64
    for i in range(32):
        g(f"v_mov_b32 v{A0+i}, 0")
    for i in range(4):
        g(f"v_add_u32 v{11+i}, 0x10000, v{16+i}")
    FS = [96, 26]
    def rd(k, kk):
        buf = (k % NST) * 16384
        F = FS[k & 1]
        vb = 16
        if buf >= 65536:
            buf -= 65536; vb = 11
        f = F + 12*kk
        for mt in range(2):
            g(f"ds_read_b64_tr_b16 v[{f+4*mt}:{f+4*mt+1}], v{vb+mt} offset:{buf+4096*kk}")
            g(f"ds_read_b64_tr_b16 v[{f+4*mt+2}:{f+4*mt+3}], v{vb+mt} offset:{buf+4096*kk+1024}")
        g(f"ds_read_b128 v[{f+8}:{f+11}], v{vb+2+kk} offset:{buf}")
    g(f"""
    v_mov_b32 v58, 0
    v_mov_b32 v59, 0
    s_mov_b32 s33, 0x3f803f80
    s_lshr_b32 s34, s3, 1
    s_add_u32 s44, s22, {WS_ST}
    s_addc_u32 s45, s23, 0
    s_lshl_b32 s26, s24, 7
    s_lshl_b32 s27, s34, 5
    s_add_u32 s26, s26, s27
    v_add_u32 v22, s26, v3
    v_lshlrev_b32 v22, 3, v22
    s_and_b32 s40, s24, 7
    s_lshl_b32 s40, s40, 5
    s_lshr_b32 s41, s24, 3
    s_mul_i32 s41, s41, {29*4096}
    s_add_u32 s40, s40, s41
    s_add_u32 s40, s40, {WS_FL}
    s_waitcnt vmcnt({2*(NST-1)})
    s_barrier
    """)
    g.stamp(2)
    rd(0, 0); rd(0, 1)
    for k in range(16):
        F = FS[k & 1]
        def mf(kk, mt):
            f = F + 12*kk
            a = A0 + 16*mt
            g(f"v_mfma_f32_32x32x16_bf16 v[{a}:{a+15}], v[{f+4*mt}:{f+4*mt+3}], v[{f+8}:{f+11}], v[{a}:{a+15}]")
        if k < 15:
            younger = 2*(min(k+NST-1, 15) - (k+1))
            if k > 11: younger += 1
            g(f"s_waitcnt vmcnt({younger}) lgkmcnt(0)")
            g("s_barrier")
            if k < 3: g.stamp(3+k)
            if k == 8: g.stamp(7)
            mf(0, 0)
            rd(k+1, 0)
            mf(0, 1)
            rd(k+1, 1)
            mf(1, 0)
            if k + NST < 16 and not os.environ.get('E2'):
                issue(k + NST)
            mf(1, 1)
        else:
            g("s_waitcnt lgkmcnt(0)")
            mf(0, 0); mf(0, 1); mf(1, 0); mf(1, 1)
        if k == 10 and not os.environ.get('E3'):
            g("s_cmp_lg_u32 s3, 0\ns_cbranch_scc1 G1_NOPOLL")
            wait_zero(g, "g1", 20, 21)
            poll_flags(g, "g1a", 40, 8, 20, 21, base="s[22:23]")
            g.label("G1_NOPOLL")
        if k == 11:
            g("global_load_dwordx2 v[20:21], v22, s[44:45] sc1")
        g(f"s_cmp_lg_u32 s34, {k & 3}\ns_cbranch_scc1 G1_NOCS{k}")
        for kk in range(2):
            f = F + 12*kk
            for mt in range(2):
                for j in range(4):
                    g(f"v_dot2_f32_bf16 v{58+mt}, v{f+4*mt+j}, s33, v{58+mt}")
        g.label(f"G1_NOCS{k}")
    g.stamp(6)
    g(f"""
    s_barrier
    v_lshlrev_b32 v5, 2, v3
    v_lshlrev_b32 v6, 9, v4
    v_add_u32 v5, v5, v6
    s_lshl_b32 s26, s34, 10
    s_and_b32 s27, s3, 1
    s_lshl_b32 s27, s27, 8
    s_add_u32 s26, s26, s27
    v_add_u32 v5, s26, v5
    ds_write_b32 v5, v58
    ds_write_b32 v5, v59 offset:128
    v_lshlrev_b32 v6, 2, v0
    v_and_b32 v6, 511, v6
    s_waitcnt lgkmcnt(0)
    s_barrier
    """)
    g("s_cmp_ge_u32 s3, 2\ns_cbranch_scc1 G1_NOSUM")
    for p in range(8):
        g(f"ds_read_b32 v{96+p}, v6 offset:{512*p}")
    g(f"""
    s_waitcnt lgkmcnt(0)
    v_add_f32 v96, v96, v97
    v_add_f32 v98, v98, v99
    v_add_f32 v100, v100, v101
    v_add_f32 v102, v102, v103
    v_add_f32 v96, v96, v98
    v_add_f32 v100, v100, v102
    v_add_f32 v96, v96, v100
    v_lshlrev_b32 v60, 16, v60
    ds_write_b32 v6, v96 offset:4096
    ds_write_b32 v6, v60 offset:4608
    """)
    g.label("G1_NOSUM")
    g(f"""
    v_lshlrev_b32 v25, 4, v4
    v_add_u32 v25, s27, v25
    s_lshl_b32 s26, s24, 3
    s_lshr_b32 s27, s3, 1
    s_lshl_b32 s27, s27, 1
    s_add_u32 s26, s26, s27
    v_lshrrev_b32 v5, 4, v3
    v_add_u32 v5, s26, v5
    v_mul_u32_u24 v5, {56*1024}, v5
    v_and_b32 v6, 15, v3
    v_lshlrev_b32 v6, 4, v6
    v_add_u32 v5, v5, v6
    v_lshlrev_b32 v6, 8, v4
    v_add_u32 v5, v5, v6
    s_lshl_b32 s26, s25, 2
    s_and_b32 s27, s3, 1
    s_lshl_b32 s27, s27, 1
    s_add_u32 s26, s26, s27
    s_lshl_b32 s26, s26, 10
    s_mov_b32 s27, {fhex(LOG2E)}
    s_mov_b32 s32, {fhex(20.0)}
    s_waitcnt lgkmcnt(0)
    s_barrier
    """)
    for mt in range(2):
        for gi in range(4):
            g(f"ds_read_b128 v[{96+16*mt+4*gi}:{99+16*mt+4*gi}], v25 offset:{4096+128*mt+32*gi}")
    for gi in range(4):
        g(f"ds_read_b128 v[{26+4*gi}:{29+4*gi}], v25 offset:{4608+32*gi}")
    g("s_waitcnt vmcnt(0) lgkmcnt(0)")
    g.stamp(8)
    T = 42
    for mt in range(2):
        a = A0 + 16*mt
        if mt == 1:
            for gi in range(4):
                g(f"ds_read_b128 v[{26+4*gi}:{29+4*gi}], v25 offset:{4608+128+32*gi}")
            g("s_waitcnt lgkmcnt(0)")
        for half in range(2):
            R = [a + 8*half + i for i in range(8)]
            CSv = [96 + 16*mt + 8*half + i for i in range(8)]
            Bv = [26 + 8*half + i for i in range(8)]
            for j in range(8):
                g(f"v_fma_f32 v{CSv[j]}, -v20, v{CSv[j]}, v{Bv[j]}")
            for j in range(8):
                g(f"v_fma_f32 v{R[j]}, v{R[j]}, v21, v{CSv[j]}")
            for j in range(4):
                g(f"v_cvt_pk_bf16_f32 v{T+j}, v{R[2*j]}, v{R[2*j+1]}")
            for j in range(4):
                g(f"v_lshlrev_b32 v{R[2*j]}, 16, v{T+j}")
                g(f"v_and_b32 v{R[2*j+1]}, 0xffff0000, v{T+j}")
            for j in range(8):
                g(f"v_mul_f32 v{T+j}, s27, v{R[j]}")
            for j in range(8):
                g(f"v_exp_f32 v{T+j}, v{T+j}")
            for j in range(8):
                g(f"v_add_f32 v{T+8+j}, 2.0, v{T+j}")
            for j in range(8):
                g(f"v_fma_f32 v{T+j}, v{T+j}, v{T+8+j}, 2.0")
            for j in range(8):
                g(f"v_rcp_f32 v{T+j}, v{T+j}")
            for j in range(8):
                g(f"v_fma_f32 v{T+j}, -2.0, v{T+j}, 1.0")
            for j in range(8):
                g(f"v_mul_f32 v{T+j}, v{T+j}, v{R[j]}")
            for j in range(4):
                g(f"v_cvt_pk_bf16_f32 v{R[j]}, v{T+2*j}, v{T+2*j+1}")
            g(f"""
            s_nop 1
            v_permlane32_swap_b32 v{R[0]}, v{R[2]}
            v_permlane32_swap_b32 v{R[1]}, v{R[3]}
            s_nop 0
            buffer_store_dwordx4 v[{R[0]}:{R[3]}], v5, s[16:19], s26 offen offset:{1024*mt+512*half} sc1
            """)
    g.stamp(9)
    g(f"""
    s_waitcnt vmcnt(0)
    s_barrier
    s_cmp_lg_u32 s3, 0
    s_cbranch_scc1 G1_NOSIG
    s_add_u32 s36, s24, 5
    s_lshl_b32 s36, s36, 12
    s_lshl_b32 s37, s25, 2
    s_add_u32 s36, s36, s37
    s_add_u32 s36, s36, {WS_FL}
    """)
    set_flag(g, 36, 4, 5)
    g.label("G1_NOSIG")

KB_NG = 256
KB_NC = 256
KB_TOTAL = KB_NG + KB_NC
KB_LDS = 81920
CV_COPY = 8*KR_PITCH
CV_U = 95*80
CV_D = CV_COPY + CV_U

def gen_conv(g):
    g(f"""
    s_lshr_b32 s24, s3, 2
    s_lshl_b32 s25, s2, 1
    s_add_u32 s25, s25, s24
    s_and_b32 s26, s3, 3
    s_mul_i32 s27, s24, {CV_D}
    v_and_b32 v3, 255, v0
    v_and_b32 v5, 31, v1
    v_lshlrev_b32 v5, 4, v5
    s_waitcnt lgkmcnt(0)
    s_mov_b32 s35, s52
    s_mov_b32 s36, s53
    """)
    g.stamp(1)
    g.srd(12, 22, 2048*1024, WS_XT)
    g.srd(16, 22, 2048*1024, WS_AT)
    g(f"""
    v_lshrrev_b32 v116, 1, v3
    v_lshlrev_b32 v116, 14, v116
    v_and_b32 v8, 1, v3
    v_lshlrev_b32 v8, 4, v8
    v_add_u32 v116, v116, v8
    s_lshl_b32 s54, s25, 5
    s_min_u32 s37, s3, 5
    s_lshl_b32 s37, s37, 9
    s_add_u32 s37, s37, {L_P}
    v_add_u32 v56, s37, v5
    """)
    gen_kgen_setup(g)
    g(f"""
    s_waitcnt vmcnt(0)
    ds_write_b128 v56, v[112:115]
    v_lshlrev_b32 v12, 1, v1
    s_lshl_b32 s28, s31, 7
    s_add_u32 s28, s28, {L_P}
    v_add_u32 v12, s28, v12
    s_waitcnt lgkmcnt(0)
    s_barrier
    """)
    for dd in range(2):
        for i in range(6):
            g(f"ds_read_u16 v{52+8*dd+i}, v12 offset:{512*i+256*dd}")
    g(f"""
    s_and_b32 s28, s35, 0xffff
    s_lshr_b32 s29, s35, 16
    v_mov_b32 v58, s28
    v_mov_b32 v66, s29
    s_waitcnt lgkmcnt(0)
    """)
    g.stamp(2)
    gen_kgen(g, 0)
    gen_kgen(g, 1)
    g("s_cmp_lg_u32 s3, 0\ns_cbranch_scc1 CV_NOPOLL")
    wait_zero(g, "cv", 20, 21)
    g(f"s_mov_b32 s48, {WS_FL}")
    poll_flags(g, "cv", 48, 64, 20, 21, base="s[22:23]", slp=8)
    g(f"s_mov_b32 s48, {WS_FL+29*4096}")
    poll_flags(g, "cv2", 48, 64, 20, 21, base="s[22:23]", slp=8)
    g.label("CV_NOPOLL")
    g("s_waitcnt lgkmcnt(0)\ns_barrier")
    g("buffer_load_dwordx4 v[108:111], v116, s[12:15], s54 offen sc1")
    g.stamp(3)
    for dd in range(2):
        for j in range(4):
            g(f"ds_read_b32 v{20+8*dd+j}, v{16+j} offset:{L_T+8192*dd}")
            g(f"ds_read_b32 v{24+8*dd+j}, v{16+j} offset:{L_T+8192*dd+4096}")
    g(f"""
    v_lshlrev_b32 v12, 3, v0
    v_add_u32 v12, {L_R}, v12
    v_mov_b32 v40, 0
    v_mov_b32 v41, 0
    v_mov_b32 v42, 0
    v_mov_b32 v43, 0
    v_lshlrev_b32 v4, 4, v3
    s_mul_i32 s28, s24, {KR_PITCH}
    s_add_u32 s28, s28, {L_R}
    v_add_u32 v13, s28, v4
    s_waitcnt lgkmcnt(0)
    """)
    for dd in range(2):
        for j in range(4):
            g(f"v_add_f32 v{20+8*dd+j}, v{20+8*dd+j}, v{24+8*dd+j}")
        for j in range(4):
            g(f"v_mul_f32 v{20+8*dd+j}, v{20+8*dd+j}, v{106+dd}")
        g(f"v_cvt_pk_f16_f32 v{36+2*dd}, v{20+8*dd}, v{21+8*dd}")
        g(f"v_cvt_pk_f16_f32 v{37+2*dd}, v{22+8*dd}, v{23+8*dd}")
        g(f"ds_write_b64 v12, v[{36+2*dd}:{37+2*dd}] offset:{KR_PITCH*dd}")
    g(f"""
    v_cmp_gt_u32 vcc, 8, v0
    s_and_saveexec_b64 s[30:31], vcc
    ds_write_b64 v12, v[40:41] offset:4096
    ds_write_b64 v12, v[40:41] offset:{KR_PITCH+4096}
    s_mov_b64 exec, s[30:31]
    s_waitcnt lgkmcnt(0)
    s_barrier
    ds_read_b128 v[64:67], v13
    ds_read_b128 v[68:71], v13 offset:16
    v_lshrrev_b32 v5, 2, v3
    v_and_b32 v6, 3, v3
    v_lshlrev_b32 v6, 4, v6
    v_mul_u32_u24 v5, {KR_PITCH}, v5
    v_add_u32 v5, v5, v6
    v_add_u32 v5, 4096, v5
    v_add_u32 v5, s27, v5
    v_add_u32 v6, s27, v4
    v_lshrrev_b32 v24, 2, v3
    v_and_b32 v25, 3, v3
    v_mul_u32_u24 v24, 80, v24
    v_lshlrev_b32 v25, 4, v25
    v_add_u32 v24, v24, v25
    v_add_u32 v24, s27, v24
    s_waitcnt lgkmcnt(0)
    s_barrier
    v_cmp_gt_u32 vcc, 155, v3
    s_and_saveexec_b64 s[30:31], vcc
    ds_write_b128 v6, v[40:43] offset:{CV_COPY}
    s_mov_b64 exec, s[30:31]
    v_cmp_gt_u32 vcc, 32, v3
    s_and_saveexec_b64 s[30:31], vcc
    ds_write_b128 v5, v[40:43]
    s_mov_b64 exec, s[30:31]
    ds_write_b128 v6, v[64:67]
    ds_write_b128 v6, v[66:69] offset:{4*KR_PITCH}
    """)
    for j in range(1, 7):
        g(f"v_mov_b32 v{73+j}, v{64+j}")
    for j in range(7):
        g(f"v_alignbit_b32 v{80+j}, v{65+j}, v{64+j}, 16")
    for j in range(1, 7):
        g(f"v_alignbit_b32 v{87+j}, v{65+j}, v{64+j}, 16")
    g(f"""
    ds_write_b128 v6, v[74:77] offset:{2*KR_PITCH}
    ds_write_b128 v6, v[76:79] offset:{6*KR_PITCH}
    ds_write_b128 v6, v[80:83] offset:{1*KR_PITCH}
    ds_write_b128 v6, v[82:85] offset:{5*KR_PITCH}
    ds_write_b128 v6, v[88:91] offset:{3*KR_PITCH}
    ds_write_b128 v6, v[90:93] offset:{7*KR_PITCH}
    s_waitcnt vmcnt(0)
    ds_write_b128 v24, v[108:111] offset:{CV_COPY+31*80}
    s_lshr_b32 s30, s36, 16
    s_and_b32 s31, s36, 0xffff
    s_cmp_eq_u32 s24, 0
    s_cselect_b32 s36, s31, s30
    v_mov_b32 v60, s36
    s_cselect_b64 vcc, -1, 0
    v_cndmask_b32 v61, v105, v104, vcc
    """)
    g(f"""
    v_and_b32 v3, 31, v1
    v_lshrrev_b32 v4, 5, v1
    v_and_b32 v5, 7, v3
    v_sub_u32 v5, 7, v5
    v_mul_u32_u24 v5, {KR_PITCH}, v5
    v_lshrrev_b32 v6, 3, v3
    v_sub_u32 v6, v4, v6
    v_lshlrev_b32 v6, 4, v6
    v_add_u32 v5, v5, v6
    s_lshl_b32 s28, s26, 9
    s_sub_u32 s28, {4080 - 64*39}, s28
    s_add_u32 s28, s28, s27
    v_add_u32 v5, s28, v5
    v_mul_u32_u24 v6, 80, v3
    v_lshlrev_b32 v7, 4, v4
    v_add_u32 v6, v6, v7
    s_mul_i32 s28, s26, {8*80}
    s_sub_u32 s28, {CV_COPY + 24*80}, s28
    s_add_u32 s28, s28, s27
    v_add_u32 v6, s28, v6
    """)
    for i in range(32):
        g(f"v_mov_b32 v{24+i}, 0")
    g("s_waitcnt lgkmcnt(0)\ns_barrier")
    g.stamp(4)
    AC = 24
    def rd(step):
        dl, kk = step >> 1, step & 1
        ao = (7-dl)*64 + 32*kk
        bo = (7-dl)*80 + 32*kk
        f = 64 + 16*(step % 3)
        g(f"ds_read_b128 v[{f}:{f+3}], v5 offset:{ao+2048}")
        g(f"ds_read_b128 v[{f+4}:{f+7}], v5 offset:{ao}")
        g(f"ds_read_b128 v[{f+8}:{f+11}], v6 offset:{bo}")
        g(f"ds_read_b128 v[{f+12}:{f+15}], v6 offset:{bo+2560}")
    rd(0); rd(1)
    for step in range(16):
        if step + 2 < 16:
            rd(step+2)
            g("s_waitcnt lgkmcnt(8)")
        elif step + 1 < 16:
            g("s_waitcnt lgkmcnt(4)")
        else:
            g("s_waitcnt lgkmcnt(0)")
        f = 64 + 16*(step % 3)
        g(f"v_mfma_f32_32x32x16_f16 v[{AC}:{AC+15}], v[{f}:{f+3}], v[{f+8}:{f+11}], v[{AC}:{AC+15}]")
        g(f"v_mfma_f32_32x32x16_f16 v[{AC+16}:{AC+31}], v[{f}:{f+3}], v[{f+12}:{f+15}], v[{AC+16}:{AC+31}]")
        g(f"v_mfma_f32_32x32x16_f16 v[{AC+16}:{AC+31}], v[{f+4}:{f+7}], v[{f+8}:{f+11}], v[{AC+16}:{AC+31}]")
    g.stamp(5)
    g(f"""
    s_barrier
    v_lshlrev_b32 v7, 4, v1
    s_lshl_b32 s28, s26, 13
    s_add_u32 s28, s28, s27
    v_add_u32 v8, s28, v7
    s_lshl_b32 s29, s26, 11
    s_add_u32 s29, s29, s27
    v_add_u32 v9, s29, v7
    v_mul_u32_u24 v10, 80, v3
    v_lshlrev_b32 v11, 3, v4
    v_add_u32 v10, v10, v11
    s_lshr_b32 s28, s26, 1
    s_mul_i32 s28, s28, 2560
    s_and_b32 s29, s26, 1
    s_lshl_b32 s29, s29, 5
    s_add_u32 s28, s28, s29
    s_add_u32 s28, s28, {CV_COPY + 31*80}
    s_add_u32 s28, s28, s27
    v_add_u32 v10, s28, v10
    s_nop 4
    """)
    for i in range(8):
        g(f"ds_write_b128 v8, v[{AC+4*i}:{AC+4*i+3}] offset:{1024*i}")
    g("ds_read_b64 v[12:13], v10\nds_read_b64 v[14:15], v10 offset:16")
    g.stamp(7)
    g("s_waitcnt lgkmcnt(0)\ns_barrier")
    g.stamp(8)
    for w in range(4):
        g(f"ds_read_b128 v[{64+8*w}:{67+8*w}], v9 offset:{8192*w}")
        g(f"ds_read_b128 v[{68+8*w}:{71+8*w}], v9 offset:{8192*w+1024}")
    g(f"""
    v_lshlrev_b32 v60, 16, v60
    v_lshlrev_b32 v16, 6, v3
    v_lshlrev_b32 v17, 4, v4
    v_add_u32 v16, v16, v17
    s_lshr_b32 s28, s26, 1
    s_lshl_b32 s28, s28, 11
    s_and_b32 s29, s26, 1
    s_lshl_b32 s29, s29, 5
    s_add_u32 s28, s28, s29
    s_lshl_b32 s29, s25, 12
    s_add_u32 s28, s28, s29
    v_cvt_f32_f16 v24, v12
    v_cvt_f32_f16_sdwa v25, v12 dst_sel:DWORD dst_unused:UNUSED_PAD src0_sel:WORD_1
    v_cvt_f32_f16 v26, v13
    v_cvt_f32_f16_sdwa v27, v13 dst_sel:DWORD dst_unused:UNUSED_PAD src0_sel:WORD_1
    v_cvt_f32_f16 v28, v14
    v_cvt_f32_f16_sdwa v29, v14 dst_sel:DWORD dst_unused:UNUSED_PAD src0_sel:WORD_1
    v_cvt_f32_f16 v30, v15
    v_cvt_f32_f16_sdwa v31, v15 dst_sel:DWORD dst_unused:UNUSED_PAD src0_sel:WORD_1
    """)
    for i in range(8):
        g(f"v_mul_f32 v{24+i}, v{24+i}, v60")
    for j in range(4):
        g(f"v_cvt_pk_bf16_f32 v{32+j}, v{24+2*j}, v{24+2*j+1}")
    for j in range(4):
        g(f"v_lshlrev_b32 v{24+2*j}, 16, v{32+j}")
        g(f"v_and_b32 v{24+2*j+1}, 0xffff0000, v{32+j}")
    g("s_waitcnt lgkmcnt(0)")
    for i in range(8):
        g(f"v_add_f32 v{64+i}, v{64+i}, v{72+i}")
        g(f"v_add_f32 v{80+i}, v{80+i}, v{88+i}")
    for i in range(8):
        g(f"v_add_f32 v{64+i}, v{64+i}, v{80+i}")
    for i in range(8):
        g(f"v_mul_f32 v{64+i}, v{64+i}, v61")
    for j in range(4):
        g(f"v_cvt_pk_bf16_f32 v{32+j}, v{64+2*j}, v{64+2*j+1}")
    for j in range(4):
        g(f"v_lshlrev_b32 v{64+2*j}, 16, v{32+j}")
        g(f"v_and_b32 v{64+2*j+1}, 0xffff0000, v{32+j}")
    for i in range(8):
        g(f"v_add_f32 v{64+i}, v{64+i}, v{24+i}")
    for j in range(4):
        g(f"v_cvt_pk_bf16_f32 v{32+j}, v{64+2*j}, v{64+2*j+1}")
    g(f"""
    s_nop 1
    v_permlane32_swap_b32 v32, v34
    v_permlane32_swap_b32 v33, v35
    s_nop 0
    buffer_store_dwordx4 v[32:35], v16, s[16:19], s28 offen sc1
    """)
    g.stamp(9)
    g(f"""
    s_waitcnt vmcnt(0)
    """)
    g.stamp(10)
    g(f"""
    s_barrier
    s_cmp_lg_u32 s3, 0
    s_cbranch_scc1 CV_NOSIG
    s_lshr_b32 s28, s2, 5
    s_add_u32 s28, s28, 21
    s_lshl_b32 s28, s28, 12
    s_and_b32 s29, s2, 31
    s_lshl_b32 s29, s29, 2
    s_add_u32 s28, s28, s29
    s_add_u32 s28, s28, {WS_FL}
    v_mov_b32 v12, s28
    v_mov_b32 v13, 0x01010101
    v_cmp_eq_u32 vcc, 0, v1
    s_and_saveexec_b64 s[30:31], vcc
    global_store_dword v12, v13, s[22:23] sc1
    s_mov_b64 exec, s[30:31]
    """)
    g.label("CV_NOSIG")
    g.stamp(6)
    g.stamp_end(11, "cv")
    g("s_endpgm")

def gen_gemm2(g):
    g(f"""
    s_load_dwordx2 s[4:5], s[0:1], 0
    s_load_dwordx2 s[6:7], s[0:1], 104
    s_and_b32 s25, s2, 6
    s_lshl_b32 s25, s25, 2
    s_lshr_b32 s24, s2, 3
    s_lshr_b32 s26, s24, 2
    s_add_u32 s25, s25, s26
    s_and_b32 s24, s24, 3
    s_and_b32 s26, s2, 1
    s_lshl_b32 s26, s26, 2
    s_add_u32 s24, s24, s26
    s_mul_i32 s36, s3, {7*1024}
    v_lshlrev_b32 v5, 4, v1
    v_add_u32 v8, s36, v5
    v_add_u32 v9, 4096, v8
    s_mul_i32 s40, s24, {4*56*1024}
    s_add_u32 s41, s40, {56*1024}
    s_add_u32 s42, s40, {2*56*1024}
    s_add_u32 s43, s40, {3*56*1024}
    s_mul_i32 s44, s25, {4*56*1024}
    s_add_u32 s45, s44, {56*1024}
    s_add_u32 s46, s44, {2*56*1024}
    s_add_u32 s47, s44, {3*56*1024}
    s_waitcnt lgkmcnt(0)
    """)
    g.srd(8, 22, 512*3584, WS_W2F)
    g.srd(12, 22, 2048*3584, WS_ACT)
    g.srd(16, 22, 2048*1024, WS_AT)
    g.srd(28, 4, 2048*1024)
    g.srd(32, 6, 2048*1024)
    g("s_cmp_lg_u32 s3, 0\ns_cbranch_scc1 G2_NOPOLL0")
    wait_zero(g, "g2", 2, 15)
    g(f"""
    s_lshr_b32 s48, s24, 1
    s_add_u32 s48, s48, 1
    s_lshl_b32 s48, s48, 12
    s_add_u32 s48, s48, {WS_FL}
    """)
    poll_flags(g, "g2w", 48, 28, 2, 15, base="s[22:23]", slp=8)
    g.label("G2_NOPOLL0")
    g("s_barrier")
    AC = 16
    AR = [80, 96]
    BR = 112
    def ldA(st):
        fb = AR[st & 1]; va = 8 + (st >> 2)
        for i in range(4):
            g(f"buffer_load_dwordx4 v[{fb+4*i}:{fb+4*i+3}], v{va}, s[8:11], s{40+i} offen offset:{1024*(st&3)} sc1")
    def ldB(st, j):
        va = 8 + (st >> 2)
        g(f"buffer_load_dwordx4 v[{BR+4*j}:{BR+4*j+3}], v{va}, s[12:15], s{44+j} offen offset:{1024*(st&3)} sc1")
    ldA(0)
    ldA(1)
    g(f"""
    v_and_b32 v3, 15, v1
    v_lshrrev_b32 v4, 4, v1
    s_lshl_b32 s37, s25, 6
    s_lshr_b32 s38, s3, 1
    s_lshl_b32 s38, s38, 4
    s_add_u32 s37, s37, s38
    v_add_u32 v6, s37, v3
    v_lshlrev_b32 v7, 10, v6
    v_lshlrev_b32 v14, 3, v4
    v_add_u32 v7, v7, v14
    s_lshl_b32 s38, s24, 7
    s_and_b32 s39, s3, 1
    s_lshl_b32 s48, s39, 6
    s_add_u32 s38, s38, s48
    v_add_u32 v7, s38, v7
    buffer_load_dwordx2 v[10:11], v7, s[28:31], 0 offen
    buffer_load_dwordx2 v[12:13], v7, s[28:31], 0 offen offset:32
    """)
    for i in range(64):
        g(f"v_mov_b32 v{AC+i}, 0")
    g(f"""
    s_mul_i32 s37, s3, 224
    s_lshr_b32 s38, s37, 7
    s_add_u32 s37, s37, 223
    s_lshr_b32 s37, s37, 7
    s_lshr_b32 s48, s25, 1
    s_add_u32 s48, s48, 5
    s_lshl_b32 s48, s48, 12
    s_add_u32 s48, s48, {WS_FL}
    v_add_u32 v15, s38, v1
    v_min_u32 v15, s37, v15
    v_lshlrev_b32 v15, 2, v15
    v_add_u32 v15, s48, v15
    s_mov_b32 s49, 0x01010101
    """)
    g.label("POLL_g2a")
    g(f"""
    global_load_dword v2, v15, s[22:23] sc1
    s_waitcnt vmcnt(0)
    v_cmp_ne_u32 vcc, s49, v2
    s_nop 3
    s_cmp_eq_u64 vcc, 0
    s_cbranch_scc1 POLLD_g2a
    s_sleep 8
    s_branch POLL_g2a
    """)
    g.label("POLLD_g2a")
    g.stamp(10)
    for j in range(4): ldB(0, j)
    order = ['A0']*1
    seq = [('A',0)]*4 + [('A',1)]*4 + [('B',0,j) for j in range(4)]
    for st in range(7):
        for j in range(4):
            last = max(i for i, e in enumerate(seq) if (e[0]=='A' and e[1]==st) or (e[0]=='B' and e[1]==st and e[2]==j))
            g(f"s_waitcnt vmcnt({len(seq)-1-last})")
            fa = AR[st & 1]
            for i in range(4):
                a = AC + 4*(4*i+j)
                g(f"v_mfma_f32_16x16x32_bf16 v[{a}:{a+3}], v[{fa+4*i}:{fa+4*i+3}], v[{BR+4*j}:{BR+4*j+3}], v[{a}:{a+3}]")
            if st + 1 < 7:
                ldB(st+1, j); seq.append(('B', st+1, j))
        if st + 2 < 7:
            ldA(st+2); seq += [('A', st+2)]*4
    g.stamp(11)
    g(f"""
    v_lshlrev_b32 v14, 14, v4
    v_lshlrev_b32 v6, 1, v6
    v_add_u32 v14, v14, v6
    s_and_b32 s39, s3, 1
    s_lshl_b32 s38, s24, 18
    s_lshl_b32 s48, s39, 17
    s_add_u32 s38, s38, s48
    v_add_u32 v14, s38, v14
    v_add_u32 v112, 4096, v14
    v_add_u32 v113, 8192, v14
    v_add_u32 v114, 12288, v14
    v_mov_b32 v115, v7
    s_and_b32 s36, s3, 3
    s_lshl_b32 s36, s36, 14
    v_add_u32 v6, s36, v5
    s_add_u32 s48, s24, 21
    s_lshl_b32 s48, s48, 12
    s_add_u32 s48, s48, {WS_FL}
    s_cmp_lt_u32 s3, 4
    s_cbranch_scc1 G2_LOW1
    """)
    for t in range(16):
        g(f"ds_write_b128 v6, v[{AC+4*t}:{AC+4*t+3}] offset:{t*1024}")
    g("s_branch G2_J1")
    g.label("G2_LOW1")
    g("s_cmp_lg_u32 s3, 0\ns_cbranch_scc1 G2_J1")
    poll_flags(g, "g2", 48, 32, 2, 15, base="s[22:23]", slp=16)
    g.label("G2_J1")
    g("s_waitcnt lgkmcnt(0)\ns_barrier")
    g("s_mov_b32 s39, 65536")
    for i in range(2):
        for r in range(4):
            va = [14, 112, 113, 114][r]
            g(f"buffer_load_ushort v{116+4*i+r}, v{va}, s[16:19], {'0' if i == 0 else 's39'} offen sc1")
    g("s_cmp_ge_u32 s3, 4\ns_cbranch_scc1 G2_J2")
    for h in range(2):
        for t in range(8):
            g(f"ds_read_b128 v[{80+4*t}:{83+4*t}], v6 offset:{(8*h+t)*1024}")
        g("s_waitcnt lgkmcnt(0)")
        for t in range(8):
            for r in range(4):
                g(f"v_add_f32 v{AC+32*h+4*t+r}, v{AC+32*h+4*t+r}, v{80+4*t+r}")
    for t in range(16):
        g(f"ds_write_b128 v6, v[{AC+4*t}:{AC+4*t+3}] offset:{t*1024}")
    g.label("G2_J2")
    g(f"""
    s_and_b32 s37, s3, 1
    s_lshl_b32 s37, s37, 13
    s_lshr_b32 s38, s3, 1
    s_lshl_b32 s38, s38, 10
    s_add_u32 s37, s37, s38
    v_add_u32 v7, s37, v5
    s_waitcnt lgkmcnt(0)
    s_barrier
    """)
    for i in range(2):
        for w in range(4):
            g(f"ds_read_b128 v[{16+16*i+4*w}:{19+16*i+4*w}], v7 offset:{w*16384+i*4096}")
    g("s_waitcnt lgkmcnt(0)")
    for i in range(2):
        for r in range(4):
            b = 16+16*i+r
            g(f"v_add_f32 v{b}, v{b}, v{b+4}")
            g(f"v_add_f32 v{b+8}, v{b+8}, v{b+12}")
        for r in range(4):
            b = 16+16*i+r
            g(f"v_add_f32 v{b}, v{b}, v{b+8}")
    g("s_waitcnt vmcnt(0)")
    for i in range(2):
        b = 16+16*i
        g(f"""
        v_cvt_pk_bf16_f32 v{b+4}, v{b}, v{b+1}
        v_cvt_pk_bf16_f32 v{b+5}, v{b+2}, v{b+3}
        v_lshlrev_b32 v{b}, 16, v{b+4}
        v_and_b32 v{b+1}, 0xffff0000, v{b+4}
        v_lshlrev_b32 v{b+2}, 16, v{b+5}
        v_and_b32 v{b+3}, 0xffff0000, v{b+5}
        v_lshlrev_b32 v{b+4}, 16, v{10+2*i}
        v_and_b32 v{b+5}, 0xffff0000, v{10+2*i}
        v_lshlrev_b32 v{b+6}, 16, v{11+2*i}
        v_and_b32 v{b+7}, 0xffff0000, v{11+2*i}
        v_lshlrev_b32 v{b+8}, 16, v{116+4*i}
        v_lshlrev_b32 v{b+9}, 16, v{117+4*i}
        v_lshlrev_b32 v{b+10}, 16, v{118+4*i}
        v_lshlrev_b32 v{b+11}, 16, v{119+4*i}
        v_add_f32 v{b+4}, v{b+4}, v{b+8}
        v_add_f32 v{b+5}, v{b+5}, v{b+9}
        v_add_f32 v{b+6}, v{b+6}, v{b+10}
        v_add_f32 v{b+7}, v{b+7}, v{b+11}
        v_cvt_pk_bf16_f32 v{b+8}, v{b+4}, v{b+5}
        v_cvt_pk_bf16_f32 v{b+9}, v{b+6}, v{b+7}
        v_lshlrev_b32 v{b+4}, 16, v{b+8}
        v_and_b32 v{b+5}, 0xffff0000, v{b+8}
        v_lshlrev_b32 v{b+6}, 16, v{b+9}
        v_and_b32 v{b+7}, 0xffff0000, v{b+9}
        v_add_f32 v{b+4}, v{b+4}, v{b}
        v_add_f32 v{b+5}, v{b+5}, v{b+1}
        v_add_f32 v{b+6}, v{b+6}, v{b+2}
        v_add_f32 v{b+7}, v{b+7}, v{b+3}
        v_cvt_pk_bf16_f32 v{b+8}, v{b+4}, v{b+5}
        v_cvt_pk_bf16_f32 v{b+9}, v{b+6}, v{b+7}
        buffer_store_dwordx2 v[{b+8}:{b+9}], v115, s[32:35], 0 offen offset:{32*i}
        """)
    g.stamp_end(12, "g2")
    g("s_endpgm")

HEADER = open("parallel_sum__ssm_conv_s4__dense_activation_mish__prompt.s.ref").read().split("; Override launch")[0]

def build():
    g = G()
    g.raw(HEADER.rstrip("\n"))
    g.raw(f"; @launch grid=(512,1,1) block=(512,1,1) lds=81920")
    g.raw('.amdgcn_target "amdgcn-amd-amdhsa--gfx950"')
    g.raw(".text")
    gen_mega(g)
    g.raw('.section .rodata,"a"')
    g.raw(".p2align 6")
    g.raw(kernel_desc("parallel_sum__ssm_conv_s4__dense_activation_mish__prompt_kernel", 128))
    return g.text()

if __name__ == "__main__":
    out = sys.argv[1] if len(sys.argv) > 1 else "parallel_sum__ssm_conv_s4__dense_activation_mish__prompt.s"
    txt = build()
    if os.environ.get('LIST'):
        txt = txt.replace("; @launch grid=(512,1,1)", "; @launch kernel=parallel_sum__ssm_conv_s4__dense_activation_mish__prompt_kernel grid=(512,1,1)")
    open(out, "w").write(txt)
    print("written", out)
```

```python
import sys, struct, os
STAMP = os.environ.get('STAMP') is not None
STAMP_WG = int(os.environ.get('STAMP', '0'))
TL = os.environ.get('TL') is not None

def f2u(x): return struct.unpack('<I', struct.pack('<f', x))[0]
def fhex(x): return "0x%08x" % f2u(x)
LOG2E = 1.4426950408889634
INV2PI = 0.15915494309189535

WS_ST  = 0x000000
WS_CS  = 0x010000
WS_XT  = 0x200000
WS_KR  = 0x400000
KR_PITCH = 4160
WS_KS  = 0x620000
WS_FL  = 0x640000
WS_F2  = 0x680000
WS_W2F = 0x800000
WS_AT  = 0xA00000
WS_ACT = 0xC00000

class G:
    def __init__(self): self.L = []
    def __call__(self, s):
        for line in s.strip('\n').split('\n'):
            if line.strip(): self.L.append("    " + line.strip())
    def label(self, s): self.L.append(s + ":")
    def raw(self, s): self.L.append(s)
    def text(self): return "\n".join(self.L) + "\n"
    def stamp(self, i):
        if STAMP: self(f"s_memtime s[{64+2*i}:{65+2*i}]")
    def stamp_end(self, n, tag):
        if TL:
            base = 0x3000000
            self(f"""
            s_waitcnt vmcnt(0) lgkmcnt(0)
            s_memrealtime s[90:91]
            s_memtime s[92:93]
            s_waitcnt lgkmcnt(0)
            s_cmp_lg_u32 s94, 0
            s_cbranch_scc1 TL_SKIP_{tag}
            s_lshl_b32 s83, s95, 4
            s_add_u32 s83, s83, {base}
            v_mov_b32 v0, s83
            v_mov_b32 v4, s88
            v_mov_b32 v5, s90
            s_sub_u32 s92, s92, s86
            v_mov_b32 v6, s92
            s_sub_u32 s84, s84, s86
            v_mov_b32 v7, s84
            global_store_dwordx4 v0, v[4:7], s[22:23]
            """)
            self.label(f"TL_SKIP_{tag}")
        if not STAMP: return
        self(f"""
        s_waitcnt vmcnt(0) lgkmcnt(0)
        s_memtime s[{64+2*n}:{65+2*n}]
        s_waitcnt lgkmcnt(0)
        s_cmp_lg_u32 s95, {STAMP_WG}
        s_cbranch_scc1 ST_SKIP_{tag}
        s_cmp_lg_u32 s94, 0
        s_cbranch_scc1 ST_SKIP_{tag}
        v_mov_b32 v0, 0x3200000
        """)
        for i in range(n+1):
            self(f"s_sub_u32 s93, s{64+2*i}, s64")
            self(f"v_mov_b32 v1, s93")
            self(f"global_store_dword v0, v1, s[22:23] offset:{4*i}")
        self.label(f"ST_SKIP_{tag}")
    def srd(self, d, pb, nbytes, off=0):
        if off:
            self(f"s_add_u32 s{d}, s{pb}, {off}")
            self(f"s_addc_u32 s{d+1}, s{pb+1}, 0")
        else:
            self(f"s_mov_b32 s{d}, s{pb}")
            self(f"s_mov_b32 s{d+1}, s{pb+1}")
        self(f"s_mov_b32 s{d+2}, {nbytes}")
        self(f"s_mov_b32 s{d+3}, 0x00020000")
    def poll(self, tag, soff, target, vt, vz):
        self(f"v_mov_b32 v{vz}, s{soff}")
        self.label(f"POLL_{tag}")
        self(f"""
        global_load_dword v{vt}, v{vz}, s[20:21] sc1
        s_waitcnt vmcnt(0)
        v_readfirstlane_b32 s{soff+1}, v{vt}
        s_nop 3
        s_cmp_ge_u32 s{soff+1}, {target}
        s_cbranch_scc1 POLLD_{tag}
        s_sleep 8
        s_branch POLL_{tag}
        """)
        self.label(f"POLLD_{tag}")

def poll_flags(g, tag, soff, ndw, vt, vz, base='s[20:21]', slp=8):
    g(f"""
    v_min_u32 v{vz}, {ndw-1}, v1
    v_lshlrev_b32 v{vz}, 2, v{vz}
    v_add_u32 v{vz}, s{soff}, v{vz}
    s_mov_b32 s{soff+1}, 0x01010101
    """)
    g.label(f"POLL_{tag}")
    g(f"""
    global_load_dword v{vt}, v{vz}, {base} sc1
    s_waitcnt vmcnt(0)
    v_cmp_ne_u32 vcc, s{soff+1}, v{vt}
    s_nop 3
    s_cmp_eq_u64 vcc, 0
    s_cbranch_scc1 POLLD_{tag}
    s_sleep {slp}
    s_branch POLL_{tag}
    """)
    g.label(f"POLLD_{tag}")

def wait_zero(g, tag, vt, vz):
    g(f"v_mov_b32 v{vz}, 0")
    g.label(f"WZ_{tag}")
    g(f"""
    global_load_dword v{vt}, v{vz}, s[20:21] sc1
    s_waitcnt vmcnt(0)
    v_cmp_eq_u32 vcc, 0, v{vt}
    s_nop 3
    s_cmp_eq_u64 vcc, 0
    s_cbranch_scc1 WZD_{tag}
    s_sleep 8
    s_branch WZ_{tag}
    """)
    g.label(f"WZD_{tag}")

def set_flag(g, sreg, va, vb):
    g(f"""
    v_mov_b32 v{va}, s{sreg}
    v_mov_b32 v{vb}, 0x01010101
    v_cmp_eq_u32 vcc, 0, v1
    s_and_saveexec_b64 s[50:51], vcc
    global_store_dword v{va}, v{vb}, s[22:23] sc1
    s_mov_b64 exec, s[50:51]
    """)

def cons_addr(g, vT, vD, vO, vx):
    g(f"""
    v_and_b32 v{vO}, 7, v{vT}
    v_lshlrev_b32 v{vO}, 2, v{vO}
    v_and_b32 v{vx}, 3, v{vD}
    v_add_u32 v{vO}, v{vO}, v{vx}
    v_lshlrev_b32 v{vO}, 3, v{vO}
    v_lshrrev_b32 v{vx}, 3, v{vT}
    v_lshlrev_b32 v{vx}, 1, v{vx}
    v_add_u32 v{vO}, v{vO}, v{vx}
    v_lshrrev_b32 v{vx}, 2, v{vD}
    v_add_u32 v{vO}, v{vO}, v{vx}
    v_lshlrev_b32 v{vO}, 8, v{vO}
    v_add_u32 v{vO}, {WS_F2}, v{vO}
    """)

def kernel_begin(g, name):
    g.raw(f".globl {name}")
    g.raw(".p2align 8")
    g.raw(f".type {name},@function")
    g.label(name)
    g.stamp(0)
    G.kname = name
    if TL:
        g("s_memrealtime s[88:89]\ns_memtime s[86:87]")

def kernel_desc(name, vgpr, sgpr=96):
    acc = (vgpr + 3)//4*4
    return f""".amdhsa_kernel {name}
  .amdhsa_next_free_vgpr {vgpr}
  .amdhsa_next_free_sgpr {sgpr}
  .amdhsa_accum_offset {acc}
  .amdhsa_group_segment_fixed_size 0
  .amdhsa_kernarg_size 128
  .amdhsa_user_sgpr_count 2
  .amdhsa_user_sgpr_kernarg_segment_ptr 1
  .amdhsa_system_sgpr_workgroup_id_x 1
.end_amdhsa_kernel
"""
DPP = ["quad_perm:[1,0,3,2]", "quad_perm:[2,3,0,1]", "row_half_mirror", "row_mirror",
       "row_bcast:15 row_mask:0xa", "row_bcast:31 row_mask:0xc"]

KA_NL = 128
KA_NW = 112
KA_NG = 224
KA_TOTAL = KA_NL + KA_NW + KA_NG
KA_LDS = 81920
TP = 272
TCH = 96*TP
LNP = 1056
TRP = 288

def gen_mega(g):
    kernel_begin(g, "parallel_sum__ssm_conv_s4__dense_activation_mish__prompt_kernel")
    g(f"""
    s_cmp_ge_u32 s2, 512
    s_cbranch_scc1 M_END
    s_load_dwordx4 s[20:23], s[0:1], 112
    v_and_b32 v1, 63, v0
    v_lshrrev_b32 v2, 6, v0
    s_nop 0
    v_readfirstlane_b32 s3, v2
    s_mov_b32 s95, s2
    s_mov_b32 s94, s3
    s_cmp_ge_u32 s2, 256
    s_cbranch_scc1 M_G
    """)
    g(f"""
    s_setprio 3
    s_load_dwordx4 s[4:7], s[0:1], 56
    s_min_u32 s36, s3, 5
    s_lshl_b32 s36, s36, 3
    s_add_u32 s36, s36, 8
    s_load_dwordx2 s[8:9], s[0:1], s36
    s_lshl_b32 s28, s2, 2
    s_lshl_b32 s36, s2, 9
    v_and_b32 v5, 31, v1
    v_lshlrev_b32 v5, 4, v5
    v_add_u32 v6, s36, v5
    s_waitcnt lgkmcnt(0)
    s_load_dword s52, s[4:5], s28
    s_load_dword s53, s[6:7], s28
    global_load_dwordx4 v[112:115], v6, s[8:9]
    s_cmp_lg_u32 s2, 0
    s_cbranch_scc1 M_NOZ
    v_lshrrev_b32 v4, 6, v0
    v_lshlrev_b32 v4, 12, v4
    v_lshlrev_b32 v5, 2, v1
    v_add_u32 v4, v4, v5
    v_add_u32 v4, {WS_FL}, v4
    v_add_u32 v5, 0x8000, v4
    v_add_u32 v6, 0x10000, v4
    v_add_u32 v7, 0x18000, v4
    v_mov_b32 v8, 0
    global_store_dword v4, v8, s[22:23] sc1
    global_store_dword v5, v8, s[22:23] sc1
    global_store_dword v6, v8, s[22:23] sc1
    global_store_dword v7, v8, s[22:23] sc1
    v_mov_b32 v9, 0
    v_mov_b32 v10, 0
    v_mov_b32 v11, 0
    v_lshlrev_b32 v4, 4, v0
    v_add_u32 v4, {WS_F2}, v4
    """)
    for i in range(8):
        g(f"global_store_dwordx4 v4, v[8:11], s[22:23] sc1")
        if i < 7: g("v_add_u32 v4, 8192, v4")
    g(f"""
    s_waitcnt vmcnt(0)
    s_barrier
    s_cmp_lg_u32 s3, 0
    s_cbranch_scc1 M_NOZ
    v_mov_b32 v4, 0
    v_mov_b32 v5, 1
    v_cmp_eq_u32 vcc, 0, v1
    s_and_saveexec_b64 s[50:51], vcc
    global_store_dword v4, v5, s[20:21] sc1
    s_mov_b64 exec, s[50:51]
    """)
    g.label("M_NOZ")
    g(f"""
    s_mov_b32 s55, 0
    s_cmp_ge_u32 s2, {KA_NL}
    s_cbranch_scc1 M_NOTLN
    """)
    gen_ln(g)
    g("s_branch M_CONV")
    g.label("M_NOTLN")
    g(f"""
    s_cmp_ge_u32 s2, {KA_NL+KA_NW}
    s_cbranch_scc1 M_NOROLE
    """)
    gen_w2f(g)
    g("s_branch M_CONV")
    g.label("M_NOROLE")
    g(f"s_cmp_ge_u32 s2, {KA_NL+KA_NW+14}\ns_cbranch_scc1 M_NOROLE2")
    gen_cs(g)
    g("s_branch M_CONV")
    g.label("M_NOROLE2")
    g("s_waitcnt vmcnt(0)")
    g.label("M_CONV")
    gen_conv(g)
    g.label("M_G")
    g(f"""
    {'s_setprio 2' if os.environ.get('GPRIO') else ''}
    s_sub_u32 s2, s2, 256
    s_load_dwordx2 s[56:57], s[0:1], 0
    s_load_dwordx2 s[58:59], s[0:1], 104
    s_lshr_b32 s62, s2, 3
    s_and_b32 s62, s62, 3
    s_and_b32 s63, s2, 1
    s_lshl_b32 s63, s63, 2
    s_add_u32 s62, s62, s63
    s_lshr_b32 s62, s62, 1
    s_add_u32 s62, s62, 1
    s_lshl_b32 s62, s62, 12
    s_add_u32 s62, s62, {WS_FL}
    s_mov_b32 s61, 0
    s_cmp_ge_u32 s2, {KA_NG}
    s_cbranch_scc1 M_G2PRE
    """)
    gen_gemm1(g)
    g("s_branch M_G2")
    g.label("M_G2PRE")
    g("s_waitcnt lgkmcnt(0)\ns_cmp_lg_u32 s3, 0\ns_cbranch_scc1 G2_NOPOLL0")
    wait_zero(g, "g2", 2, 15)
    poll_flags(g, "g2w", 62, 28, 2, 15, base="s[22:23]", slp=8)
    g.label("G2_NOPOLL0")
    g("s_barrier")
    g.label("M_G2")
    gen_gemm2(g)
    g.label("M_END")
    g("s_endpgm")

def gen_ln(g):
    NR = 2
    g(f"""
    s_load_dwordx2 s[4:5], s[0:1], 0
    s_lshl_b32 s6, s2, 4
    s_lshl_b32 s7, s3, 1
    s_add_u32 s6, s6, s7
    s_lshl_b32 s7, s6, 10
    v_lshlrev_b32 v3, 4, v1
    s_waitcnt lgkmcnt(0)
    """)
    g.srd(8, 4, 2048*1024)
    g.srd(16, 22, 2048*1024, WS_XT)
    for i in range(NR):
        g(f"buffer_load_dwordx4 v[{16+4*i}:{19+4*i}], v3, s[8:11], s7 offen offset:{1024*i}")
    g("s_waitcnt vmcnt(0)")
    X = 32
    for i in range(NR):
        for j in range(4):
            g(f"v_lshlrev_b32 v{X+8*i+2*j}, 16, v{16+4*i+j}")
            g(f"v_and_b32 v{X+8*i+2*j+1}, 0xffff0000, v{16+4*i+j}")
    def reduce(base):
        for mod in DPP:
            for i in range(NR):
                g(f"v_add_f32_dpp v{base+i}, v{base+i}, v{base+i} {mod}")
            g("s_nop 0")
    for i in range(NR):
        b = X+8*i
        g(f"v_add_f32 v{4+i}, v{b}, v{b+1}")
        g(f"v_add_f32 v{8+i}, v{b+2}, v{b+3}")
        g(f"v_add_f32 v{12+i}, v{b+4}, v{b+5}")
        g(f"v_add_f32 v{64+i}, v{b+6}, v{b+7}")
    for i in range(NR):
        g(f"v_add_f32 v{4+i}, v{4+i}, v{8+i}")
        g(f"v_add_f32 v{12+i}, v{12+i}, v{64+i}")
    for i in range(NR):
        g(f"v_add_f32 v{4+i}, v{4+i}, v{12+i}")
    g("s_nop 1")
    reduce(4)
    for i in range(NR):
        g(f"v_readlane_b32 s{32+i}, v{4+i}, 63")
    g("s_nop 1")
    for i in range(NR):
        g(f"v_mov_b32 v{4+i}, s{32+i}")
    for i in range(NR):
        g(f"v_mul_f32 v{4+i}, {fhex(1.0/512)}, v{4+i}")
    for i in range(NR):
        for j in range(8):
            g(f"v_sub_f32 v{64+j}, v{X+8*i+j}, v{4+i}")
        g(f"v_mul_f32 v{8+i}, v64, v64")
        g(f"v_mul_f32 v{12+i}, v65, v65")
        for j in range(2, 8):
            g(f"v_fma_f32 v{8+i+4*(j&1)}, v{64+j}, v{64+j}, v{8+i+4*(j&1)}")
        g(f"v_add_f32 v{8+i}, v{8+i}, v{12+i}")
    g("s_nop 1")
    reduce(8)
    for i in range(NR):
        g(f"v_readlane_b32 s{32+i}, v{8+i}, 63")
    g("s_nop 1")
    for i in range(NR):
        g(f"v_mov_b32 v{8+i}, s{32+i}")
    for i in range(NR):
        g(f"v_mul_f32 v{8+i}, {fhex(1.0/512)}, v{8+i}")
    for i in range(NR):
        g(f"v_cvt_pk_bf16_f32 v{12+i}, v{4+i}, v{8+i}")
    for i in range(NR):
        g(f"v_lshlrev_b32 v{4+i}, 16, v{12+i}")
        g(f"v_and_b32 v{8+i}, 0xffff0000, v{12+i}")
    for i in range(NR):
        g(f"v_add_f32 v{8+i}, {fhex(1e-5)}, v{8+i}")
    for i in range(NR):
        g(f"v_cvt_pk_bf16_f32 v{8+i}, v{8+i}, v{8+i}")
    for i in range(NR):
        g(f"v_lshlrev_b32 v{8+i}, 16, v{8+i}")
    for i in range(NR):
        g(f"v_sqrt_f32 v{8+i}, v{8+i}")
    g("s_nop 0")
    for i in range(NR):
        g(f"v_cvt_pk_bf16_f32 v{8+i}, v{8+i}, v{8+i}")
    for i in range(NR):
        g(f"v_lshlrev_b32 v{8+i}, 16, v{8+i}")
    for i in range(NR):
        g(f"v_rcp_f32 v{12+i}, v{8+i}")
    g("s_nop 0")
    for i in range(NR):
        g(f"v_fma_f32 v{64+i}, -v{8+i}, v{12+i}, 1.0")
    for i in range(NR):
        g(f"v_fma_f32 v{17+2*i}, v{64+i}, v{12+i}, v{12+i}")
    for i in range(NR):
        g(f"v_mul_f32 v{16+2*i}, v{4+i}, v{17+2*i}")
    g(f"""
    s_lshl_b32 s42, s6, 3
    v_mov_b32 v24, s42
    s_add_u32 s44, s22, {WS_ST}
    s_addc_u32 s45, s23, 0
    v_cmp_eq_u32 vcc, 0, v1
    s_and_saveexec_b64 s[46:47], vcc
    global_store_dwordx4 v24, v[16:19], s[44:45] sc1
    s_mov_b64 exec, s[46:47]
    s_mul_i32 s36, s3, {NR*LNP}
    s_add_u32 s36, s36, {L_T}
    v_add_u32 v2, s36, v3
    """)
    for i in range(NR):
        b = X+8*i
        for j in range(8):
            g(f"v_sub_f32 v{b+j}, v{b+j}, v{4+i}")
        for j in range(4):
            g(f"v_cvt_pk_bf16_f32 v{64+j}, v{b+2*j}, v{b+2*j+1}")
        for j in range(4):
            g(f"v_lshlrev_b32 v{b+2*j}, 16, v{64+j}")
            g(f"v_and_b32 v{b+2*j+1}, 0xffff0000, v{64+j}")
        for j in range(8):
            g(f"v_mul_f32 v{64+j}, v{b+j}, v{12+i}")
        for j in range(8):
            g(f"v_fma_f32 v{b+j}, -v{64+j}, v{8+i}, v{b+j}")
        for j in range(8):
            g(f"v_fma_f32 v{64+j}, v{b+j}, v{12+i}, v{64+j}")
        for j in range(4):
            g(f"v_cvt_pk_bf16_f32 v{72+j}, v{64+2*j}, v{64+2*j+1}")
        for j in range(4):
            g(f"v_lshlrev_b32 v{64+2*j}, 16, v{72+j}")
            g(f"v_and_b32 v{64+2*j+1}, 0xffff0000, v{72+j}")
        o = 76 + 4*(i & 1)
        for j in range(4):
            g(f"v_cvt_pk_f16_f32 v{o+j}, v{64+2*j}, v{64+2*j+1}")
        g(f"ds_write_b128 v2, v[{o}:{o+3}] offset:{i*LNP}")
    g("s_waitcnt lgkmcnt(0)\ns_barrier")
    g(f"""
    v_and_b32 v4, 15, v1
    v_lshrrev_b32 v5, 4, v1
    v_and_b32 v6, 1, v5
    v_lshrrev_b32 v5, 1, v5
    v_lshlrev_b32 v7, 3, v6
    v_lshrrev_b32 v8, 2, v4
    v_add_u32 v7, v7, v8
    v_mul_u32_u24 v7, {LNP}, v7
    v_and_b32 v8, 3, v4
    v_lshlrev_b32 v8, 3, v8
    v_add_u32 v7, v7, v8
    v_lshlrev_b32 v8, 5, v5
    v_add_u32 v7, v7, v8
    s_lshl_b32 s36, s3, 7
    s_add_u32 s36, s36, {L_T}
    v_add_u32 v7, s36, v7
    ds_read_b64_tr_b16 v[16:17], v7
    ds_read_b64_tr_b16 v[18:19], v7 offset:{4*LNP}
    ds_read_b64_tr_b16 v[20:21], v7 offset:64
    ds_read_b64_tr_b16 v[22:23], v7 offset:{4*LNP+64}
    v_lshlrev_b32 v8, 4, v5
    v_add_u32 v8, v8, v4
    v_lshlrev_b32 v8, 5, v8
    v_lshlrev_b32 v9, 4, v6
    v_add_u32 v8, v8, v9
    s_lshl_b32 s36, s2, 14
    s_lshl_b32 s37, s3, 11
    s_add_u32 s36, s36, s37
    s_waitcnt lgkmcnt(0)
    buffer_store_dwordx4 v[16:19], v8, s[16:19], s36 offen sc1
    buffer_store_dwordx4 v[20:23], v8, s[16:19], s36 offen offset:1024 sc1
    """)
    g(f"""
    s_and_b32 s55, s2, 63
    s_lshl_b32 s55, s55, 2
    s_lshr_b32 s37, s2, 6
    s_mul_i32 s37, s37, {29*4096}
    s_add_u32 s55, s55, s37
    s_add_u32 s55, s55, {WS_FL}
    v_mov_b32 v4, 0
    global_load_dword v117, v4, s[20:21] sc1
    """)

def gen_w2f(g):
    g(f"""
    s_load_dwordx2 s[6:7], s[0:1], 96
    v_and_b32 v4, 15, v1
    v_lshrrev_b32 v5, 4, v1
    s_sub_u32 s38, s2, {KA_NL}
    s_lshr_b32 s24, s38, 2
    s_and_b32 s25, s38, 3
    v_lshlrev_b32 v8, 4, v1
    s_lshl_b32 s28, s25, 3
    s_add_u32 s28, s28, s3
    s_mul_i32 s28, s28, 56
    s_lshl_b32 s29, s24, 1
    s_add_u32 s28, s28, s29
    s_lshl_b32 s28, s28, 10
    v_lshrrev_b32 v3, 4, v0
    v_and_b32 v6, 15, v0
    v_lshlrev_b32 v7, 10, v3
    v_lshlrev_b32 v6, 4, v6
    v_add_u32 v7, v7, v6
    s_lshl_b32 s30, s24, 16
    s_lshl_b32 s31, s25, 8
    s_add_u32 s30, s30, s31
    s_add_u32 s31, s30, 32768
    s_waitcnt lgkmcnt(0)
    """)
    g.srd(8, 6, 512*1792*2)
    g.srd(12, 22, 512*1792*2, WS_W2F)
    g(f"""
    buffer_load_dwordx4 v[12:15], v7, s[8:11], s30 offen
    buffer_load_dwordx4 v[16:19], v7, s[8:11], s31 offen
    v_mul_u32_u24 v10, {TRP}, v3
    v_add_u32 v10, v10, v6
    v_add_u32 v10, {L_T}, v10
    v_lshlrev_b32 v6, 3, v5
    v_lshrrev_b32 v7, 2, v4
    v_add_u32 v6, v6, v7
    v_mul_u32_u24 v6, {TRP}, v6
    v_and_b32 v7, 3, v4
    v_lshlrev_b32 v7, 3, v7
    v_add_u32 v6, v6, v7
    s_lshl_b32 s36, s3, 5
    s_add_u32 s36, s36, {L_T}
    v_add_u32 v6, s36, v6
    s_waitcnt vmcnt(0)
    ds_write_b128 v10, v[12:15]
    ds_write_b128 v10, v[16:19] offset:{32*TRP}
    s_waitcnt lgkmcnt(0)
    s_barrier
    ds_read_b64_tr_b16 v[20:21], v6
    ds_read_b64_tr_b16 v[22:23], v6 offset:{4*TRP}
    ds_read_b64_tr_b16 v[24:25], v6 offset:{32*TRP}
    ds_read_b64_tr_b16 v[26:27], v6 offset:{36*TRP}
    s_waitcnt lgkmcnt(0)
    buffer_store_dwordx4 v[20:23], v8, s[12:15], s28 offen sc1
    buffer_store_dwordx4 v[24:27], v8, s[12:15], s28 offen offset:1024 sc1
    s_add_u32 s55, s25, 1
    s_lshl_b32 s55, s55, 12
    s_lshl_b32 s37, s24, 2
    s_add_u32 s55, s55, s37
    s_add_u32 s55, s55, {WS_FL}
    v_mov_b32 v4, 0
    global_load_dword v117, v4, s[20:21] sc1
    """)

def gen_cs(g):
    g(f"""
    s_load_dwordx4 s[4:7], s[0:1], 80
    s_sub_u32 s38, s2, {KA_NL+KA_NW}
    v_lshrrev_b32 v7, 4, v0
    v_and_b32 v8, 15, v0
    v_mul_u32_u24 v9, {16*3584}, v7
    v_lshlrev_b32 v8, 4, v8
    v_add_u32 v9, v9, v8
    s_lshl_b32 s40, s38, 8
    v_and_b32 v10, 127, v0
    v_lshlrev_b32 v10, 1, v10
    v_add_u32 v10, s40, v10
    s_waitcnt lgkmcnt(0)
    """)
    g.srd(8, 4, 512*3584)
    g("global_load_ushort v11, v10, s[6:7]")
    for r in range(16):
        g(f"s_add_u32 s41, s40, {r*3584}")
        g(f"buffer_load_dwordx4 v[{16+4*r}:{19+4*r}], v9, s[8:11], s41 offen")
    g("s_waitcnt vmcnt(0)")
    for j in range(4):
        g(f"v_lshlrev_b32 v{80+2*j}, 16, v{16+j}")
        g(f"v_and_b32 v{80+2*j+1}, 0xffff0000, v{16+j}")
    for r in range(1, 16):
        for j in range(4):
            g(f"v_lshlrev_b32 v12, 16, v{16+4*r+j}")
            g(f"v_and_b32 v13, 0xffff0000, v{16+4*r+j}")
            g(f"v_add_f32 v{80+2*j}, v{80+2*j}, v12")
            g(f"v_add_f32 v{80+2*j+1}, v{80+2*j+1}, v13")
    g(f"""
    v_lshlrev_b32 v12, 9, v7
    v_lshlrev_b32 v13, 1, v8
    v_add_u32 v12, v12, v13
    v_add_u32 v12, {L_T}, v12
    ds_write_b128 v12, v[80:83]
    ds_write_b128 v12, v[84:87] offset:16
    v_and_b32 v13, 127, v0
    v_lshlrev_b32 v13, 2, v13
    v_add_u32 v14, {L_T}, v13
    s_waitcnt lgkmcnt(0)
    s_barrier
    s_cmp_ge_u32 s3, 2
    s_cbranch_scc1 CS_DONE
    """)
    for r in range(32):
        g(f"ds_read_b32 v{16+r}, v14 offset:{512*r}")
    g("s_waitcnt lgkmcnt(0)")
    for st in [16, 8, 4, 2, 1]:
        for r in range(st):
            g(f"v_add_f32 v{16+r}, v{16+r}, v{16+st+r}")
    g(f"""
    s_add_u32 s44, s22, {WS_CS}
    s_addc_u32 s45, s23, 0
    s_lshl_b32 s41, s38, 9
    v_add_u32 v13, s41, v13
    v_add_u32 v14, {1792*4}, v13
    v_lshlrev_b32 v11, 16, v11
    global_store_dword v13, v16, s[44:45] sc1
    global_store_dword v14, v11, s[44:45] sc1
    """)
    g.label("CS_DONE")
    g(f"""
    s_lshl_b32 s55, s38, 2
    s_add_u32 s55, s55, {WS_FL+30*4096}
    v_mov_b32 v4, 0
    global_load_dword v117, v4, s[20:21] sc1
    """)

L_SC = 2*TCH
L_P = L_SC + 64
L_T = L_P + 3072
L_R = L_T + 16384
def gen_kgen_setup(g):
    g(f"""
    s_lshr_b32 s31, s3, 2
    s_and_b32 s30, s3, 3
    s_mov_b32 s40, 0
    s_mov_b32 s41, {fhex(16.0)}
    s_mov_b32 s42, 0
    s_mov_b32 s43, {fhex(1.0)}
    s_cmp_eq_u32 s30, 1
    s_cselect_b32 s40, {fhex(256.0)}, s40
    s_cselect_b32 s42, {fhex(8.0)}, s42
    s_cmp_eq_u32 s30, 2
    s_cselect_b32 s40, {fhex(512.0)}, s40
    s_cmp_eq_u32 s30, 3
    s_cselect_b32 s40, {fhex(1536.0)}, s40
    s_cselect_b32 s42, {fhex(32.0)}, s42
    s_cmp_ge_u32 s30, 2
    s_cselect_b32 s41, {fhex(64.0)}, s41
    s_cselect_b32 s43, {fhex(4.0)}, s43
    s_mul_i32 s32, s31, {TCH}
    s_mul_i32 s28, s30, {16*TP}
    s_add_u32 s28, s28, s32
    s_mul_i32 s29, s30, {8*TP}
    s_add_u32 s29, s29, {64*TP}
    s_add_u32 s29, s29, s32
    v_lshlrev_b32 v6, 2, v1
    v_add_u32 v7, s29, v6
    v_add_u32 v6, s28, v6
    v_and_b32 v8, 15, v1
    v_lshrrev_b32 v9, 4, v1
    v_mul_u32_u24 v8, {TP}, v8
    v_lshlrev_b32 v9, 4, v9
    v_add_u32 v8, v8, v9
    s_lshr_b32 s33, s30, 1
    s_mul_i32 s33, s33, {16*TP}
    s_add_u32 s33, s33, {64*TP}
    s_add_u32 s33, s33, s32
    v_add_u32 v9, s33, v8
    v_add_u32 v8, s28, v8
    v_and_b32 v10, 15, v1
    v_lshrrev_b32 v11, 4, v1
    v_lshlrev_b32 v11, 8, v11
    v_lshlrev_b32 v10, 2, v10
    v_add_u32 v10, v10, v11
    s_lshl_b32 s28, s30, 10
    s_lshl_b32 s29, s31, 12
    s_add_u32 s28, s28, s29
    s_add_u32 s28, s28, {L_T}
    v_add_u32 v10, s28, v10
    v_lshlrev_b32 v11, 2, v0
    v_sub_u32 v11, 2047, v11
    """)
    for j in range(4):
        g(f"""
        v_subrev_u32 v{16+j}, {j}, v11
        v_cvt_f32_u32 v{16+j}, v{16+j}
        v_cvt_pk_bf16_f32 v{16+j}, v{16+j}, v{16+j}
        v_lshlrev_b32 v{16+j}, 16, v{16+j}
        v_cvt_u32_f32 v{16+j}, v{16+j}
        v_subrev_u32 v12, 512, v{16+j}
        v_lshrrev_b32 v12, 2, v12
        v_add_u32 v12, 512, v12
        v_cmp_gt_u32 vcc, 512, v{16+j}
        s_nop 1
        v_cndmask_b32 v{16+j}, v12, v{16+j}, vcc
        v_lshlrev_b32 v{16+j}, 2, v{16+j}
        v_add_u32 v{16+j}, {L_T}, v{16+j}
        """)

def gen_kgen(g, dd):
    b = 52 + 8*dd
    def direct(sl, vare, vaim, vr, vi, t0, t1):
        g(f"""
        v_mul_f32 v{t0}, s{sl}, v{vare}
        v_mul_f32 v{t1}, s{sl}, v{vaim}
        v_exp_f32 v{t0}, v{t0}
        v_fract_f32 v{t1}, v{t1}
        v_cos_f32 v{vr}, v{t1}
        v_sin_f32 v{vi}, v{t1}
        s_nop 0
        v_mul_f32 v{vr}, v{t0}, v{vr}
        v_mul_f32 v{vi}, v{t0}, v{vi}
        """)
    def cmul(dr, di, ar, ai, br, bi):
        g(f"""
        v_mul_f32 v{dr}, v{ar}, v{br}
        v_mul_f32 v{di}, v{ar}, v{bi}
        v_fma_f32 v{dr}, -v{ai}, v{bi}, v{dr}
        v_fma_f32 v{di}, v{ai}, v{br}, v{di}
        """)
    def emit(zr, zi, vaddr, row, t):
        g(f"""
        v_cvt_pk_f16_f32 v{t}, v{zr}, v{zi}
        ds_write_b32 v{vaddr}, v{t} offset:{row*TP}
        """)
    g(f"""
    v_lshlrev_b32 v5, 16, v{b+6}
    v_mul_f32 v5, {fhex(LOG2E)}, v5
    v_exp_f32 v5, v5
    s_nop 0
    v_cvt_pk_bf16_f32 v5, v5, v5
    v_lshlrev_b32 v5, 16, v5
    """)
    for i in range(6):
        g(f"v_lshlrev_b32 v{b+i}, 16, v{b+i}")
    g(f"""
    v_mul_f32 v24, v5, v{b}
    v_mul_f32 v25, v5, v{b+1}
    v_mul_f32 v24, {fhex(LOG2E)}, v24
    v_mul_f32 v25, {fhex(INV2PI)}, v25
    v_sub_f32 v26, 0, v25
    v_mul_f32 v27, v5, v{b+2}
    v_mul_f32 v28, v5, v{b+3}
    """)
    cmul(29, 30, b+4, b+5, 27, 28)
    g(f"""
    v_max_f32 v31, abs(v29), abs(v30)
    v_max_f32 v31, {fhex(1e-30)}, v31
    """)
    direct(40, 24, 26, 32, 33, 40, 41)
    g(f"v_max_f32_dpp v31, v31, v31 {DPP[0]}")
    direct(41, 24, 26, 34, 35, 40, 41)
    g(f"v_max_f32_dpp v31, v31, v31 {DPP[1]}")
    direct(42, 24, 25, 44, 45, 40, 41)
    g(f"v_max_f32_dpp v31, v31, v31 {DPP[2]}")
    direct(43, 24, 25, 46, 47, 40, 41)
    for mod in DPP[3:]:
        g(f"v_max_f32_dpp v31, v31, v31 {mod}\ns_nop 1")
    g(f"""
    v_readlane_b32 s34, v31, 63
    s_nop 3
    v_mov_b32 v31, s34
    v_rcp_f32 v40, v31
    s_lshl_b32 s34, s31, 2
    s_add_u32 s34, s34, {L_SC + 8*dd}
    v_mov_b32 v41, s34
    ds_write_b32 v41, v31
    v_mul_f32 v29, v29, v40
    v_mul_f32 v30, v30, v40
    v_sub_f32 v30, 0, v30
    v_mov_b32 v68, 0
    v_mov_b32 v69, 0
    v_mov_b32 v70, 0
    v_mov_b32 v71, 0
    """)
    cmul(36, 37, 29, 30, 32, 33)
    if dd == 1:
        g("s_barrier")
    z = (36, 37); zn = (38, 39)
    y = (44, 45); yn = (48, 49)
    for k in range(16):
        emit(z[0], z[1], 6, k, 42 + (k & 1))
        if k < 8:
            emit(y[0], y[1], 7, k, 50 + (k & 1))
        if k < 15:
            cmul(zn[0], zn[1], z[0], z[1], 34, 35)
            z, zn = zn, z
        if k < 7:
            cmul(yn[0], yn[1], y[0], y[1], 46, 47)
            y, yn = yn, y
    g("s_waitcnt lgkmcnt(0)\ns_barrier")
    for gi in range(4):
        g(f"ds_read_b128 v[{72+8*gi}:{75+8*gi}], v8 offset:{64*gi}")
        g(f"ds_read_b128 v[{76+8*gi}:{79+8*gi}], v9 offset:{64*gi}")
    g(f"v_mov_b32 v12, {L_SC+8*dd}\nds_read_b64 v[14:15], v12")
    for gi in range(4):
        g(f"s_waitcnt lgkmcnt({7-2*gi})")
        g(f"v_mfma_f32_16x16x32_f16 v[68:71], v[{72+8*gi}:{75+8*gi}], v[{76+8*gi}:{79+8*gi}], v[68:71]")
    g(f"""
    s_waitcnt lgkmcnt(0)
    v_add_f32 v{104+dd}, v14, v15
    v_rcp_f32 v{106+dd}, v{104+dd}
    s_nop 6
    v_mul_f32 v68, v68, v31
    v_mul_f32 v69, v69, v31
    v_mul_f32 v70, v70, v31
    v_mul_f32 v71, v71, v31
    ds_write_b32 v10, v68 offset:{8192*dd}
    ds_write_b32 v10, v69 offset:{8192*dd+64}
    ds_write_b32 v10, v70 offset:{8192*dd+128}
    ds_write_b32 v10, v71 offset:{8192*dd+192}
    """)

NST = 5
def gen_gemm1(g):
    if os.environ.get('PRIO'): g("s_setprio 2")
    g(f"""
    s_load_dwordx2 s[4:5], s[0:1], 88
    s_load_dwordx2 s[6:7], s[0:1], 0
    s_load_dwordx2 s[36:37], s[0:1], 80
    s_lshr_b32 s25, s2, 3
    s_mul_i32 s26, s25, 37
    s_lshr_b32 s26, s26, 8
    s_mul_i32 s27, s26, 7
    s_sub_u32 s25, s25, s27
    s_and_b32 s24, s2, 6
    s_lshl_b32 s24, s24, 1
    s_add_u32 s24, s24, s26
    s_and_b32 s27, s2, 1
    s_mul_i32 s27, s27, 7
    s_add_u32 s25, s25, s27
    """)
    g(f"""
    v_lshrrev_b32 v3, 4, v1
    v_and_b32 v4, 15, v1
    v_lshlrev_b32 v5, 2, v3
    v_xor_b32 v4, v4, v5
    v_lshlrev_b32 v4, 4, v4
    s_lshl_b32 s26, s3, 2
    v_add_u32 v3, s26, v3
    v_mul_u32_u24 v3, 3584, v3
    v_add_u32 v3, v3, v4
    s_lshl_b32 s26, s25, 8
    """)
    if os.environ.get('E1'): g("s_mov_b32 s26, 0")
    g(f"""
    v_add_u32 v8, s26, v3
    v_lshrrev_b32 v3, 2, v1
    v_and_b32 v4, 3, v1
    v_lshrrev_b32 v5, 2, v3
    v_xor_b32 v4, v4, v5
    v_lshlrev_b32 v4, 4, v4
    s_lshl_b32 s26, s3, 4
    v_add_u32 v3, s26, v3
    v_lshlrev_b32 v3, 10, v3
    v_add_u32 v3, v3, v4
    s_lshl_b32 s26, s24, 17
    """)
    if os.environ.get('E1'): g("s_mov_b32 s26, 0")
    g(f"""
    v_add_u32 v9, s26, v3
    s_lshl_b32 s28, s3, 10
    s_waitcnt lgkmcnt(0)
    """)
    g.srd(8, 36, 512*3584)
    g.srd(12, 6, 2048*1024)
    g.srd(16, 22, 2048*3584, WS_ACT)
    g.stamp(1)
    def issue(k):
        buf = (k % NST) * 16384
        g(f"""
        s_mov_b32 s30, {32*3584*k}
        s_mov_b32 s31, {64*k}
        s_add_u32 m0, s28, {buf}
        s_nop 0
        buffer_load_dwordx4 v8, s[8:11], s30 offen lds
        s_add_u32 m0, s28, {buf + 8192}
        s_nop 0
        buffer_load_dwordx4 v9, s[12:15], s31 offen lds
        """)
    for k in range(NST):
        issue(k)
    g(f"""
    v_lshrrev_b32 v3, 4, v1
    v_and_b32 v4, 15, v1
    v_lshrrev_b32 v5, 2, v4
    v_lshrrev_b32 v6, 1, v3
    v_lshlrev_b32 v6, 3, v6
    v_add_u32 v6, v6, v5
    v_lshlrev_b32 v6, 8, v6
    v_and_b32 v7, 1, v4
    v_lshlrev_b32 v7, 3, v7
    v_add_u32 v6, v6, v7
    v_and_b32 v7, 1, v3
    v_lshlrev_b32 v7, 1, v7
    v_bfe_u32 v10, v4, 1, 1
    v_add_u32 v7, v7, v10
    s_and_b32 s29, s3, 1
    s_lshl_b32 s29, s29, 3
    v_add_u32 v7, s29, v7
    v_lshlrev_b32 v5, 2, v5
    v_xor_b32 v10, v7, v5
    v_lshlrev_b32 v10, 4, v10
    v_add_u32 v16, v6, v10
    v_add_u32 v7, 4, v7
    v_xor_b32 v10, v7, v5
    v_lshlrev_b32 v10, 4, v10
    v_add_u32 v17, v6, v10
    v_and_b32 v3, 31, v1
    v_lshrrev_b32 v4, 5, v1
    v_lshrrev_b32 v5, 2, v3
    v_and_b32 v5, 3, v5
    v_lshlrev_b32 v6, 6, v3
    s_lshr_b32 s30, s3, 1
    s_lshl_b32 s30, s30, 11
    s_add_u32 s30, s30, 8192
    v_add_u32 v6, s30, v6
    v_xor_b32 v7, v4, v5
    v_lshlrev_b32 v7, 4, v7
    v_add_u32 v18, v6, v7
    v_add_u32 v7, 2, v4
    v_xor_b32 v7, v7, v5
    v_lshlrev_b32 v7, 4, v7
    v_add_u32 v19, v6, v7
    """)
    A0 = 64
    for i in range(32):
        g(f"v_mov_b32 v{A0+i}, 0")
    for i in range(4):
        g(f"v_add_u32 v{11+i}, 0x10000, v{16+i}")
    FS = [96, 26]
    B2 = [8, 12, 16, 60]
    def rd(k, kk):
        buf = (k % NST) * 16384
        F = FS[k & 1]
        vb = 16
        if buf >= 65536:
            buf -= 65536; vb = 11
        f = F + 12*kk
        for mt in range(2):
            g(f"ds_read_b64_tr_b16 v[{f+4*mt}:{f+4*mt+1}], v{vb+mt} offset:{buf+4096*kk}")
            g(f"ds_read_b64_tr_b16 v[{f+4*mt+2}:{f+4*mt+3}], v{vb+mt} offset:{buf+4096*kk+1024}")
        g(f"ds_read_b128 v[{f+8}:{f+11}], v{vb+2+kk} offset:{buf}")
    g(f"""
    v_mov_b32 v58, 0
    v_mov_b32 v59, 0
    v_mov_b32 v61, 0
    v_mov_b32 v62, 0
    s_mov_b32 s33, 0x3f803f80
    s_lshr_b32 s34, s3, 1
    s_add_u32 s44, s22, {WS_ST}
    s_addc_u32 s45, s23, 0
    s_lshl_b32 s26, s24, 7
    s_lshl_b32 s27, s34, 5
    s_add_u32 s26, s26, s27
    v_add_u32 v22, s26, v3
    v_lshlrev_b32 v22, 3, v22
    s_and_b32 s40, s24, 7
    s_lshl_b32 s40, s40, 5
    s_lshr_b32 s41, s24, 3
    s_mul_i32 s41, s41, {29*4096}
    s_add_u32 s40, s40, s41
    s_add_u32 s40, s40, {WS_FL}
    s_waitcnt vmcnt({2*(NST-1)})
    s_barrier
    """)
    g.stamp(2)
    rd(0, 0); rd(0, 1)
    for k in range(16):
        F = FS[k & 1]
        def mf(kk, mt):
            f = F + 12*kk
            a = A0 + 16*mt
            g(f"v_mfma_f32_32x32x16_bf16 v[{a}:{a+15}], v[{f+4*mt}:{f+4*mt+3}], v[{f+8}:{f+11}], v[{a}:{a+15}]")
        if k < 15:
            younger = 2*(min(k+NST-1, 15) - (k+1))
            if k > 12: younger += 1
            g(f"s_waitcnt vmcnt({younger}) lgkmcnt(0)")
            g("s_barrier")
            if k < 3: g.stamp(3+k)
            if k == 8: g.stamp(7)
            mf(0, 0)
            rd(k+1, 0)
            mf(0, 1)
            rd(k+1, 1)
            mf(1, 0)
            if k + NST < 16 and not os.environ.get('E2'):
                issue(k + NST)
            mf(1, 1)
        else:
            g("s_waitcnt lgkmcnt(0)")
            mf(0, 0); mf(0, 1); mf(1, 0); mf(1, 1)
        if k == 11:
            g("s_cmp_lg_u32 s3, 0\ns_cbranch_scc1 G1_NOPOLL")
            wait_zero(g, "g1p", 20, 21)
            poll_flags(g, "g1a", 40, 8, 20, 21, base="s[22:23]")
            g(f"s_lshl_b32 s40, s25, 2\ns_add_u32 s40, s40, {WS_FL+30*4096}")
            poll_flags(g, "g1b", 40, 1, 20, 21, base="s[22:23]")
            poll_flags(g, "g1w", 62, 28, 20, 21, base="s[22:23]")
            g.label("G1_NOPOLL")
        if k == 12:
            g("global_load_dwordx2 v[20:21], v22, s[44:45] sc1")
    g.stamp(6)
    g(f"""
    s_add_u32 s46, s22, {WS_CS}
    s_addc_u32 s47, s23, 0
    s_lshl_b32 s26, s25, 9
    s_and_b32 s27, s3, 1
    s_lshl_b32 s27, s27, 8
    s_add_u32 s26, s26, s27
    v_lshlrev_b32 v25, 4, v4
    v_add_u32 v25, s26, v25
    v_add_u32 v24, {1792*4}, v25
    """)
    for mt in range(2):
        for gi in range(4):
            g(f"global_load_dwordx4 v[{96+16*mt+4*gi}:{99+16*mt+4*gi}], v25, s[46:47] offset:{128*mt+32*gi} sc1")
    for gi in range(4):
        g(f"global_load_dwordx4 v[{26+4*gi}:{29+4*gi}], v24, s[46:47] offset:{32*gi} sc1")
    for gi in range(4):
        g(f"global_load_dwordx4 v[{B2[gi]}:{B2[gi]+3}], v24, s[46:47] offset:{128+32*gi} sc1")
    g(f"""
    s_lshl_b32 s26, s24, 3
    s_lshr_b32 s27, s3, 1
    s_lshl_b32 s27, s27, 1
    s_add_u32 s26, s26, s27
    v_lshrrev_b32 v5, 4, v3
    v_add_u32 v5, s26, v5
    v_mul_u32_u24 v5, {56*1024}, v5
    v_and_b32 v6, 15, v3
    v_lshlrev_b32 v6, 4, v6
    v_add_u32 v5, v5, v6
    v_lshlrev_b32 v6, 8, v4
    v_add_u32 v5, v5, v6
    s_lshl_b32 s26, s25, 2
    s_and_b32 s27, s3, 1
    s_lshl_b32 s27, s27, 1
    s_add_u32 s26, s26, s27
    s_lshl_b32 s26, s26, 10
    s_mov_b32 s27, {fhex(LOG2E)}
    s_waitcnt vmcnt(0)
    """)
    g.stamp(8)
    T = 42
    for mt in range(2):
        a = A0 + 16*mt
        for half in range(2):
            R = [a + 8*half + i for i in range(8)]
            CSv = [96 + 16*mt + 8*half + i for i in range(8)]
            Bv = [26 + 8*half + i for i in range(8)] if mt == 0 else [B2[2*half + (i>>2)] + (i&3) for i in range(8)]
            for j in range(8):
                g(f"v_fma_f32 v{CSv[j]}, -v20, v{CSv[j]}, v{Bv[j]}")
            for j in range(8):
                g(f"v_fma_f32 v{R[j]}, v{R[j]}, v21, v{CSv[j]}")
            for j in range(4):
                g(f"v_cvt_pk_bf16_f32 v{T+j}, v{R[2*j]}, v{R[2*j+1]}")
            for j in range(4):
                g(f"v_lshlrev_b32 v{R[2*j]}, 16, v{T+j}")
                g(f"v_and_b32 v{R[2*j+1]}, 0xffff0000, v{T+j}")
            for j in range(8):
                g(f"v_mul_f32 v{T+j}, s27, v{R[j]}")
            for j in range(8):
                g(f"v_exp_f32 v{T+j}, v{T+j}")
            for j in range(8):
                g(f"v_add_f32 v{T+8+j}, 2.0, v{T+j}")
            for j in range(8):
                g(f"v_fma_f32 v{T+j}, v{T+j}, v{T+8+j}, 2.0")
            for j in range(8):
                g(f"v_rcp_f32 v{T+j}, v{T+j}")
            for j in range(8):
                g(f"v_fma_f32 v{T+j}, -2.0, v{T+j}, 1.0")
            for j in range(8):
                g(f"v_mul_f32 v{T+j}, v{T+j}, v{R[j]}")
            for j in range(4):
                g(f"v_cvt_pk_bf16_f32 v{R[j]}, v{T+2*j}, v{T+2*j+1}")
            g(f"""
            s_nop 1
            v_permlane32_swap_b32 v{R[0]}, v{R[2]}
            v_permlane32_swap_b32 v{R[1]}, v{R[3]}
            s_nop 0
            buffer_store_dwordx4 v[{R[0]}:{R[3]}], v5, s[16:19], s26 offen offset:{1024*mt+512*half} sc1
            """)
    g.stamp(9)
    if TL: g("s_memtime s[84:85]")
    g(f"""
    s_lshl_b32 s60, s24, 1
    s_lshl_b32 s62, s25, 2
    s_mov_b32 s61, 1
    {'s_setprio 0' if os.environ.get('GPRIO') == '1' else ''}
    """)

KB_NG = 256
KB_NC = 256
KB_TOTAL = KB_NG + KB_NC
KB_LDS = 81920
CV_COPY = 8*KR_PITCH
CV_U = 95*80
CV_D = CV_COPY + CV_U

def gen_conv(g):
    g(f"""
    s_lshr_b32 s24, s3, 2
    s_lshl_b32 s25, s2, 1
    s_add_u32 s25, s25, s24
    s_and_b32 s26, s3, 3
    s_mul_i32 s27, s24, {CV_D}
    v_and_b32 v3, 255, v0
    v_and_b32 v5, 31, v1
    v_lshlrev_b32 v5, 4, v5
    s_waitcnt lgkmcnt(0)
    s_mov_b32 s35, s52
    s_mov_b32 s36, s53
    """)
    g.stamp(1)
    g.srd(12, 22, 2048*1024, WS_XT)
    g.srd(16, 22, 2048*1024, WS_AT)
    g(f"""
    v_lshrrev_b32 v116, 1, v3
    v_lshlrev_b32 v116, 14, v116
    v_and_b32 v8, 1, v3
    v_lshlrev_b32 v8, 4, v8
    v_add_u32 v116, v116, v8
    s_lshl_b32 s54, s25, 5
    s_min_u32 s37, s3, 5
    s_lshl_b32 s37, s37, 9
    s_add_u32 s37, s37, {L_P}
    v_add_u32 v56, s37, v5
    """)
    gen_kgen_setup(g)
    g(f"""
    ds_write_b128 v56, v[112:115]
    v_lshlrev_b32 v12, 1, v1
    s_lshl_b32 s28, s31, 7
    s_add_u32 s28, s28, {L_P}
    v_add_u32 v12, s28, v12
    s_waitcnt vmcnt(0) lgkmcnt(0)
    s_barrier
    s_cmp_lg_u32 s3, 7
    s_cbranch_scc1 KG_NOSIG
    s_cmp_eq_u32 s55, 0
    s_cbranch_scc1 KG_NOSIG
    v_cmp_eq_u32 vcc, 0, v117
    s_nop 3
    s_cmp_eq_u64 vcc, 0
    s_cbranch_scc1 KG_ZOK
    """)
    wait_zero(g, "kg", 117, 118)
    g.label("KG_ZOK")
    set_flag(g, 55, 117, 118)
    g.label("KG_NOSIG")
    g("s_setprio 0")
    for dd in range(2):
        for i in range(6):
            g(f"ds_read_u16 v{52+8*dd+i}, v12 offset:{512*i+256*dd}")
    g(f"""
    s_and_b32 s28, s35, 0xffff
    s_lshr_b32 s29, s35, 16
    v_mov_b32 v58, s28
    v_mov_b32 v66, s29
    s_waitcnt lgkmcnt(0)
    """)
    g.stamp(2)
    gen_kgen(g, 0)
    gen_kgen(g, 1)
    g("s_cmp_lg_u32 s3, 0\ns_cbranch_scc1 CV_NOPOLL")
    wait_zero(g, "cv", 20, 21)
    g(f"s_mov_b32 s48, {WS_FL}")
    poll_flags(g, "cv", 48, 64, 20, 21, base="s[22:23]", slp=8)
    g(f"s_mov_b32 s48, {WS_FL+29*4096}")
    poll_flags(g, "cv2", 48, 64, 20, 21, base="s[22:23]", slp=8)
    g.label("CV_NOPOLL")
    g("s_waitcnt lgkmcnt(0)\ns_barrier")
    g("buffer_load_dwordx4 v[108:111], v116, s[12:15], s54 offen sc1")
    g.stamp(3)
    for dd in range(2):
        for j in range(4):
            g(f"ds_read_b32 v{20+8*dd+j}, v{16+j} offset:{8192*dd}")
            g(f"ds_read_b32 v{24+8*dd+j}, v{16+j} offset:{8192*dd+4096}")
    g(f"""
    v_lshlrev_b32 v12, 3, v0
    v_add_u32 v12, {L_R}, v12
    v_mov_b32 v40, 0
    v_mov_b32 v41, 0
    v_mov_b32 v42, 0
    v_mov_b32 v43, 0
    v_lshlrev_b32 v4, 4, v3
    s_mul_i32 s28, s24, {KR_PITCH}
    s_add_u32 s28, s28, {L_R}
    v_add_u32 v13, s28, v4
    s_waitcnt lgkmcnt(0)
    """)
    for dd in range(2):
        for j in range(4):
            g(f"v_add_f32 v{20+8*dd+j}, v{20+8*dd+j}, v{24+8*dd+j}")
        for j in range(4):
            g(f"v_mul_f32 v{20+8*dd+j}, v{20+8*dd+j}, v{106+dd}")
        g(f"v_cvt_pk_f16_f32 v{36+2*dd}, v{20+8*dd}, v{21+8*dd}")
        g(f"v_cvt_pk_f16_f32 v{37+2*dd}, v{22+8*dd}, v{23+8*dd}")
        g(f"ds_write_b64 v12, v[{36+2*dd}:{37+2*dd}] offset:{KR_PITCH*dd}")
    g(f"""
    v_cmp_gt_u32 vcc, 8, v0
    s_and_saveexec_b64 s[30:31], vcc
    ds_write_b64 v12, v[40:41] offset:4096
    ds_write_b64 v12, v[40:41] offset:{KR_PITCH+4096}
    s_mov_b64 exec, s[30:31]
    s_waitcnt lgkmcnt(0)
    s_barrier
    ds_read_b128 v[64:67], v13
    ds_read_b128 v[68:71], v13 offset:16
    v_lshrrev_b32 v5, 2, v3
    v_and_b32 v6, 3, v3
    v_lshlrev_b32 v6, 4, v6
    v_mul_u32_u24 v5, {KR_PITCH}, v5
    v_add_u32 v5, v5, v6
    v_add_u32 v5, 4096, v5
    v_add_u32 v5, s27, v5
    v_add_u32 v6, s27, v4
    v_lshrrev_b32 v24, 2, v3
    v_and_b32 v25, 3, v3
    v_mul_u32_u24 v24, 80, v24
    v_lshlrev_b32 v25, 4, v25
    v_add_u32 v24, v24, v25
    v_add_u32 v24, s27, v24
    s_waitcnt lgkmcnt(0)
    s_barrier
    v_cmp_gt_u32 vcc, 155, v3
    s_and_saveexec_b64 s[30:31], vcc
    ds_write_b128 v6, v[40:43] offset:{CV_COPY}
    s_mov_b64 exec, s[30:31]
    v_cmp_gt_u32 vcc, 32, v3
    s_and_saveexec_b64 s[30:31], vcc
    ds_write_b128 v5, v[40:43]
    s_mov_b64 exec, s[30:31]
    ds_write_b128 v6, v[64:67]
    ds_write_b128 v6, v[66:69] offset:{4*KR_PITCH}
    """)
    for j in range(1, 7):
        g(f"v_mov_b32 v{73+j}, v{64+j}")
    for j in range(7):
        g(f"v_alignbit_b32 v{80+j}, v{65+j}, v{64+j}, 16")
    for j in range(1, 7):
        g(f"v_alignbit_b32 v{87+j}, v{65+j}, v{64+j}, 16")
    g(f"""
    ds_write_b128 v6, v[74:77] offset:{2*KR_PITCH}
    ds_write_b128 v6, v[76:79] offset:{6*KR_PITCH}
    ds_write_b128 v6, v[80:83] offset:{1*KR_PITCH}
    ds_write_b128 v6, v[82:85] offset:{5*KR_PITCH}
    ds_write_b128 v6, v[88:91] offset:{3*KR_PITCH}
    ds_write_b128 v6, v[90:93] offset:{7*KR_PITCH}
    s_waitcnt vmcnt(0)
    ds_write_b128 v24, v[108:111] offset:{CV_COPY+31*80}
    s_lshr_b32 s30, s36, 16
    s_and_b32 s31, s36, 0xffff
    s_cmp_eq_u32 s24, 0
    s_cselect_b32 s36, s31, s30
    v_mov_b32 v60, s36
    s_cselect_b64 vcc, -1, 0
    v_cndmask_b32 v61, v105, v104, vcc
    """)
    g(f"""
    v_and_b32 v3, 31, v1
    v_lshrrev_b32 v4, 5, v1
    v_and_b32 v5, 7, v3
    v_sub_u32 v5, 7, v5
    v_mul_u32_u24 v5, {KR_PITCH}, v5
    v_lshrrev_b32 v6, 3, v3
    v_sub_u32 v6, v4, v6
    v_lshlrev_b32 v6, 4, v6
    v_add_u32 v5, v5, v6
    s_lshl_b32 s28, s26, 9
    s_sub_u32 s28, {4080 - 64*39}, s28
    s_add_u32 s28, s28, s27
    v_add_u32 v5, s28, v5
    v_mul_u32_u24 v6, 80, v3
    v_lshlrev_b32 v7, 4, v4
    v_add_u32 v6, v6, v7
    s_mul_i32 s28, s26, {8*80}
    s_sub_u32 s28, {CV_COPY + 24*80}, s28
    s_add_u32 s28, s28, s27
    v_add_u32 v6, s28, v6
    """)
    for i in range(32):
        g(f"v_mov_b32 v{24+i}, 0")
    g("s_waitcnt lgkmcnt(0)\ns_barrier")
    g.stamp(4)
    AC = 24
    def rd(step):
        dl, kk = step >> 1, step & 1
        ao = (7-dl)*64 + 32*kk
        bo = (7-dl)*80 + 32*kk
        f = 64 + 16*(step % 3)
        g(f"ds_read_b128 v[{f}:{f+3}], v5 offset:{ao+2048}")
        g(f"ds_read_b128 v[{f+4}:{f+7}], v5 offset:{ao}")
        g(f"ds_read_b128 v[{f+8}:{f+11}], v6 offset:{bo}")
        g(f"ds_read_b128 v[{f+12}:{f+15}], v6 offset:{bo+2560}")
    rd(0); rd(1)
    for step in range(16):
        if step + 2 < 16:
            rd(step+2)
            g("s_waitcnt lgkmcnt(8)")
        elif step + 1 < 16:
            g("s_waitcnt lgkmcnt(4)")
        else:
            g("s_waitcnt lgkmcnt(0)")
        f = 64 + 16*(step % 3)
        g(f"v_mfma_f32_32x32x16_f16 v[{AC}:{AC+15}], v[{f}:{f+3}], v[{f+8}:{f+11}], v[{AC}:{AC+15}]")
        g(f"v_mfma_f32_32x32x16_f16 v[{AC+16}:{AC+31}], v[{f}:{f+3}], v[{f+12}:{f+15}], v[{AC+16}:{AC+31}]")
        g(f"v_mfma_f32_32x32x16_f16 v[{AC+16}:{AC+31}], v[{f+4}:{f+7}], v[{f+8}:{f+11}], v[{AC+16}:{AC+31}]")
    g.stamp(5)
    g(f"""
    s_barrier
    v_lshlrev_b32 v7, 4, v1
    s_lshl_b32 s28, s26, 13
    s_add_u32 s28, s28, s27
    v_add_u32 v8, s28, v7
    s_lshl_b32 s29, s26, 11
    s_add_u32 s29, s29, s27
    v_add_u32 v9, s29, v7
    v_mul_u32_u24 v10, 80, v3
    v_lshlrev_b32 v11, 3, v4
    v_add_u32 v10, v10, v11
    s_lshr_b32 s28, s26, 1
    s_mul_i32 s28, s28, 2560
    s_and_b32 s29, s26, 1
    s_lshl_b32 s29, s29, 5
    s_add_u32 s28, s28, s29
    s_add_u32 s28, s28, {CV_COPY + 31*80}
    s_add_u32 s28, s28, s27
    v_add_u32 v10, s28, v10
    s_nop 4
    """)
    for i in range(8):
        g(f"ds_write_b128 v8, v[{AC+4*i}:{AC+4*i+3}] offset:{1024*i}")
    g("ds_read_b64 v[12:13], v10\nds_read_b64 v[14:15], v10 offset:16")
    g.stamp(7)
    g("s_waitcnt lgkmcnt(0)\ns_barrier")
    g.stamp(8)
    for w in range(4):
        g(f"ds_read_b128 v[{64+8*w}:{67+8*w}], v9 offset:{8192*w}")
        g(f"ds_read_b128 v[{68+8*w}:{71+8*w}], v9 offset:{8192*w+1024}")
    g(f"""
    v_lshlrev_b32 v60, 16, v60
    v_lshlrev_b32 v16, 6, v3
    v_lshlrev_b32 v17, 4, v4
    v_add_u32 v16, v16, v17
    s_lshr_b32 s28, s26, 1
    s_lshl_b32 s28, s28, 11
    s_and_b32 s29, s26, 1
    s_lshl_b32 s29, s29, 5
    s_add_u32 s28, s28, s29
    s_lshl_b32 s29, s25, 12
    s_add_u32 s28, s28, s29
    v_cvt_f32_f16 v24, v12
    v_cvt_f32_f16_sdwa v25, v12 dst_sel:DWORD dst_unused:UNUSED_PAD src0_sel:WORD_1
    v_cvt_f32_f16 v26, v13
    v_cvt_f32_f16_sdwa v27, v13 dst_sel:DWORD dst_unused:UNUSED_PAD src0_sel:WORD_1
    v_cvt_f32_f16 v28, v14
    v_cvt_f32_f16_sdwa v29, v14 dst_sel:DWORD dst_unused:UNUSED_PAD src0_sel:WORD_1
    v_cvt_f32_f16 v30, v15
    v_cvt_f32_f16_sdwa v31, v15 dst_sel:DWORD dst_unused:UNUSED_PAD src0_sel:WORD_1
    """)
    for i in range(8):
        g(f"v_mul_f32 v{24+i}, v{24+i}, v60")
    for j in range(4):
        g(f"v_cvt_pk_bf16_f32 v{32+j}, v{24+2*j}, v{24+2*j+1}")
    for j in range(4):
        g(f"v_lshlrev_b32 v{24+2*j}, 16, v{32+j}")
        g(f"v_and_b32 v{24+2*j+1}, 0xffff0000, v{32+j}")
    g("s_waitcnt lgkmcnt(0)")
    for i in range(8):
        g(f"v_add_f32 v{64+i}, v{64+i}, v{72+i}")
        g(f"v_add_f32 v{80+i}, v{80+i}, v{88+i}")
    for i in range(8):
        g(f"v_add_f32 v{64+i}, v{64+i}, v{80+i}")
    for i in range(8):
        g(f"v_mul_f32 v{64+i}, v{64+i}, v61")
    for j in range(4):
        g(f"v_cvt_pk_bf16_f32 v{32+j}, v{64+2*j}, v{64+2*j+1}")
    for j in range(4):
        g(f"v_lshlrev_b32 v{64+2*j}, 16, v{32+j}")
        g(f"v_and_b32 v{64+2*j+1}, 0xffff0000, v{32+j}")
    for i in range(8):
        g(f"v_add_f32 v{64+i}, v{64+i}, v{24+i}")
    for j in range(4):
        g(f"v_cvt_pk_bf16_f32 v{32+j}, v{64+2*j}, v{64+2*j+1}")
    g(f"""
    s_nop 1
    v_permlane32_swap_b32 v32, v34
    v_permlane32_swap_b32 v33, v35
    s_nop 0
    buffer_store_dwordx4 v[32:35], v16, s[16:19], s28 offen sc1
    """)
    g.stamp(9)
    g(f"""
    s_waitcnt vmcnt(0)
    """)
    g.stamp(10)
    g(f"""
    s_barrier
    s_cmp_lg_u32 s3, 0
    s_cbranch_scc1 CV_NOSIG
    s_lshr_b32 s28, s2, 5
    s_and_b32 s29, s2, 31
    s_lshl_b32 s29, s29, 2
    s_add_u32 s29, s29, 64
    v_mov_b32 v13, s28
    """)
    cons_addr(g, 1, 13, 12, 14)
    g(f"""
    v_add_u32 v12, s29, v12
    v_mov_b32 v13, 0x01010101
    v_cmp_gt_u32 vcc, 32, v1
    s_and_saveexec_b64 s[30:31], vcc
    global_store_dword v12, v13, s[22:23] sc1
    s_mov_b64 exec, s[30:31]
    """)
    g.label("CV_NOSIG")
    g.stamp(6)
    g.stamp_end(11, "cv")
    g("s_endpgm")

def gen_gemm2(g):
    g(f"""
    s_and_b32 s25, s2, 6
    s_lshl_b32 s25, s25, 2
    s_lshr_b32 s24, s2, 3
    s_lshr_b32 s26, s24, 2
    s_add_u32 s25, s25, s26
    s_and_b32 s24, s24, 3
    s_and_b32 s26, s2, 1
    s_lshl_b32 s26, s26, 2
    s_add_u32 s24, s24, s26
    s_mul_i32 s36, s3, {7*1024}
    v_lshlrev_b32 v5, 4, v1
    v_add_u32 v8, s36, v5
    v_add_u32 v9, 4096, v8
    s_mul_i32 s40, s24, {4*56*1024}
    s_add_u32 s41, s40, {56*1024}
    s_add_u32 s42, s40, {2*56*1024}
    s_add_u32 s43, s40, {3*56*1024}
    s_mul_i32 s44, s25, {4*56*1024}
    s_add_u32 s45, s44, {56*1024}
    s_add_u32 s46, s44, {2*56*1024}
    s_add_u32 s47, s44, {3*56*1024}
    """)
    g.srd(8, 22, 512*3584, WS_W2F)
    g.srd(12, 22, 2048*3584, WS_ACT)
    g.srd(16, 22, 2048*1024, WS_AT)
    g.srd(28, 56, 2048*1024)
    g.srd(32, 58, 2048*1024)
    AC = 16
    AR = [80, 96]
    BR = 112
    def ldA(st):
        fb = AR[st & 1]; va = 8 + (st >> 2)
        for i in range(4):
            g(f"buffer_load_dwordx4 v[{fb+4*i}:{fb+4*i+3}], v{va}, s[8:11], s{40+i} offen offset:{1024*(st&3)} sc1")
    def ldB(st, j):
        va = 8 + (st >> 2)
        g(f"buffer_load_dwordx4 v[{BR+4*j}:{BR+4*j+3}], v{va}, s[12:15], s{44+j} offen offset:{1024*(st&3)} sc1")
    ldA(0)
    ldA(1)
    g(f"""
    v_and_b32 v3, 15, v1
    v_lshrrev_b32 v4, 4, v1
    s_lshl_b32 s37, s25, 6
    s_lshr_b32 s38, s3, 1
    s_lshl_b32 s38, s38, 4
    s_add_u32 s37, s37, s38
    v_add_u32 v6, s37, v3
    v_lshlrev_b32 v7, 10, v6
    v_lshlrev_b32 v14, 3, v4
    v_add_u32 v7, v7, v14
    s_lshl_b32 s38, s24, 7
    s_and_b32 s39, s3, 1
    s_lshl_b32 s48, s39, 6
    s_add_u32 s38, s38, s48
    v_add_u32 v7, s38, v7
    buffer_load_dwordx2 v[10:11], v7, s[28:31], 0 offen
    buffer_load_dwordx2 v[12:13], v7, s[28:31], 0 offen offset:32
    s_cmp_eq_u32 s61, 0
    s_cbranch_scc1 G2_NOSIG
    s_waitcnt vmcnt(10)
    s_barrier
    s_cmp_lg_u32 s3, 0
    s_cbranch_scc1 G2_NOSIG
    """)
    g(f"""
    v_lshrrev_b32 v16, 3, v1
    v_add_u32 v16, s60, v16
    v_and_b32 v17, 7, v1
    """)
    cons_addr(g, 16, 17, 18, 19)
    g(f"""
    v_add_u32 v18, s62, v18
    v_mov_b32 v19, 0x01010101
    v_cmp_gt_u32 vcc, 16, v1
    s_and_saveexec_b64 s[50:51], vcc
    global_store_dword v18, v19, s[22:23] sc1
    s_mov_b64 exec, s[50:51]
    """)
    g.label("G2_NOSIG")
    for i in range(64):
        g(f"v_mov_b32 v{AC+i}, 0")
    g(f"""
    s_mul_i32 s37, s3, 224
    s_lshr_b32 s38, s37, 7
    s_add_u32 s37, s37, 223
    s_lshr_b32 s37, s37, 7
    s_lshl_b32 s48, s2, 8
    s_add_u32 s48, s48, {WS_F2}
    v_add_u32 v15, s38, v1
    v_min_u32 v15, s37, v15
    v_lshlrev_b32 v15, 2, v15
    v_add_u32 v15, s48, v15
    s_mov_b32 s49, 0x01010101
    """)
    g.label("POLL_g2a")
    g(f"""
    global_load_dword v2, v15, s[22:23] sc1
    s_waitcnt vmcnt(0)
    v_cmp_ne_u32 vcc, s49, v2
    s_nop 3
    s_cmp_eq_u64 vcc, 0
    s_cbranch_scc1 POLLD_g2a
    s_sleep 8
    s_branch POLL_g2a
    """)
    g.label("POLLD_g2a")
    g.stamp(10)
    for j in range(4): ldB(0, j)
    order = ['A0']*1
    seq = [('A',0)]*4 + [('A',1)]*4 + [('B',0,j) for j in range(4)]
    for st in range(7):
        for j in range(4):
            last = max(i for i, e in enumerate(seq) if (e[0]=='A' and e[1]==st) or (e[0]=='B' and e[1]==st and e[2]==j))
            g(f"s_waitcnt vmcnt({len(seq)-1-last})")
            fa = AR[st & 1]
            for i in range(4):
                a = AC + 4*(4*i+j)
                g(f"v_mfma_f32_16x16x32_bf16 v[{a}:{a+3}], v[{fa+4*i}:{fa+4*i+3}], v[{BR+4*j}:{BR+4*j+3}], v[{a}:{a+3}]")
            if st + 1 < 7:
                ldB(st+1, j); seq.append(('B', st+1, j))
        if st + 2 < 7:
            ldA(st+2); seq += [('A', st+2)]*4
    g.stamp(11)
    g(f"""
    v_lshlrev_b32 v14, 14, v4
    v_lshlrev_b32 v6, 1, v6
    v_add_u32 v14, v14, v6
    s_and_b32 s39, s3, 1
    s_lshl_b32 s38, s24, 18
    s_lshl_b32 s48, s39, 17
    s_add_u32 s38, s38, s48
    v_add_u32 v14, s38, v14
    v_add_u32 v112, 4096, v14
    v_add_u32 v113, 8192, v14
    v_add_u32 v114, 12288, v14
    v_mov_b32 v115, v7
    s_and_b32 s36, s3, 3
    s_lshl_b32 s36, s36, 14
    v_add_u32 v6, s36, v5
    s_lshl_b32 s48, s2, 8
    s_add_u32 s48, s48, {WS_F2+64}
    s_cmp_lt_u32 s3, 4
    s_cbranch_scc1 G2_LOW1
    """)
    for t in range(16):
        g(f"ds_write_b128 v6, v[{AC+4*t}:{AC+4*t+3}] offset:{t*1024}")
    g("s_branch G2_J1")
    g.label("G2_LOW1")
    g("s_cmp_lg_u32 s3, 0\ns_cbranch_scc1 G2_J1")
    poll_flags(g, "g2", 48, 32, 2, 15, base="s[22:23]", slp=4)
    g.label("G2_J1")
    g("s_waitcnt lgkmcnt(0)\ns_barrier")
    g("s_mov_b32 s39, 65536")
    for i in range(2):
        for r in range(4):
            va = [14, 112, 113, 114][r]
            g(f"buffer_load_ushort v{116+4*i+r}, v{va}, s[16:19], {'0' if i == 0 else 's39'} offen sc1")
    g("s_cmp_ge_u32 s3, 4\ns_cbranch_scc1 G2_J2")
    for h in range(2):
        for t in range(8):
            g(f"ds_read_b128 v[{80+4*t}:{83+4*t}], v6 offset:{(8*h+t)*1024}")
        g("s_waitcnt lgkmcnt(0)")
        for t in range(8):
            for r in range(4):
                g(f"v_add_f32 v{AC+32*h+4*t+r}, v{AC+32*h+4*t+r}, v{80+4*t+r}")
    for t in range(16):
        g(f"ds_write_b128 v6, v[{AC+4*t}:{AC+4*t+3}] offset:{t*1024}")
    g.label("G2_J2")
    g(f"""
    s_and_b32 s37, s3, 1
    s_lshl_b32 s37, s37, 13
    s_lshr_b32 s38, s3, 1
    s_lshl_b32 s38, s38, 10
    s_add_u32 s37, s37, s38
    v_add_u32 v7, s37, v5
    s_waitcnt lgkmcnt(0)
    s_barrier
    """)
    for i in range(2):
        for w in range(4):
            g(f"ds_read_b128 v[{16+16*i+4*w}:{19+16*i+4*w}], v7 offset:{w*16384+i*4096}")
    g("s_waitcnt lgkmcnt(0)")
    for i in range(2):
        for r in range(4):
            b = 16+16*i+r
            g(f"v_add_f32 v{b}, v{b}, v{b+4}")
            g(f"v_add_f32 v{b+8}, v{b+8}, v{b+12}")
        for r in range(4):
            b = 16+16*i+r
            g(f"v_add_f32 v{b}, v{b}, v{b+8}")
    g("s_waitcnt vmcnt(0)")
    for i in range(2):
        b = 16+16*i
        g(f"""
        v_cvt_pk_bf16_f32 v{b+4}, v{b}, v{b+1}
        v_cvt_pk_bf16_f32 v{b+5}, v{b+2}, v{b+3}
        v_lshlrev_b32 v{b}, 16, v{b+4}
        v_and_b32 v{b+1}, 0xffff0000, v{b+4}
        v_lshlrev_b32 v{b+2}, 16, v{b+5}
        v_and_b32 v{b+3}, 0xffff0000, v{b+5}
        v_lshlrev_b32 v{b+4}, 16, v{10+2*i}
        v_and_b32 v{b+5}, 0xffff0000, v{10+2*i}
        v_lshlrev_b32 v{b+6}, 16, v{11+2*i}
        v_and_b32 v{b+7}, 0xffff0000, v{11+2*i}
        v_lshlrev_b32 v{b+8}, 16, v{116+4*i}
        v_lshlrev_b32 v{b+9}, 16, v{117+4*i}
        v_lshlrev_b32 v{b+10}, 16, v{118+4*i}
        v_lshlrev_b32 v{b+11}, 16, v{119+4*i}
        v_add_f32 v{b+4}, v{b+4}, v{b+8}
        v_add_f32 v{b+5}, v{b+5}, v{b+9}
        v_add_f32 v{b+6}, v{b+6}, v{b+10}
        v_add_f32 v{b+7}, v{b+7}, v{b+11}
        v_cvt_pk_bf16_f32 v{b+8}, v{b+4}, v{b+5}
        v_cvt_pk_bf16_f32 v{b+9}, v{b+6}, v{b+7}
        v_lshlrev_b32 v{b+4}, 16, v{b+8}
        v_and_b32 v{b+5}, 0xffff0000, v{b+8}
        v_lshlrev_b32 v{b+6}, 16, v{b+9}
        v_and_b32 v{b+7}, 0xffff0000, v{b+9}
        v_add_f32 v{b+4}, v{b+4}, v{b}
        v_add_f32 v{b+5}, v{b+5}, v{b+1}
        v_add_f32 v{b+6}, v{b+6}, v{b+2}
        v_add_f32 v{b+7}, v{b+7}, v{b+3}
        v_cvt_pk_bf16_f32 v{b+8}, v{b+4}, v{b+5}
        v_cvt_pk_bf16_f32 v{b+9}, v{b+6}, v{b+7}
        buffer_store_dwordx2 v[{b+8}:{b+9}], v115, s[32:35], 0 offen offset:{32*i}
        """)
    g.stamp_end(12, "g2")
    g("s_endpgm")

HEADER = open("parallel_sum__ssm_conv_s4__dense_activation_mish__prompt.s.ref").read().split("; Override launch")[0]

def build():
    g = G()
    g.raw(HEADER.rstrip("\n"))
    g.raw(f"; @launch grid=(512,1,1) block=(512,1,1) lds=81920")
    g.raw('.amdgcn_target "amdgcn-amd-amdhsa--gfx950"')
    g.raw(".text")
    gen_mega(g)
    g.raw('.section .rodata,"a"')
    g.raw(".p2align 6")
    g.raw(kernel_desc("parallel_sum__ssm_conv_s4__dense_activation_mish__prompt_kernel", 128))
    return g.text()

if __name__ == "__main__":
    out = sys.argv[1] if len(sys.argv) > 1 else "parallel_sum__ssm_conv_s4__dense_activation_mish__prompt.s"
    txt = build()
    if os.environ.get('LIST'):
        txt = txt.replace("; @launch grid=(512,1,1)", "; @launch kernel=parallel_sum__ssm_conv_s4__dense_activation_mish__prompt_kernel grid=(512,1,1)")
    open(out, "w").write(txt)
    print("written", out)
```

```python
import sys, struct, os
STAMP = os.environ.get('STAMP') is not None
STAMP_WG = int(os.environ.get('STAMP', '0'))
TL = os.environ.get('TL') is not None

def f2u(x): return struct.unpack('<I', struct.pack('<f', x))[0]
def fhex(x): return "0x%08x" % f2u(x)
LOG2E = 1.4426950408889634
INV2PI = 0.15915494309189535

WS_ST  = 0x000000
WS_CS  = 0x010000
WS_XT  = 0x200000
WS_KR  = 0x400000
KR_PITCH = 4160
WS_KS  = 0x620000
WS_FL  = 0x640000
WS_F2  = 0x680000
WS_W2F = 0x800000
WS_AT  = 0xA00000
WS_ACT = 0xC00000

class G:
    def __init__(self): self.L = []
    def __call__(self, s):
        for line in s.strip('\n').split('\n'):
            if line.strip(): self.L.append("    " + line.strip())
    def label(self, s): self.L.append(s + ":")
    def raw(self, s): self.L.append(s)
    def text(self): return "\n".join(self.L) + "\n"
    def stamp(self, i):
        if STAMP: self(f"s_memtime s[{64+2*i}:{65+2*i}]")
    def stamp_end(self, n, tag):
        if TL:
            base = 0x3000000
            self(f"""
            s_waitcnt vmcnt(0) lgkmcnt(0)
            s_memrealtime s[90:91]
            s_memtime s[92:93]
            s_waitcnt lgkmcnt(0)
            s_cmp_lg_u32 s94, 0
            s_cbranch_scc1 TL_SKIP_{tag}
            s_lshl_b32 s83, s95, 4
            s_add_u32 s83, s83, {base}
            v_mov_b32 v0, s83
            v_mov_b32 v4, s88
            v_mov_b32 v5, s90
            s_sub_u32 s92, s92, s86
            v_mov_b32 v6, s92
            s_sub_u32 s84, s84, s86
            v_mov_b32 v7, s84
            global_store_dwordx4 v0, v[4:7], s[22:23]
            """)
            self.label(f"TL_SKIP_{tag}")
        if not STAMP: return
        self(f"""
        s_waitcnt vmcnt(0) lgkmcnt(0)
        s_memtime s[{64+2*n}:{65+2*n}]
        s_waitcnt lgkmcnt(0)
        s_cmp_lg_u32 s95, {STAMP_WG}
        s_cbranch_scc1 ST_SKIP_{tag}
        s_cmp_lg_u32 s94, 0
        s_cbranch_scc1 ST_SKIP_{tag}
        v_mov_b32 v0, 0x3200000
        """)
        for i in range(n+1):
            self(f"s_sub_u32 s93, s{64+2*i}, s64")
            self(f"v_mov_b32 v1, s93")
            self(f"global_store_dword v0, v1, s[22:23] offset:{4*i}")
        self.label(f"ST_SKIP_{tag}")
    def srd(self, d, pb, nbytes, off=0):
        if off:
            self(f"s_add_u32 s{d}, s{pb}, {off}")
            self(f"s_addc_u32 s{d+1}, s{pb+1}, 0")
        else:
            self(f"s_mov_b32 s{d}, s{pb}")
            self(f"s_mov_b32 s{d+1}, s{pb+1}")
        self(f"s_mov_b32 s{d+2}, {nbytes}")
        self(f"s_mov_b32 s{d+3}, 0x00020000")
    def poll(self, tag, soff, target, vt, vz):
        self(f"v_mov_b32 v{vz}, s{soff}")
        self.label(f"POLL_{tag}")
        self(f"""
        global_load_dword v{vt}, v{vz}, s[20:21] sc1
        s_waitcnt vmcnt(0)
        v_readfirstlane_b32 s{soff+1}, v{vt}
        s_nop 3
        s_cmp_ge_u32 s{soff+1}, {target}
        s_cbranch_scc1 POLLD_{tag}
        s_sleep 8
        s_branch POLL_{tag}
        """)
        self.label(f"POLLD_{tag}")

def poll_flags(g, tag, soff, ndw, vt, vz, base='s[20:21]', slp=8):
    g(f"""
    v_min_u32 v{vz}, {ndw-1}, v1
    v_lshlrev_b32 v{vz}, 2, v{vz}
    v_add_u32 v{vz}, s{soff}, v{vz}
    s_mov_b32 s{soff+1}, 0x01010101
    """)
    g.label(f"POLL_{tag}")
    g(f"""
    global_load_dword v{vt}, v{vz}, {base} sc1
    s_waitcnt vmcnt(0)
    v_cmp_ne_u32 vcc, s{soff+1}, v{vt}
    s_nop 3
    s_cmp_eq_u64 vcc, 0
    s_cbranch_scc1 POLLD_{tag}
    s_sleep {slp}
    s_branch POLL_{tag}
    """)
    g.label(f"POLLD_{tag}")

def wait_zero(g, tag, vt, vz):
    g(f"v_mov_b32 v{vz}, 0")
    g.label(f"WZ_{tag}")
    g(f"""
    global_load_dword v{vt}, v{vz}, s[20:21] sc1
    s_waitcnt vmcnt(0)
    v_cmp_eq_u32 vcc, 0, v{vt}
    s_nop 3
    s_cmp_eq_u64 vcc, 0
    s_cbranch_scc1 WZD_{tag}
    s_sleep 8
    s_branch WZ_{tag}
    """)
    g.label(f"WZD_{tag}")

def set_flag(g, sreg, va, vb):
    g(f"""
    v_mov_b32 v{va}, s{sreg}
    v_mov_b32 v{vb}, 0x01010101
    v_cmp_eq_u32 vcc, 0, v1
    s_and_saveexec_b64 s[50:51], vcc
    global_store_dword v{va}, v{vb}, s[22:23] sc1
    s_mov_b64 exec, s[50:51]
    """)

def cons_addr(g, vT, vD, vO, vx):
    g(f"""
    v_and_b32 v{vO}, 3, v{vT}
    v_lshlrev_b32 v{vO}, 3, v{vO}
    v_add_u32 v{vO}, v{vO}, v{vD}
    v_lshlrev_b32 v{vO}, 3, v{vO}
    v_lshrrev_b32 v{vx}, 2, v{vT}
    v_add_u32 v{vO}, v{vO}, v{vx}
    v_lshlrev_b32 v{vO}, 8, v{vO}
    v_add_u32 v{vO}, {WS_F2}, v{vO}
    """)

def poll_wf_all(g, tag, vt, vz):
    for ct in range(4):
        g(f"s_mov_b32 s62, {WS_FL + (ct+1)*4096}")
        poll_flags(g, f"{tag}{ct}", 62, 28, vt, vz, base="s[22:23]")

def kernel_begin(g, name):
    g.raw(f".globl {name}")
    g.raw(".p2align 8")
    g.raw(f".type {name},@function")
    g.label(name)
    g.stamp(0)
    G.kname = name
    if TL:
        g("s_memrealtime s[88:89]\ns_memtime s[86:87]")

def kernel_desc(name, vgpr, sgpr=96):
    acc = (vgpr + 3)//4*4
    return f""".amdhsa_kernel {name}
  .amdhsa_next_free_vgpr {vgpr}
  .amdhsa_next_free_sgpr {sgpr}
  .amdhsa_accum_offset {acc}
  .amdhsa_group_segment_fixed_size 0
  .amdhsa_kernarg_size 128
  .amdhsa_user_sgpr_count 2
  .amdhsa_user_sgpr_kernarg_segment_ptr 1
  .amdhsa_system_sgpr_workgroup_id_x 1
.end_amdhsa_kernel
"""
DPP = ["quad_perm:[1,0,3,2]", "quad_perm:[2,3,0,1]", "row_half_mirror", "row_mirror",
       "row_bcast:15 row_mask:0xa", "row_bcast:31 row_mask:0xc"]

KA_NL = 128
KA_NW = 112
KA_NG = 224
KA_TOTAL = KA_NL + KA_NW + KA_NG
KA_LDS = 81920
TP = 272
TCH = 96*TP
LNP = 1056
TRP = 288

def gen_mega(g):
    kernel_begin(g, "parallel_sum__ssm_conv_s4__dense_activation_mish__prompt_kernel")
    g(f"""
    s_cmp_ge_u32 s2, 512
    s_cbranch_scc1 M_END
    s_load_dwordx4 s[20:23], s[0:1], 112
    v_and_b32 v1, 63, v0
    v_lshrrev_b32 v2, 6, v0
    s_nop 0
    v_readfirstlane_b32 s3, v2
    s_mov_b32 s95, s2
    s_mov_b32 s94, s3
    """)
    if os.environ.get('CPF'):
        g(f"""
        s_cmp_lg_u32 s3, 7
        s_cbranch_scc1 M_NOCPF
        s_getpc_b64 s[48:49]
        v_lshlrev_b32 v4, 7, v1
        v_add_u32 v5, 8192, v4
        v_add_u32 v6, 16384, v4
        v_add_u32 v7, 24576, v4
        global_load_dword v120, v4, s[48:49]
        global_load_dword v120, v5, s[48:49]
        global_load_dword v120, v6, s[48:49]
        """)
        g.label("M_NOCPF")
    g(f"""
    s_cmp_ge_u32 s2, 256
    s_cbranch_scc1 M_G
    """)
    g(f"""
    s_setprio 3
    s_load_dwordx4 s[4:7], s[0:1], 56
    s_min_u32 s36, s3, 5
    s_lshl_b32 s36, s36, 3
    s_add_u32 s36, s36, 8
    s_load_dwordx2 s[8:9], s[0:1], s36
    s_lshl_b32 s28, s2, 2
    s_lshl_b32 s36, s2, 9
    v_and_b32 v5, 31, v1
    v_lshlrev_b32 v5, 4, v5
    v_add_u32 v6, s36, v5
    s_waitcnt lgkmcnt(0)
    s_load_dword s52, s[4:5], s28
    s_load_dword s53, s[6:7], s28
    global_load_dwordx4 v[112:115], v6, s[8:9]
    s_cmp_lg_u32 s2, 0
    s_cbranch_scc1 M_NOZ
    v_lshrrev_b32 v4, 6, v0
    v_lshlrev_b32 v4, 12, v4
    v_lshlrev_b32 v5, 2, v1
    v_add_u32 v4, v4, v5
    v_add_u32 v4, {WS_FL}, v4
    v_add_u32 v5, 0x8000, v4
    v_add_u32 v6, 0x10000, v4
    v_add_u32 v7, 0x18000, v4
    v_mov_b32 v8, 0
    global_store_dword v4, v8, s[22:23] sc1
    global_store_dword v5, v8, s[22:23] sc1
    global_store_dword v6, v8, s[22:23] sc1
    global_store_dword v7, v8, s[22:23] sc1
    v_mov_b32 v9, 0
    v_mov_b32 v10, 0
    v_mov_b32 v11, 0
    v_lshlrev_b32 v4, 4, v0
    v_add_u32 v4, {WS_F2}, v4
    """)
    for i in range(8):
        g(f"global_store_dwordx4 v4, v[8:11], s[22:23] sc1")
        if i < 7: g("v_add_u32 v4, 8192, v4")
    g(f"""
    s_waitcnt vmcnt(0)
    s_barrier
    s_cmp_lg_u32 s3, 0
    s_cbranch_scc1 M_NOZ
    v_mov_b32 v4, 0
    v_mov_b32 v5, 0x01010101
    v_cmp_eq_u32 vcc, 0, v1
    s_and_saveexec_b64 s[50:51], vcc
    global_store_dword v4, v5, s[20:21] sc1
    s_mov_b64 exec, s[50:51]
    """)
    g.label("M_NOZ")
    g(f"""
    s_mov_b32 s55, 0
    s_cmp_ge_u32 s2, {KA_NL}
    s_cbranch_scc1 M_NOTLN
    """)
    gen_ln(g)
    g("s_branch M_CONV")
    g.label("M_NOTLN")
    g(f"""
    s_cmp_ge_u32 s2, {KA_NL+KA_NW}
    s_cbranch_scc1 M_NOROLE
    """)
    gen_w2f(g)
    g("s_branch M_CONV")
    g.label("M_NOROLE")
    g(f"s_cmp_ge_u32 s2, {KA_NL+KA_NW+14}\ns_cbranch_scc1 M_NOROLE2")
    gen_cs(g)
    g("s_branch M_CONV")
    g.label("M_NOROLE2")
    g("s_waitcnt vmcnt(0)")
    g.label("M_CONV")
    gen_conv(g)
    g.label("M_G")
    g(f"""
    {'s_setprio 2' if os.environ.get('GPRIO') else ''}
    s_sub_u32 s2, s2, 256
    s_load_dwordx2 s[56:57], s[0:1], 0
    s_load_dwordx2 s[58:59], s[0:1], 104
    s_mov_b32 s61, 0
    s_cmp_ge_u32 s2, {KA_NG}
    s_cbranch_scc1 M_G2PRE
    """)
    gen_gemm1(g)
    g("s_branch M_G2")
    g.label("M_G2PRE")
    g("s_waitcnt lgkmcnt(0)\ns_cmp_lg_u32 s3, 0\ns_cbranch_scc1 G2_NOPOLL0")
    wait_zero(g, "g2", 2, 15)
    poll_wf_all(g, "g2w", 2, 15)
    g.label("G2_NOPOLL0")
    g("s_barrier")
    g.label("M_G2")
    gen_gemm2(g)
    g.label("M_END")
    g("s_endpgm")

def gen_ln(g):
    NR = 2
    g(f"""
    s_load_dwordx2 s[4:5], s[0:1], 0
    s_lshl_b32 s6, s2, 4
    s_lshl_b32 s7, s3, 1
    s_add_u32 s6, s6, s7
    s_lshl_b32 s7, s6, 10
    v_lshlrev_b32 v3, 4, v1
    s_waitcnt lgkmcnt(0)
    """)
    g.srd(8, 4, 2048*1024)
    g.srd(16, 22, 2048*1024, WS_XT)
    for i in range(NR):
        g(f"buffer_load_dwordx4 v[{16+4*i}:{19+4*i}], v3, s[8:11], s7 offen offset:{1024*i}")
    g("s_waitcnt vmcnt(0)")
    X = 32
    for i in range(NR):
        for j in range(4):
            g(f"v_lshlrev_b32 v{X+8*i+2*j}, 16, v{16+4*i+j}")
            g(f"v_and_b32 v{X+8*i+2*j+1}, 0xffff0000, v{16+4*i+j}")
    def reduce(base):
        for mod in DPP:
            for i in range(NR):
                g(f"v_add_f32_dpp v{base+i}, v{base+i}, v{base+i} {mod}")
            g("s_nop 0")
    for i in range(NR):
        b = X+8*i
        g(f"v_add_f32 v{4+i}, v{b}, v{b+1}")
        g(f"v_add_f32 v{8+i}, v{b+2}, v{b+3}")
        g(f"v_add_f32 v{12+i}, v{b+4}, v{b+5}")
        g(f"v_add_f32 v{64+i}, v{b+6}, v{b+7}")
    for i in range(NR):
        g(f"v_add_f32 v{4+i}, v{4+i}, v{8+i}")
        g(f"v_add_f32 v{12+i}, v{12+i}, v{64+i}")
    for i in range(NR):
        g(f"v_add_f32 v{4+i}, v{4+i}, v{12+i}")
    g("s_nop 1")
    reduce(4)
    for i in range(NR):
        g(f"v_readlane_b32 s{32+i}, v{4+i}, 63")
    g("s_nop 1")
    for i in range(NR):
        g(f"v_mov_b32 v{4+i}, s{32+i}")
    for i in range(NR):
        g(f"v_mul_f32 v{4+i}, {fhex(1.0/512)}, v{4+i}")
    for i in range(NR):
        for j in range(8):
            g(f"v_sub_f32 v{64+j}, v{X+8*i+j}, v{4+i}")
        g(f"v_mul_f32 v{8+i}, v64, v64")
        g(f"v_mul_f32 v{12+i}, v65, v65")
        for j in range(2, 8):
            g(f"v_fma_f32 v{8+i+4*(j&1)}, v{64+j}, v{64+j}, v{8+i+4*(j&1)}")
        g(f"v_add_f32 v{8+i}, v{8+i}, v{12+i}")
    g("s_nop 1")
    reduce(8)
    for i in range(NR):
        g(f"v_readlane_b32 s{32+i}, v{8+i}, 63")
    g("s_nop 1")
    for i in range(NR):
        g(f"v_mov_b32 v{8+i}, s{32+i}")
    for i in range(NR):
        g(f"v_mul_f32 v{8+i}, {fhex(1.0/512)}, v{8+i}")
    for i in range(NR):
        g(f"v_cvt_pk_bf16_f32 v{12+i}, v{4+i}, v{8+i}")
    for i in range(NR):
        g(f"v_lshlrev_b32 v{4+i}, 16, v{12+i}")
        g(f"v_and_b32 v{8+i}, 0xffff0000, v{12+i}")
    for i in range(NR):
        g(f"v_add_f32 v{8+i}, {fhex(1e-5)}, v{8+i}")
    for i in range(NR):
        g(f"v_cvt_pk_bf16_f32 v{8+i}, v{8+i}, v{8+i}")
    for i in range(NR):
        g(f"v_lshlrev_b32 v{8+i}, 16, v{8+i}")
    for i in range(NR):
        g(f"v_sqrt_f32 v{8+i}, v{8+i}")
    g("s_nop 0")
    for i in range(NR):
        g(f"v_cvt_pk_bf16_f32 v{8+i}, v{8+i}, v{8+i}")
    for i in range(NR):
        g(f"v_lshlrev_b32 v{8+i}, 16, v{8+i}")
    for i in range(NR):
        g(f"v_rcp_f32 v{12+i}, v{8+i}")
    g("s_nop 0")
    for i in range(NR):
        g(f"v_fma_f32 v{64+i}, -v{8+i}, v{12+i}, 1.0")
    for i in range(NR):
        g(f"v_fma_f32 v{17+2*i}, v{64+i}, v{12+i}, v{12+i}")
    for i in range(NR):
        g(f"v_mul_f32 v{16+2*i}, v{4+i}, v{17+2*i}")
    g(f"""
    s_lshl_b32 s42, s6, 3
    v_mov_b32 v24, s42
    s_add_u32 s44, s22, {WS_ST}
    s_addc_u32 s45, s23, 0
    v_cmp_eq_u32 vcc, 0, v1
    s_and_saveexec_b64 s[46:47], vcc
    global_store_dwordx4 v24, v[16:19], s[44:45] sc1
    s_mov_b64 exec, s[46:47]
    s_mul_i32 s36, s3, {NR*LNP}
    s_add_u32 s36, s36, {L_T}
    v_add_u32 v2, s36, v3
    """)
    for i in range(NR):
        b = X+8*i
        for j in range(8):
            g(f"v_sub_f32 v{b+j}, v{b+j}, v{4+i}")
        for j in range(4):
            g(f"v_cvt_pk_bf16_f32 v{64+j}, v{b+2*j}, v{b+2*j+1}")
        for j in range(4):
            g(f"v_lshlrev_b32 v{b+2*j}, 16, v{64+j}")
            g(f"v_and_b32 v{b+2*j+1}, 0xffff0000, v{64+j}")
        for j in range(8):
            g(f"v_mul_f32 v{64+j}, v{b+j}, v{12+i}")
        for j in range(8):
            g(f"v_fma_f32 v{b+j}, -v{64+j}, v{8+i}, v{b+j}")
        for j in range(8):
            g(f"v_fma_f32 v{64+j}, v{b+j}, v{12+i}, v{64+j}")
        for j in range(4):
            g(f"v_cvt_pk_bf16_f32 v{72+j}, v{64+2*j}, v{64+2*j+1}")
        for j in range(4):
            g(f"v_lshlrev_b32 v{64+2*j}, 16, v{72+j}")
            g(f"v_and_b32 v{64+2*j+1}, 0xffff0000, v{72+j}")
        o = 76 + 4*(i & 1)
        for j in range(4):
            g(f"v_cvt_pk_f16_f32 v{o+j}, v{64+2*j}, v{64+2*j+1}")
        g(f"ds_write_b128 v2, v[{o}:{o+3}] offset:{i*LNP}")
    g("s_waitcnt lgkmcnt(0)\ns_barrier")
    g(f"""
    v_and_b32 v4, 15, v1
    v_lshrrev_b32 v5, 4, v1
    v_and_b32 v6, 1, v5
    v_lshrrev_b32 v5, 1, v5
    v_lshlrev_b32 v7, 3, v6
    v_lshrrev_b32 v8, 2, v4
    v_add_u32 v7, v7, v8
    v_mul_u32_u24 v7, {LNP}, v7
    v_and_b32 v8, 3, v4
    v_lshlrev_b32 v8, 3, v8
    v_add_u32 v7, v7, v8
    v_lshlrev_b32 v8, 5, v5
    v_add_u32 v7, v7, v8
    s_lshl_b32 s36, s3, 7
    s_add_u32 s36, s36, {L_T}
    v_add_u32 v7, s36, v7
    ds_read_b64_tr_b16 v[16:17], v7
    ds_read_b64_tr_b16 v[18:19], v7 offset:{4*LNP}
    ds_read_b64_tr_b16 v[20:21], v7 offset:64
    ds_read_b64_tr_b16 v[22:23], v7 offset:{4*LNP+64}
    v_lshlrev_b32 v8, 4, v5
    v_add_u32 v8, v8, v4
    v_lshlrev_b32 v8, 5, v8
    v_lshlrev_b32 v9, 4, v6
    v_add_u32 v8, v8, v9
    s_lshl_b32 s36, s2, 14
    s_lshl_b32 s37, s3, 11
    s_add_u32 s36, s36, s37
    s_waitcnt lgkmcnt(0)
    buffer_store_dwordx4 v[16:19], v8, s[16:19], s36 offen sc1
    buffer_store_dwordx4 v[20:23], v8, s[16:19], s36 offen offset:1024 sc1
    """)
    g(f"""
    s_and_b32 s55, s2, 63
    s_lshl_b32 s55, s55, 2
    s_lshr_b32 s37, s2, 6
    s_mul_i32 s37, s37, {29*4096}
    s_add_u32 s55, s55, s37
    s_add_u32 s55, s55, {WS_FL}
    v_mov_b32 v4, 0
    global_load_dword v117, v4, s[20:21] sc1
    """)

def gen_w2f(g):
    g(f"""
    s_load_dwordx2 s[6:7], s[0:1], 96
    v_and_b32 v4, 15, v1
    v_lshrrev_b32 v5, 4, v1
    s_sub_u32 s38, s2, {KA_NL}
    s_lshr_b32 s24, s38, 2
    s_and_b32 s25, s38, 3
    v_lshlrev_b32 v8, 4, v1
    s_lshl_b32 s28, s25, 3
    s_add_u32 s28, s28, s3
    s_mul_i32 s28, s28, 56
    s_lshl_b32 s29, s24, 1
    s_add_u32 s28, s28, s29
    s_lshl_b32 s28, s28, 10
    v_lshrrev_b32 v3, 4, v0
    v_and_b32 v6, 15, v0
    v_lshlrev_b32 v7, 10, v3
    v_lshlrev_b32 v6, 4, v6
    v_add_u32 v7, v7, v6
    s_lshl_b32 s30, s24, 16
    s_lshl_b32 s31, s25, 8
    s_add_u32 s30, s30, s31
    s_add_u32 s31, s30, 32768
    s_waitcnt lgkmcnt(0)
    """)
    g.srd(8, 6, 512*1792*2)
    g.srd(12, 22, 512*1792*2, WS_W2F)
    g(f"""
    buffer_load_dwordx4 v[12:15], v7, s[8:11], s30 offen
    buffer_load_dwordx4 v[16:19], v7, s[8:11], s31 offen
    v_mul_u32_u24 v10, {TRP}, v3
    v_add_u32 v10, v10, v6
    v_add_u32 v10, {L_T}, v10
    v_lshlrev_b32 v6, 3, v5
    v_lshrrev_b32 v7, 2, v4
    v_add_u32 v6, v6, v7
    v_mul_u32_u24 v6, {TRP}, v6
    v_and_b32 v7, 3, v4
    v_lshlrev_b32 v7, 3, v7
    v_add_u32 v6, v6, v7
    s_lshl_b32 s36, s3, 5
    s_add_u32 s36, s36, {L_T}
    v_add_u32 v6, s36, v6
    s_waitcnt vmcnt(0)
    ds_write_b128 v10, v[12:15]
    ds_write_b128 v10, v[16:19] offset:{32*TRP}
    s_waitcnt lgkmcnt(0)
    s_barrier
    ds_read_b64_tr_b16 v[20:21], v6
    ds_read_b64_tr_b16 v[22:23], v6 offset:{4*TRP}
    ds_read_b64_tr_b16 v[24:25], v6 offset:{32*TRP}
    ds_read_b64_tr_b16 v[26:27], v6 offset:{36*TRP}
    s_waitcnt lgkmcnt(0)
    buffer_store_dwordx4 v[20:23], v8, s[12:15], s28 offen sc1
    buffer_store_dwordx4 v[24:27], v8, s[12:15], s28 offen offset:1024 sc1
    s_add_u32 s55, s25, 1
    s_lshl_b32 s55, s55, 12
    s_lshl_b32 s37, s24, 2
    s_add_u32 s55, s55, s37
    s_add_u32 s55, s55, {WS_FL}
    v_mov_b32 v4, 0
    global_load_dword v117, v4, s[20:21] sc1
    """)

def gen_cs(g):
    g(f"""
    s_load_dwordx4 s[4:7], s[0:1], 80
    s_sub_u32 s38, s2, {KA_NL+KA_NW}
    v_lshrrev_b32 v7, 4, v0
    v_and_b32 v8, 15, v0
    v_mul_u32_u24 v9, {16*3584}, v7
    v_lshlrev_b32 v8, 4, v8
    v_add_u32 v9, v9, v8
    s_lshl_b32 s40, s38, 8
    v_and_b32 v10, 127, v0
    v_lshlrev_b32 v10, 1, v10
    v_add_u32 v10, s40, v10
    s_waitcnt lgkmcnt(0)
    """)
    g.srd(8, 4, 512*3584)
    g("global_load_ushort v11, v10, s[6:7]")
    for r in range(16):
        g(f"s_add_u32 s41, s40, {r*3584}")
        g(f"buffer_load_dwordx4 v[{16+4*r}:{19+4*r}], v9, s[8:11], s41 offen")
    g("s_waitcnt vmcnt(0)")
    for j in range(4):
        g(f"v_lshlrev_b32 v{80+2*j}, 16, v{16+j}")
        g(f"v_and_b32 v{80+2*j+1}, 0xffff0000, v{16+j}")
    for r in range(1, 16):
        for j in range(4):
            g(f"v_lshlrev_b32 v12, 16, v{16+4*r+j}")
            g(f"v_and_b32 v13, 0xffff0000, v{16+4*r+j}")
            g(f"v_add_f32 v{80+2*j}, v{80+2*j}, v12")
            g(f"v_add_f32 v{80+2*j+1}, v{80+2*j+1}, v13")
    g(f"""
    v_lshlrev_b32 v12, 9, v7
    v_lshlrev_b32 v13, 1, v8
    v_add_u32 v12, v12, v13
    v_add_u32 v12, {L_T}, v12
    ds_write_b128 v12, v[80:83]
    ds_write_b128 v12, v[84:87] offset:16
    v_and_b32 v13, 127, v0
    v_lshlrev_b32 v13, 2, v13
    v_add_u32 v14, {L_T}, v13
    s_waitcnt lgkmcnt(0)
    s_barrier
    s_cmp_ge_u32 s3, 2
    s_cbranch_scc1 CS_DONE
    """)
    for r in range(32):
        g(f"ds_read_b32 v{16+r}, v14 offset:{512*r}")
    g("s_waitcnt lgkmcnt(0)")
    for st in [16, 8, 4, 2, 1]:
        for r in range(st):
            g(f"v_add_f32 v{16+r}, v{16+r}, v{16+st+r}")
    g(f"""
    s_add_u32 s44, s22, {WS_CS}
    s_addc_u32 s45, s23, 0
    s_lshl_b32 s41, s38, 9
    v_add_u32 v13, s41, v13
    v_add_u32 v14, {1792*4}, v13
    v_lshlrev_b32 v11, 16, v11
    global_store_dword v13, v16, s[44:45] sc1
    global_store_dword v14, v11, s[44:45] sc1
    """)
    g.label("CS_DONE")
    g(f"""
    s_lshl_b32 s55, s38, 2
    s_add_u32 s55, s55, {WS_FL+30*4096}
    v_mov_b32 v4, 0
    global_load_dword v117, v4, s[20:21] sc1
    """)

L_SC = 2*TCH
L_P = L_SC + 64
L_T = L_P + 3072
L_R = L_T + 16384
def gen_kgen_setup(g):
    g(f"""
    s_lshr_b32 s31, s3, 2
    s_and_b32 s30, s3, 3
    s_mov_b32 s40, 0
    s_mov_b32 s41, {fhex(16.0)}
    s_mov_b32 s42, 0
    s_mov_b32 s43, {fhex(1.0)}
    s_cmp_eq_u32 s30, 1
    s_cselect_b32 s40, {fhex(256.0)}, s40
    s_cselect_b32 s42, {fhex(8.0)}, s42
    s_cmp_eq_u32 s30, 2
    s_cselect_b32 s40, {fhex(512.0)}, s40
    s_cmp_eq_u32 s30, 3
    s_cselect_b32 s40, {fhex(1536.0)}, s40
    s_cselect_b32 s42, {fhex(32.0)}, s42
    s_cmp_ge_u32 s30, 2
    s_cselect_b32 s41, {fhex(64.0)}, s41
    s_cselect_b32 s43, {fhex(4.0)}, s43
    s_mul_i32 s32, s31, {TCH}
    s_mul_i32 s28, s30, {16*TP}
    s_add_u32 s28, s28, s32
    s_mul_i32 s29, s30, {8*TP}
    s_add_u32 s29, s29, {64*TP}
    s_add_u32 s29, s29, s32
    v_lshlrev_b32 v6, 2, v1
    v_add_u32 v7, s29, v6
    v_add_u32 v6, s28, v6
    v_and_b32 v8, 15, v1
    v_lshrrev_b32 v9, 4, v1
    v_mul_u32_u24 v8, {TP}, v8
    v_lshlrev_b32 v9, 4, v9
    v_add_u32 v8, v8, v9
    s_lshr_b32 s33, s30, 1
    s_mul_i32 s33, s33, {16*TP}
    s_add_u32 s33, s33, {64*TP}
    s_add_u32 s33, s33, s32
    v_add_u32 v9, s33, v8
    v_add_u32 v8, s28, v8
    v_and_b32 v10, 15, v1
    v_lshrrev_b32 v11, 4, v1
    v_lshlrev_b32 v11, 8, v11
    v_lshlrev_b32 v10, 2, v10
    v_add_u32 v10, v10, v11
    s_lshl_b32 s28, s30, 10
    s_lshl_b32 s29, s31, 12
    s_add_u32 s28, s28, s29
    s_add_u32 s28, s28, {L_T}
    v_add_u32 v10, s28, v10
    v_lshlrev_b32 v11, 2, v0
    v_sub_u32 v11, 2047, v11
    """)
    for j in range(4):
        g(f"""
        v_subrev_u32 v{16+j}, {j}, v11
        v_cvt_f32_u32 v{16+j}, v{16+j}
        v_cvt_pk_bf16_f32 v{16+j}, v{16+j}, v{16+j}
        v_lshlrev_b32 v{16+j}, 16, v{16+j}
        v_cvt_u32_f32 v{16+j}, v{16+j}
        v_subrev_u32 v12, 512, v{16+j}
        v_lshrrev_b32 v12, 2, v12
        v_add_u32 v12, 512, v12
        v_cmp_gt_u32 vcc, 512, v{16+j}
        s_nop 1
        v_cndmask_b32 v{16+j}, v12, v{16+j}, vcc
        v_lshlrev_b32 v{16+j}, 2, v{16+j}
        v_add_u32 v{16+j}, {L_T}, v{16+j}
        """)

def gen_kgen(g, dd):
    b = 52 + 8*dd
    def direct(sl, vare, vaim, vr, vi, t0, t1):
        g(f"""
        v_mul_f32 v{t0}, s{sl}, v{vare}
        v_mul_f32 v{t1}, s{sl}, v{vaim}
        v_exp_f32 v{t0}, v{t0}
        v_fract_f32 v{t1}, v{t1}
        v_cos_f32 v{vr}, v{t1}
        v_sin_f32 v{vi}, v{t1}
        s_nop 0
        v_mul_f32 v{vr}, v{t0}, v{vr}
        v_mul_f32 v{vi}, v{t0}, v{vi}
        """)
    def cmul(dr, di, ar, ai, br, bi):
        g(f"""
        v_mul_f32 v{dr}, v{ar}, v{br}
        v_mul_f32 v{di}, v{ar}, v{bi}
        v_fma_f32 v{dr}, -v{ai}, v{bi}, v{dr}
        v_fma_f32 v{di}, v{ai}, v{br}, v{di}
        """)
    def emit(zr, zi, vaddr, row, t):
        g(f"""
        v_cvt_pk_f16_f32 v{t}, v{zr}, v{zi}
        ds_write_b32 v{vaddr}, v{t} offset:{row*TP}
        """)
    g(f"""
    v_lshlrev_b32 v5, 16, v{b+6}
    v_mul_f32 v5, {fhex(LOG2E)}, v5
    v_exp_f32 v5, v5
    s_nop 0
    v_cvt_pk_bf16_f32 v5, v5, v5
    v_lshlrev_b32 v5, 16, v5
    """)
    for i in range(6):
        g(f"v_lshlrev_b32 v{b+i}, 16, v{b+i}")
    g(f"""
    v_mul_f32 v24, v5, v{b}
    v_mul_f32 v25, v5, v{b+1}
    v_mul_f32 v24, {fhex(LOG2E)}, v24
    v_mul_f32 v25, {fhex(INV2PI)}, v25
    v_sub_f32 v26, 0, v25
    v_mul_f32 v27, v5, v{b+2}
    v_mul_f32 v28, v5, v{b+3}
    """)
    cmul(29, 30, b+4, b+5, 27, 28)
    g(f"""
    v_max_f32 v31, abs(v29), abs(v30)
    v_max_f32 v31, {fhex(1e-30)}, v31
    """)
    direct(40, 24, 26, 32, 33, 40, 41)
    g(f"v_max_f32_dpp v31, v31, v31 {DPP[0]}")
    direct(41, 24, 26, 34, 35, 40, 41)
    g(f"v_max_f32_dpp v31, v31, v31 {DPP[1]}")
    direct(42, 24, 25, 44, 45, 40, 41)
    g(f"v_max_f32_dpp v31, v31, v31 {DPP[2]}")
    direct(43, 24, 25, 46, 47, 40, 41)
    for mod in DPP[3:]:
        g(f"v_max_f32_dpp v31, v31, v31 {mod}\ns_nop 1")
    g(f"""
    v_readlane_b32 s34, v31, 63
    s_nop 3
    v_mov_b32 v31, s34
    v_rcp_f32 v40, v31
    s_lshl_b32 s34, s31, 2
    s_add_u32 s34, s34, {L_SC + 8*dd}
    v_mov_b32 v41, s34
    ds_write_b32 v41, v31
    v_mul_f32 v29, v29, v40
    v_mul_f32 v30, v30, v40
    v_sub_f32 v30, 0, v30
    v_mov_b32 v68, 0
    v_mov_b32 v69, 0
    v_mov_b32 v70, 0
    v_mov_b32 v71, 0
    """)
    cmul(36, 37, 29, 30, 32, 33)
    if dd == 1:
        g("s_barrier")
    z = (36, 37); zn = (38, 39)
    y = (44, 45); yn = (48, 49)
    for k in range(16):
        emit(z[0], z[1], 6, k, 42 + (k & 1))
        if k < 8:
            emit(y[0], y[1], 7, k, 50 + (k & 1))
        if k < 15:
            cmul(zn[0], zn[1], z[0], z[1], 34, 35)
            z, zn = zn, z
        if k < 7:
            cmul(yn[0], yn[1], y[0], y[1], 46, 47)
            y, yn = yn, y
    g("s_waitcnt lgkmcnt(0)\ns_barrier")
    for gi in range(4):
        g(f"ds_read_b128 v[{72+8*gi}:{75+8*gi}], v8 offset:{64*gi}")
        g(f"ds_read_b128 v[{76+8*gi}:{79+8*gi}], v9 offset:{64*gi}")
    g(f"v_mov_b32 v12, {L_SC+8*dd}\nds_read_b64 v[14:15], v12")
    for gi in range(4):
        g(f"s_waitcnt lgkmcnt({7-2*gi})")
        g(f"v_mfma_f32_16x16x32_f16 v[68:71], v[{72+8*gi}:{75+8*gi}], v[{76+8*gi}:{79+8*gi}], v[68:71]")
    g(f"""
    s_waitcnt lgkmcnt(0)
    v_add_f32 v{104+dd}, v14, v15
    v_rcp_f32 v{106+dd}, v{104+dd}
    s_nop 6
    v_mul_f32 v68, v68, v31
    v_mul_f32 v69, v69, v31
    v_mul_f32 v70, v70, v31
    v_mul_f32 v71, v71, v31
    ds_write_b32 v10, v68 offset:{8192*dd}
    ds_write_b32 v10, v69 offset:{8192*dd+64}
    ds_write_b32 v10, v70 offset:{8192*dd+128}
    ds_write_b32 v10, v71 offset:{8192*dd+192}
    """)

NST = 5
def gen_gemm1(g):
    if os.environ.get('PRIO'): g("s_setprio 2")
    g(f"""
    s_load_dwordx2 s[4:5], s[0:1], 88
    s_load_dwordx2 s[6:7], s[0:1], 0
    s_load_dwordx2 s[36:37], s[0:1], 80
    s_lshr_b32 s25, s2, 3
    s_mul_i32 s26, s25, 37
    s_lshr_b32 s26, s26, 8
    s_mul_i32 s27, s26, 7
    s_sub_u32 s25, s25, s27
    s_and_b32 s24, s2, 6
    s_lshl_b32 s24, s24, 1
    s_add_u32 s24, s24, s26
    s_and_b32 s27, s2, 1
    s_mul_i32 s27, s27, 7
    s_add_u32 s25, s25, s27
    """)
    g(f"""
    v_lshrrev_b32 v3, 4, v1
    v_and_b32 v4, 15, v1
    v_lshlrev_b32 v5, 2, v3
    v_xor_b32 v4, v4, v5
    v_lshlrev_b32 v4, 4, v4
    s_lshl_b32 s26, s3, 2
    v_add_u32 v3, s26, v3
    v_mul_u32_u24 v3, 3584, v3
    v_add_u32 v3, v3, v4
    s_lshl_b32 s26, s25, 8
    """)
    if os.environ.get('E1'): g("s_mov_b32 s26, 0")
    g(f"""
    v_add_u32 v8, s26, v3
    v_lshrrev_b32 v3, 2, v1
    v_and_b32 v4, 3, v1
    v_lshrrev_b32 v5, 2, v3
    v_xor_b32 v4, v4, v5
    v_lshlrev_b32 v4, 4, v4
    s_lshl_b32 s26, s3, 4
    v_add_u32 v3, s26, v3
    v_lshlrev_b32 v3, 10, v3
    v_add_u32 v3, v3, v4
    s_lshl_b32 s26, s24, 17
    """)
    if os.environ.get('E1'): g("s_mov_b32 s26, 0")
    g(f"""
    v_add_u32 v9, s26, v3
    s_lshl_b32 s28, s3, 10
    s_waitcnt lgkmcnt(0)
    """)
    g.srd(8, 36, 512*3584)
    g.srd(12, 6, 2048*1024)
    g.srd(16, 22, 2048*3584, WS_ACT)
    g.stamp(1)
    def issue(k):
        buf = (k % NST) * 16384
        g(f"""
        s_mov_b32 s30, {32*3584*k}
        s_mov_b32 s31, {64*k}
        s_add_u32 m0, s28, {buf}
        s_nop 0
        buffer_load_dwordx4 v8, s[8:11], s30 offen lds
        s_add_u32 m0, s28, {buf + 8192}
        s_nop 0
        buffer_load_dwordx4 v9, s[12:15], s31 offen lds
        """)
    for k in range(NST):
        issue(k)
        if k < 2 and os.environ.get('ISB'): g("s_barrier")
    g(f"""
    v_lshrrev_b32 v3, 4, v1
    v_and_b32 v4, 15, v1
    v_lshrrev_b32 v5, 2, v4
    v_lshrrev_b32 v6, 1, v3
    v_lshlrev_b32 v6, 3, v6
    v_add_u32 v6, v6, v5
    v_lshlrev_b32 v6, 8, v6
    v_and_b32 v7, 1, v4
    v_lshlrev_b32 v7, 3, v7
    v_add_u32 v6, v6, v7
    v_and_b32 v7, 1, v3
    v_lshlrev_b32 v7, 1, v7
    v_bfe_u32 v10, v4, 1, 1
    v_add_u32 v7, v7, v10
    s_and_b32 s29, s3, 1
    s_lshl_b32 s29, s29, 3
    v_add_u32 v7, s29, v7
    v_lshlrev_b32 v5, 2, v5
    v_xor_b32 v10, v7, v5
    v_lshlrev_b32 v10, 4, v10
    v_add_u32 v16, v6, v10
    v_add_u32 v7, 4, v7
    v_xor_b32 v10, v7, v5
    v_lshlrev_b32 v10, 4, v10
    v_add_u32 v17, v6, v10
    v_and_b32 v3, 31, v1
    v_lshrrev_b32 v4, 5, v1
    v_lshrrev_b32 v5, 2, v3
    v_and_b32 v5, 3, v5
    v_lshlrev_b32 v6, 6, v3
    s_lshr_b32 s30, s3, 1
    s_lshl_b32 s30, s30, 11
    s_add_u32 s30, s30, 8192
    v_add_u32 v6, s30, v6
    v_xor_b32 v7, v4, v5
    v_lshlrev_b32 v7, 4, v7
    v_add_u32 v18, v6, v7
    v_add_u32 v7, 2, v4
    v_xor_b32 v7, v7, v5
    v_lshlrev_b32 v7, 4, v7
    v_add_u32 v19, v6, v7
    """)
    A0 = 64
    for i in range(32):
        g(f"v_mov_b32 v{A0+i}, 0")
    for i in range(4):
        g(f"v_add_u32 v{11+i}, 0x10000, v{16+i}")
    FS = [96, 26]
    B2 = [8, 12, 16, 60]
    def rd(k, kk):
        buf = (k % NST) * 16384
        F = FS[k & 1]
        vb = 16
        if buf >= 65536:
            buf -= 65536; vb = 11
        f = F + 12*kk
        for mt in range(2):
            g(f"ds_read_b64_tr_b16 v[{f+4*mt}:{f+4*mt+1}], v{vb+mt} offset:{buf+4096*kk}")
            g(f"ds_read_b64_tr_b16 v[{f+4*mt+2}:{f+4*mt+3}], v{vb+mt} offset:{buf+4096*kk+1024}")
        g(f"ds_read_b128 v[{f+8}:{f+11}], v{vb+2+kk} offset:{buf}")
    g(f"""
    v_mov_b32 v58, 0
    v_mov_b32 v59, 0
    v_mov_b32 v61, 0
    v_mov_b32 v62, 0
    s_mov_b32 s33, 0x3f803f80
    s_lshr_b32 s34, s3, 1
    s_add_u32 s44, s22, {WS_ST}
    s_addc_u32 s45, s23, 0
    s_lshl_b32 s26, s24, 7
    s_lshl_b32 s27, s34, 5
    s_add_u32 s26, s26, s27
    v_add_u32 v22, s26, v3
    v_lshlrev_b32 v22, 3, v22
    s_and_b32 s40, s24, 7
    s_lshl_b32 s40, s40, 5
    s_lshr_b32 s41, s24, 3
    s_mul_i32 s41, s41, {29*4096}
    s_add_u32 s40, s40, s41
    s_add_u32 s40, s40, {WS_FL}
    s_waitcnt vmcnt({2*(NST-1)})
    s_barrier
    """)
    g.stamp(2)
    rd(0, 0); rd(0, 1)
    for k in range(16):
        F = FS[k & 1]
        def mf(kk, mt):
            f = F + 12*kk
            a = A0 + 16*mt
            g(f"v_mfma_f32_32x32x16_bf16 v[{a}:{a+15}], v[{f+4*mt}:{f+4*mt+3}], v[{f+8}:{f+11}], v[{a}:{a+15}]")
        if k < 15:
            younger = 2*(min(k+NST-1, 15) - (k+1))
            if k > 12: younger += 1
            g(f"s_waitcnt vmcnt({younger}) lgkmcnt(0)")
            g("s_barrier")
            if k < 3: g.stamp(3+k)
            if k == 8: g.stamp(7)
            if k == 8 and os.environ.get('GPRIO') == '3': g("s_setprio 0")
            mf(0, 0)
            rd(k+1, 0)
            mf(0, 1)
            rd(k+1, 1)
            mf(1, 0)
            if k + NST < 16 and not os.environ.get('E2'):
                issue(k + NST)
            mf(1, 1)
        else:
            g("s_waitcnt lgkmcnt(0)")
            mf(0, 0); mf(0, 1); mf(1, 0); mf(1, 1)
        if k == 7:
            g("s_cmp_lg_u32 s3, 0\ns_cbranch_scc1 G1_NOZL\nv_mov_b32 v23, 0\nglobal_load_dword v61, v23, s[20:21] sc1")
            g.label("G1_NOZL")
        if k == 11:
            g("s_cmp_lg_u32 s3, 0\ns_cbranch_scc1 G1_NOPOLL")
            g(f"""
            s_waitcnt vmcnt(0)
            v_cmp_eq_u32 vcc, 0, v61
            s_nop 3
            s_cmp_eq_u64 vcc, 0
            s_cbranch_scc1 G1_ZOK
            """)
            wait_zero(g, "g1p", 20, 21)
            g.label("G1_ZOK")
            g(f"""
            v_cmp_le_u32 vcc, 28, v1
            s_nop 1
            v_cndmask_b32 v20, 0, 1, vcc
            v_mul_u32_u24 v21, 28, v20
            v_sub_u32 v21, v1, v21
            v_lshlrev_b32 v21, 2, v21
            v_lshlrev_b32 v20, 12, v20
            v_add_u32 v20, v20, v21
            v_add_u32 v21, {WS_FL+3*4096}, v20
            v_add_u32 v20, {WS_FL+4096}, v20
            v_subrev_u32 v23, 56, v1
            v_lshlrev_b32 v23, 2, v23
            v_add_u32 v23, s40, v23
            s_lshl_b32 s41, s25, 2
            s_add_u32 s41, s41, {WS_FL+30*4096}
            v_mov_b32 v24, s41
            v_cmp_le_u32 vcc, 56, v1
            s_nop 1
            v_cndmask_b32 v20, v20, v23, vcc
            v_cndmask_b32 v21, v21, v24, vcc
            v_mov_b32 v23, 0
            s_mov_b32 s41, 0x01010101
            """)
            g.label("POLL_g1c")
            g(f"""
            global_load_dword v25, v20, s[22:23] sc1
            global_load_dword v60, v21, s[22:23] sc1
            s_waitcnt vmcnt(0)
            v_cmp_ne_u32 vcc, s41, v25
            v_cmp_ne_u32 s[42:43], s41, v60
            s_nop 3
            s_or_b64 vcc, vcc, s[42:43]
            s_cmp_eq_u64 vcc, 0
            s_cbranch_scc1 POLLD_g1c
            s_sleep 8
            s_branch POLL_g1c
            """)
            g.label("POLLD_g1c")
            g.label("G1_NOPOLL")
        if k == 12:
            g("global_load_dwordx2 v[20:21], v22, s[44:45] sc1")
            g(f"""
            s_cmp_ge_u32 s3, 2
            s_cbranch_scc1 G1_NOCSL
            s_mul_i32 s30, s3, {1792*4}
            s_lshl_b32 s31, s25, 9
            s_add_u32 s30, s30, s31
            s_add_u32 s30, s30, {WS_CS}
            v_and_b32 v23, 31, v1
            v_lshlrev_b32 v23, 4, v23
            v_add_u32 v23, s30, v23
            s_lshl_b32 s31, s3, 10
            s_add_u32 m0, s31, 16384
            s_nop 0
            global_load_lds_dwordx4 v23, s[22:23] sc1
            """)
            g.label("G1_NOCSL")
        if k == 15:
            g(f"""
            s_lshr_b32 s30, s2, 3
            s_mul_i32 s30, s30, {64*1024}
            s_add_u32 s30, s30, {WS_W2F}
            v_lshlrev_b32 v23, 7, v0
            v_add_u32 v23, s30, v23
            global_load_dword v59, v23, s[22:23] sc1
            """)
    g.stamp(6)
    if os.environ.get('GPRIO') == '2': g("s_setprio 0")
    g(f"""
    s_and_b32 s27, s3, 1
    s_lshl_b32 s27, s27, 8
    v_lshlrev_b32 v25, 4, v4
    v_add_u32 v25, s27, v25
    s_waitcnt vmcnt(1)
    s_barrier
    """)
    for mt in range(2):
        for gi in range(4):
            g(f"ds_read_b128 v[{96+16*mt+4*gi}:{99+16*mt+4*gi}], v25 offset:{16384+128*mt+32*gi}")
    for gi in range(4):
        g(f"ds_read_b128 v[{26+4*gi}:{29+4*gi}], v25 offset:{16384+1024+32*gi}")
    for gi in range(4):
        g(f"ds_read_b128 v[{B2[gi]}:{B2[gi]+3}], v25 offset:{16384+1024+128+32*gi}")
    g(f"""
    s_lshl_b32 s26, s24, 3
    s_lshr_b32 s27, s3, 1
    s_lshl_b32 s27, s27, 1
    s_add_u32 s26, s26, s27
    v_lshrrev_b32 v5, 4, v3
    v_add_u32 v5, s26, v5
    v_mul_u32_u24 v5, {56*1024}, v5
    v_and_b32 v6, 15, v3
    v_lshlrev_b32 v6, 4, v6
    v_add_u32 v5, v5, v6
    v_lshlrev_b32 v6, 8, v4
    v_add_u32 v5, v5, v6
    s_lshl_b32 s26, s25, 2
    s_and_b32 s27, s3, 1
    s_lshl_b32 s27, s27, 1
    s_add_u32 s26, s26, s27
    s_lshl_b32 s26, s26, 10
    s_mov_b32 s27, {fhex(LOG2E)}
    s_waitcnt lgkmcnt(0)
    """)
    g.stamp(8)
    T = 42
    for mt in range(2):
        a = A0 + 16*mt
        for half in range(2):
            R = [a + 8*half + i for i in range(8)]
            CSv = [96 + 16*mt + 8*half + i for i in range(8)]
            Bv = [26 + 8*half + i for i in range(8)] if mt == 0 else [B2[2*half + (i>>2)] + (i&3) for i in range(8)]
            for j in range(8):
                g(f"v_fma_f32 v{CSv[j]}, -v20, v{CSv[j]}, v{Bv[j]}")
            for j in range(8):
                g(f"v_fma_f32 v{R[j]}, v{R[j]}, v21, v{CSv[j]}")
            for j in range(4):
                g(f"v_cvt_pk_bf16_f32 v{T+j}, v{R[2*j]}, v{R[2*j+1]}")
            for j in range(4):
                g(f"v_lshlrev_b32 v{R[2*j]}, 16, v{T+j}")
                g(f"v_and_b32 v{R[2*j+1]}, 0xffff0000, v{T+j}")
            for j in range(8):
                g(f"v_mul_f32 v{T+j}, s27, v{R[j]}")
            for j in range(8):
                g(f"v_exp_f32 v{T+j}, v{T+j}")
            for j in range(8):
                g(f"v_add_f32 v{T+8+j}, 2.0, v{T+j}")
            for j in range(8):
                g(f"v_fma_f32 v{T+j}, v{T+j}, v{T+8+j}, 2.0")
            for j in range(8):
                g(f"v_rcp_f32 v{T+j}, v{T+j}")
            for j in range(8):
                g(f"v_fma_f32 v{T+j}, -2.0, v{T+j}, 1.0")
            for j in range(8):
                g(f"v_mul_f32 v{T+j}, v{T+j}, v{R[j]}")
            for j in range(4):
                g(f"v_cvt_pk_bf16_f32 v{R[j]}, v{T+2*j}, v{T+2*j+1}")
            g(f"""
            s_nop 1
            v_permlane32_swap_b32 v{R[0]}, v{R[2]}
            v_permlane32_swap_b32 v{R[1]}, v{R[3]}
            s_nop 0
            buffer_store_dwordx4 v[{R[0]}:{R[3]}], v5, s[16:19], s26 offen offset:{1024*mt+512*half} sc1
            """)
    g.stamp(9)
    if TL: g("s_memtime s[84:85]")
    g(f"""
    s_lshl_b32 s60, s24, 1
    s_lshl_b32 s62, s25, 2
    s_mov_b32 s61, 1
    {'s_setprio 0' if os.environ.get('GPRIO') == '1' else ''}
    """)

KB_NG = 256
KB_NC = 256
KB_TOTAL = KB_NG + KB_NC
KB_LDS = 81920
CV_COPY = 8*KR_PITCH
CV_U = 95*80
CV_D = CV_COPY + CV_U

def gen_conv(g):
    g(f"""
    s_lshr_b32 s24, s3, 2
    s_lshl_b32 s25, s2, 1
    s_add_u32 s25, s25, s24
    s_and_b32 s26, s3, 3
    s_mul_i32 s27, s24, {CV_D}
    v_and_b32 v3, 255, v0
    v_and_b32 v5, 31, v1
    v_lshlrev_b32 v5, 4, v5
    s_waitcnt lgkmcnt(0)
    s_mov_b32 s35, s52
    s_mov_b32 s36, s53
    """)
    g.stamp(1)
    g.srd(12, 22, 2048*1024, WS_XT)
    g.srd(16, 22, 2048*1024, WS_AT)
    g(f"""
    v_lshrrev_b32 v116, 1, v3
    v_lshlrev_b32 v116, 14, v116
    v_and_b32 v8, 1, v3
    v_lshlrev_b32 v8, 4, v8
    v_add_u32 v116, v116, v8
    s_lshl_b32 s54, s25, 5
    s_min_u32 s37, s3, 5
    s_lshl_b32 s37, s37, 9
    s_add_u32 s37, s37, {L_P}
    v_add_u32 v56, s37, v5
    """)
    gen_kgen_setup(g)
    g(f"""
    ds_write_b128 v56, v[112:115]
    v_lshlrev_b32 v12, 1, v1
    s_lshl_b32 s28, s31, 7
    s_add_u32 s28, s28, {L_P}
    v_add_u32 v12, s28, v12
    s_waitcnt vmcnt(0) lgkmcnt(0)
    s_barrier
    s_cmp_lg_u32 s3, 7
    s_cbranch_scc1 KG_NOSIG
    s_cmp_eq_u32 s55, 0
    s_cbranch_scc1 KG_NOSIG
    v_cmp_eq_u32 vcc, 0, v117
    s_nop 3
    s_cmp_eq_u64 vcc, 0
    s_cbranch_scc1 KG_ZOK
    """)
    wait_zero(g, "kg", 117, 118)
    g.label("KG_ZOK")
    set_flag(g, 55, 117, 118)
    g.label("KG_NOSIG")
    g(f"s_setprio {os.environ.get('CPRIO','0')}")
    for dd in range(2):
        for i in range(6):
            g(f"ds_read_u16 v{52+8*dd+i}, v12 offset:{512*i+256*dd}")
    g(f"""
    s_and_b32 s28, s35, 0xffff
    s_lshr_b32 s29, s35, 16
    v_mov_b32 v58, s28
    v_mov_b32 v66, s29
    s_waitcnt lgkmcnt(0)
    """)
    g.stamp(2)
    gen_kgen(g, 0)
    gen_kgen(g, 1)
    g("s_cmp_lg_u32 s3, 0\ns_cbranch_scc1 CV_NOPOLL")
    wait_zero(g, "cv", 20, 21)
    g(f"s_mov_b32 s48, {WS_FL}")
    poll_flags(g, "cv", 48, 64, 20, 21, base="s[22:23]", slp=8)
    g(f"s_mov_b32 s48, {WS_FL+29*4096}")
    poll_flags(g, "cv2", 48, 64, 20, 21, base="s[22:23]", slp=8)
    g.label("CV_NOPOLL")
    g("s_waitcnt lgkmcnt(0)\ns_barrier")
    g("buffer_load_dwordx4 v[108:111], v116, s[12:15], s54 offen sc1")
    g.stamp(3)
    for dd in range(2):
        for j in range(4):
            g(f"ds_read_b32 v{20+8*dd+j}, v{16+j} offset:{8192*dd}")
            g(f"ds_read_b32 v{24+8*dd+j}, v{16+j} offset:{8192*dd+4096}")
    g(f"""
    v_lshlrev_b32 v12, 3, v0
    v_add_u32 v12, {L_R}, v12
    v_mov_b32 v40, 0
    v_mov_b32 v41, 0
    v_mov_b32 v42, 0
    v_mov_b32 v43, 0
    v_lshlrev_b32 v4, 4, v3
    s_mul_i32 s28, s24, {KR_PITCH}
    s_add_u32 s28, s28, {L_R}
    v_add_u32 v13, s28, v4
    s_waitcnt lgkmcnt(0)
    """)
    for dd in range(2):
        for j in range(4):
            g(f"v_add_f32 v{20+8*dd+j}, v{20+8*dd+j}, v{24+8*dd+j}")
        for j in range(4):
            g(f"v_mul_f32 v{20+8*dd+j}, v{20+8*dd+j}, v{106+dd}")
        g(f"v_cvt_pk_f16_f32 v{36+2*dd}, v{20+8*dd}, v{21+8*dd}")
        g(f"v_cvt_pk_f16_f32 v{37+2*dd}, v{22+8*dd}, v{23+8*dd}")
        g(f"ds_write_b64 v12, v[{36+2*dd}:{37+2*dd}] offset:{KR_PITCH*dd}")
    g(f"""
    v_cmp_gt_u32 vcc, 8, v0
    s_and_saveexec_b64 s[30:31], vcc
    ds_write_b64 v12, v[40:41] offset:4096
    ds_write_b64 v12, v[40:41] offset:{KR_PITCH+4096}
    s_mov_b64 exec, s[30:31]
    s_waitcnt lgkmcnt(0)
    s_barrier
    ds_read_b128 v[64:67], v13
    ds_read_b128 v[68:71], v13 offset:16
    v_lshrrev_b32 v5, 2, v3
    v_and_b32 v6, 3, v3
    v_lshlrev_b32 v6, 4, v6
    v_mul_u32_u24 v5, {KR_PITCH}, v5
    v_add_u32 v5, v5, v6
    v_add_u32 v5, 4096, v5
    v_add_u32 v5, s27, v5
    v_add_u32 v6, s27, v4
    v_lshrrev_b32 v24, 2, v3
    v_and_b32 v25, 3, v3
    v_mul_u32_u24 v24, 80, v24
    v_lshlrev_b32 v25, 4, v25
    v_add_u32 v24, v24, v25
    v_add_u32 v24, s27, v24
    s_waitcnt lgkmcnt(0)
    s_barrier
    v_cmp_gt_u32 vcc, 155, v3
    s_and_saveexec_b64 s[30:31], vcc
    ds_write_b128 v6, v[40:43] offset:{CV_COPY}
    s_mov_b64 exec, s[30:31]
    v_cmp_gt_u32 vcc, 32, v3
    s_and_saveexec_b64 s[30:31], vcc
    ds_write_b128 v5, v[40:43]
    s_mov_b64 exec, s[30:31]
    ds_write_b128 v6, v[64:67]
    ds_write_b128 v6, v[66:69] offset:{4*KR_PITCH}
    """)
    for j in range(1, 7):
        g(f"v_mov_b32 v{73+j}, v{64+j}")
    for j in range(7):
        g(f"v_alignbit_b32 v{80+j}, v{65+j}, v{64+j}, 16")
    for j in range(1, 7):
        g(f"v_alignbit_b32 v{87+j}, v{65+j}, v{64+j}, 16")
    g(f"""
    ds_write_b128 v6, v[74:77] offset:{2*KR_PITCH}
    ds_write_b128 v6, v[76:79] offset:{6*KR_PITCH}
    ds_write_b128 v6, v[80:83] offset:{1*KR_PITCH}
    ds_write_b128 v6, v[82:85] offset:{5*KR_PITCH}
    ds_write_b128 v6, v[88:91] offset:{3*KR_PITCH}
    ds_write_b128 v6, v[90:93] offset:{7*KR_PITCH}
    s_waitcnt vmcnt(0)
    ds_write_b128 v24, v[108:111] offset:{CV_COPY+31*80}
    s_lshr_b32 s30, s36, 16
    s_and_b32 s31, s36, 0xffff
    s_cmp_eq_u32 s24, 0
    s_cselect_b32 s36, s31, s30
    v_mov_b32 v60, s36
    s_cselect_b64 vcc, -1, 0
    v_cndmask_b32 v61, v105, v104, vcc
    """)
    g(f"""
    v_and_b32 v3, 31, v1
    v_lshrrev_b32 v4, 5, v1
    v_and_b32 v5, 7, v3
    v_sub_u32 v5, 7, v5
    v_mul_u32_u24 v5, {KR_PITCH}, v5
    v_lshrrev_b32 v6, 3, v3
    v_sub_u32 v6, v4, v6
    v_lshlrev_b32 v6, 4, v6
    v_add_u32 v5, v5, v6
    s_lshl_b32 s28, s26, 9
    s_sub_u32 s28, {4080 - 64*39}, s28
    s_add_u32 s28, s28, s27
    v_add_u32 v5, s28, v5
    v_mul_u32_u24 v6, 80, v3
    v_lshlrev_b32 v7, 4, v4
    v_add_u32 v6, v6, v7
    s_mul_i32 s28, s26, {8*80}
    s_sub_u32 s28, {CV_COPY + 24*80}, s28
    s_add_u32 s28, s28, s27
    v_add_u32 v6, s28, v6
    """)
    for i in range(32):
        g(f"v_mov_b32 v{24+i}, 0")
    g("s_waitcnt lgkmcnt(0)\ns_barrier")
    g.stamp(4)
    AC = 24
    def rd(step):
        dl, kk = step >> 1, step & 1
        ao = (7-dl)*64 + 32*kk
        bo = (7-dl)*80 + 32*kk
        f = 64 + 16*(step % 3)
        g(f"ds_read_b128 v[{f}:{f+3}], v5 offset:{ao+2048}")
        g(f"ds_read_b128 v[{f+4}:{f+7}], v5 offset:{ao}")
        g(f"ds_read_b128 v[{f+8}:{f+11}], v6 offset:{bo}")
        g(f"ds_read_b128 v[{f+12}:{f+15}], v6 offset:{bo+2560}")
    rd(0); rd(1)
    for step in range(16):
        if step + 2 < 16:
            rd(step+2)
            g("s_waitcnt lgkmcnt(8)")
        elif step + 1 < 16:
            g("s_waitcnt lgkmcnt(4)")
        else:
            g("s_waitcnt lgkmcnt(0)")
        f = 64 + 16*(step % 3)
        g(f"v_mfma_f32_32x32x16_f16 v[{AC}:{AC+15}], v[{f}:{f+3}], v[{f+8}:{f+11}], v[{AC}:{AC+15}]")
        g(f"v_mfma_f32_32x32x16_f16 v[{AC+16}:{AC+31}], v[{f}:{f+3}], v[{f+12}:{f+15}], v[{AC+16}:{AC+31}]")
        g(f"v_mfma_f32_32x32x16_f16 v[{AC+16}:{AC+31}], v[{f+4}:{f+7}], v[{f+8}:{f+11}], v[{AC+16}:{AC+31}]")
    g.stamp(5)
    g(f"""
    s_barrier
    v_lshlrev_b32 v7, 4, v1
    s_lshl_b32 s28, s26, 13
    s_add_u32 s28, s28, s27
    v_add_u32 v8, s28, v7
    v_lshrrev_b32 v11, 2, v1
    v_and_b32 v17, 3, v1
    s_and_b32 s29, s26, 1
    s_lshl_b32 s29, s29, 4
    v_add_u32 v11, s29, v11
    v_lshlrev_b32 v9, 10, v17
    v_lshlrev_b32 v10, 4, v11
    v_add_u32 v9, v9, v10
    s_lshr_b32 s28, s26, 1
    s_lshl_b32 s29, s28, 12
    s_add_u32 s29, s29, s27
    v_add_u32 v9, s29, v9
    v_mul_u32_u24 v10, 80, v11
    v_lshlrev_b32 v17, 4, v17
    v_add_u32 v10, v10, v17
    s_mul_i32 s28, s28, 2560
    s_add_u32 s28, s28, {CV_COPY + 31*80}
    s_add_u32 s28, s28, s27
    v_add_u32 v10, s28, v10
    s_nop 4
    """)
    for i in range(8):
        g(f"ds_write_b128 v8, v[{AC+4*i}:{AC+4*i+3}] offset:{1024*i}")
    g("ds_read_b128 v[12:15], v10")
    g.stamp(7)
    g("s_waitcnt lgkmcnt(0)\ns_barrier")
    g.stamp(8)
    for w in range(4):
        g(f"ds_read_b128 v[{64+8*w}:{67+8*w}], v9 offset:{8192*w}")
        g(f"ds_read_b128 v[{68+8*w}:{71+8*w}], v9 offset:{8192*w+512}")
    g(f"""
    v_lshlrev_b32 v60, 16, v60
    v_lshlrev_b32 v16, 4, v1
    s_lshl_b32 s28, s26, 10
    s_lshl_b32 s29, s25, 12
    s_add_u32 s28, s28, s29
    v_cvt_f32_f16 v24, v12
    v_cvt_f32_f16_sdwa v25, v12 dst_sel:DWORD dst_unused:UNUSED_PAD src0_sel:WORD_1
    v_cvt_f32_f16 v26, v13
    v_cvt_f32_f16_sdwa v27, v13 dst_sel:DWORD dst_unused:UNUSED_PAD src0_sel:WORD_1
    v_cvt_f32_f16 v28, v14
    v_cvt_f32_f16_sdwa v29, v14 dst_sel:DWORD dst_unused:UNUSED_PAD src0_sel:WORD_1
    v_cvt_f32_f16 v30, v15
    v_cvt_f32_f16_sdwa v31, v15 dst_sel:DWORD dst_unused:UNUSED_PAD src0_sel:WORD_1
    """)
    for i in range(8):
        g(f"v_mul_f32 v{24+i}, v{24+i}, v60")
    for j in range(4):
        g(f"v_cvt_pk_bf16_f32 v{32+j}, v{24+2*j}, v{24+2*j+1}")
    for j in range(4):
        g(f"v_lshlrev_b32 v{24+2*j}, 16, v{32+j}")
        g(f"v_and_b32 v{24+2*j+1}, 0xffff0000, v{32+j}")
    g("s_waitcnt lgkmcnt(0)")
    for i in range(8):
        g(f"v_add_f32 v{64+i}, v{64+i}, v{72+i}")
        g(f"v_add_f32 v{80+i}, v{80+i}, v{88+i}")
    for i in range(8):
        g(f"v_add_f32 v{64+i}, v{64+i}, v{80+i}")
    for i in range(8):
        g(f"v_mul_f32 v{64+i}, v{64+i}, v61")
    for j in range(4):
        g(f"v_cvt_pk_bf16_f32 v{32+j}, v{64+2*j}, v{64+2*j+1}")
    for j in range(4):
        g(f"v_lshlrev_b32 v{64+2*j}, 16, v{32+j}")
        g(f"v_and_b32 v{64+2*j+1}, 0xffff0000, v{32+j}")
    for i in range(8):
        g(f"v_add_f32 v{64+i}, v{64+i}, v{24+i}")
    for j in range(4):
        g(f"v_cvt_pk_bf16_f32 v{32+j}, v{64+2*j}, v{64+2*j+1}")
    g(f"""
    buffer_store_dwordx4 v[32:35], v16, s[16:19], s28 offen sc1
    """)
    g.stamp(9)
    g(f"""
    s_waitcnt vmcnt(0)
    """)
    g.stamp(10)
    g(f"""
    s_barrier
    s_cmp_lg_u32 s3, 0
    s_cbranch_scc1 CV_NOSIG
    s_lshr_b32 s28, s2, 5
    s_and_b32 s29, s2, 31
    s_lshl_b32 s29, s29, 2
    s_add_u32 s29, s29, 64
    v_mov_b32 v13, s28
    """)
    cons_addr(g, 1, 13, 12, 14)
    g(f"""
    v_add_u32 v12, s29, v12
    v_mov_b32 v13, 0x01010101
    v_cmp_gt_u32 vcc, 32, v1
    s_and_saveexec_b64 s[30:31], vcc
    global_store_dword v12, v13, s[22:23] sc1
    s_mov_b64 exec, s[30:31]
    """)
    g.label("CV_NOSIG")
    g.stamp(6)
    g.stamp_end(11, "cv")
    g("s_endpgm")

def gen_gemm2(g):
    g(f"""
    s_and_b32 s25, s2, 7
    s_lshl_b32 s25, s25, 2
    s_lshr_b32 s24, s2, 3
    s_lshr_b32 s26, s24, 3
    s_add_u32 s25, s25, s26
    s_and_b32 s24, s24, 7
    s_mul_i32 s36, s3, {7*1024}
    v_lshlrev_b32 v5, 4, v1
    v_add_u32 v8, s36, v5
    v_add_u32 v9, 4096, v8
    s_mul_i32 s40, s24, {4*56*1024}
    s_add_u32 s41, s40, {56*1024}
    s_add_u32 s42, s40, {2*56*1024}
    s_add_u32 s43, s40, {3*56*1024}
    s_mul_i32 s44, s25, {4*56*1024}
    s_add_u32 s45, s44, {56*1024}
    s_add_u32 s46, s44, {2*56*1024}
    s_add_u32 s47, s44, {3*56*1024}
    """)
    g.srd(8, 22, 512*3584, WS_W2F)
    g.srd(12, 22, 2048*3584, WS_ACT)
    g.srd(16, 22, 2048*1024, WS_AT)
    g.srd(28, 56, 2048*1024)
    g.srd(32, 58, 2048*1024)
    AC = 16
    AR = [80, 96]
    BR = 112
    def ldA(st):
        fb = AR[st & 1]; va = 8 + (st >> 2)
        for i in range(4):
            g(f"buffer_load_dwordx4 v[{fb+4*i}:{fb+4*i+3}], v{va}, s[8:11], s{40+i} offen offset:{1024*(st&3)} sc1")
    def ldB(st, j):
        va = 8 + (st >> 2)
        g(f"buffer_load_dwordx4 v[{BR+4*j}:{BR+4*j+3}], v{va}, s[12:15], s{44+j} offen offset:{1024*(st&3)} sc1")
    ldA(0)
    ldA(1)
    g(f"""
    v_and_b32 v3, 15, v1
    v_lshrrev_b32 v4, 4, v1
    s_lshl_b32 s37, s25, 6
    s_lshr_b32 s38, s3, 1
    s_lshl_b32 s38, s38, 4
    s_add_u32 s37, s37, s38
    v_add_u32 v6, s37, v3
    v_lshlrev_b32 v7, 10, v6
    v_lshlrev_b32 v14, 3, v4
    v_add_u32 v7, v7, v14
    s_lshl_b32 s38, s24, 7
    s_and_b32 s39, s3, 1
    s_lshl_b32 s48, s39, 6
    s_add_u32 s38, s38, s48
    v_add_u32 v7, s38, v7
    buffer_load_dwordx2 v[10:11], v7, s[28:31], 0 offen
    buffer_load_dwordx2 v[12:13], v7, s[28:31], 0 offen offset:32
    s_cmp_eq_u32 s61, 0
    s_cbranch_scc1 G2_NOSIG
    s_waitcnt vmcnt(10)
    """)
    g.stamp(1)
    g(f"""
    s_barrier
    """)
    g.stamp(2)
    g(f"""
    s_cmp_lg_u32 s3, 0
    s_cbranch_scc1 G2_NOSIG
    """)
    g(f"""
    v_lshrrev_b32 v16, 3, v1
    v_add_u32 v16, s60, v16
    v_and_b32 v17, 7, v1
    """)
    cons_addr(g, 16, 17, 18, 19)
    g(f"""
    v_add_u32 v18, s62, v18
    v_mov_b32 v19, 0x01010101
    v_cmp_gt_u32 vcc, 16, v1
    s_and_saveexec_b64 s[50:51], vcc
    global_store_dword v18, v19, s[22:23] sc1
    s_mov_b64 exec, s[50:51]
    """)
    g.label("G2_NOSIG")
    for i in range(64):
        g(f"v_mov_b32 v{AC+i}, 0")
    g(f"""
    s_mul_i32 s37, s3, 224
    s_lshr_b32 s38, s37, 7
    s_add_u32 s37, s37, 223
    s_lshr_b32 s37, s37, 7
    s_lshl_b32 s48, s2, 8
    s_add_u32 s48, s48, {WS_F2}
    v_add_u32 v15, s38, v1
    v_min_u32 v15, s37, v15
    v_lshlrev_b32 v15, 2, v15
    v_add_u32 v15, s48, v15
    s_mov_b32 s49, 0x01010101
    """)
    g.label("POLL_g2a")
    g(f"""
    global_load_dword v2, v15, s[22:23] sc1
    s_waitcnt vmcnt(0)
    v_cmp_ne_u32 vcc, s49, v2
    s_nop 3
    s_cmp_eq_u64 vcc, 0
    s_cbranch_scc1 POLLD_g2a
    s_sleep 8
    s_branch POLL_g2a
    """)
    g.label("POLLD_g2a")
    g.stamp(10)
    for j in range(4): ldB(0, j)
    order = ['A0']*1
    seq = [('A',0)]*4 + [('A',1)]*4 + [('B',0,j) for j in range(4)]
    for st in range(7):
        for j in range(4):
            last = max(i for i, e in enumerate(seq) if (e[0]=='A' and e[1]==st) or (e[0]=='B' and e[1]==st and e[2]==j))
            g(f"s_waitcnt vmcnt({len(seq)-1-last})")
            fa = AR[st & 1]
            for i in range(4):
                a = AC + 4*(4*i+j)
                g(f"v_mfma_f32_16x16x32_bf16 v[{a}:{a+3}], v[{fa+4*i}:{fa+4*i+3}], v[{BR+4*j}:{BR+4*j+3}], v[{a}:{a+3}]")
            if st + 1 < 7:
                ldB(st+1, j); seq.append(('B', st+1, j))
        if st + 2 < 7:
            ldA(st+2); seq += [('A', st+2)]*4
    g.stamp(11)
    g(f"""
    v_lshlrev_b32 v14, 14, v4
    v_lshlrev_b32 v6, 1, v6
    v_add_u32 v14, v14, v6
    s_and_b32 s39, s3, 1
    s_lshl_b32 s38, s24, 18
    s_lshl_b32 s48, s39, 17
    s_add_u32 s38, s38, s48
    v_add_u32 v14, s38, v14
    v_add_u32 v112, 4096, v14
    v_add_u32 v113, 8192, v14
    v_add_u32 v114, 12288, v14
    v_mov_b32 v115, v7
    s_and_b32 s36, s3, 3
    s_lshl_b32 s36, s36, 14
    v_add_u32 v6, s36, v5
    s_lshl_b32 s48, s2, 8
    s_add_u32 s48, s48, {WS_F2+64}
    s_cmp_lt_u32 s3, 4
    s_cbranch_scc1 G2_LOW1
    """)
    for t in range(16):
        g(f"ds_write_b128 v6, v[{AC+4*t}:{AC+4*t+3}] offset:{t*1024}")
    g("s_branch G2_J1")
    g.label("G2_LOW1")
    g("s_cmp_lg_u32 s3, 0\ns_cbranch_scc1 G2_J1")
    poll_flags(g, "g2", 48, 32, 2, 15, base="s[22:23]", slp=4)
    g.label("G2_J1")
    g("s_waitcnt lgkmcnt(0)\ns_barrier")
    g.stamp(3)
    g("s_mov_b32 s39, 65536")
    for i in range(2):
        for r in range(4):
            va = [14, 112, 113, 114][r]
            g(f"buffer_load_ushort v{116+4*i+r}, v{va}, s[16:19], {'0' if i == 0 else 's39'} offen sc1")
    g("s_cmp_ge_u32 s3, 4\ns_cbranch_scc1 G2_J2")
    for h in range(2):
        for t in range(8):
            g(f"ds_read_b128 v[{80+4*t}:{83+4*t}], v6 offset:{(8*h+t)*1024}")
        g("s_waitcnt lgkmcnt(0)")
        for t in range(8):
            for r in range(4):
                g(f"v_add_f32 v{AC+32*h+4*t+r}, v{AC+32*h+4*t+r}, v{80+4*t+r}")
    for t in range(16):
        g(f"ds_write_b128 v6, v[{AC+4*t}:{AC+4*t+3}] offset:{t*1024}")
    g.label("G2_J2")
    g(f"""
    s_and_b32 s37, s3, 1
    s_lshl_b32 s37, s37, 13
    s_lshr_b32 s38, s3, 1
    s_lshl_b32 s38, s38, 10
    s_add_u32 s37, s37, s38
    v_add_u32 v7, s37, v5
    s_waitcnt lgkmcnt(0)
    s_barrier
    """)
    for i in range(2):
        for w in range(4):
            g(f"ds_read_b128 v[{16+16*i+4*w}:{19+16*i+4*w}], v7 offset:{w*16384+i*4096}")
    g("s_waitcnt lgkmcnt(0)")
    for i in range(2):
        for r in range(4):
            b = 16+16*i+r
            g(f"v_add_f32 v{b}, v{b}, v{b+4}")
            g(f"v_add_f32 v{b+8}, v{b+8}, v{b+12}")
        for r in range(4):
            b = 16+16*i+r
            g(f"v_add_f32 v{b}, v{b}, v{b+8}")
    g.stamp(4)
    g("s_waitcnt vmcnt(0)")
    g.stamp(5)
    for i in range(2):
        b = 16+16*i
        g(f"""
        v_cvt_pk_bf16_f32 v{b+4}, v{b}, v{b+1}
        v_cvt_pk_bf16_f32 v{b+5}, v{b+2}, v{b+3}
        v_lshlrev_b32 v{b}, 16, v{b+4}
        v_and_b32 v{b+1}, 0xffff0000, v{b+4}
        v_lshlrev_b32 v{b+2}, 16, v{b+5}
        v_and_b32 v{b+3}, 0xffff0000, v{b+5}
        v_lshlrev_b32 v{b+4}, 16, v{10+2*i}
        v_and_b32 v{b+5}, 0xffff0000, v{10+2*i}
        v_lshlrev_b32 v{b+6}, 16, v{11+2*i}
        v_and_b32 v{b+7}, 0xffff0000, v{11+2*i}
        v_lshlrev_b32 v{b+8}, 16, v{116+4*i}
        v_lshlrev_b32 v{b+9}, 16, v{117+4*i}
        v_lshlrev_b32 v{b+10}, 16, v{118+4*i}
        v_lshlrev_b32 v{b+11}, 16, v{119+4*i}
        v_add_f32 v{b+4}, v{b+4}, v{b+8}
        v_add_f32 v{b+5}, v{b+5}, v{b+9}
        v_add_f32 v{b+6}, v{b+6}, v{b+10}
        v_add_f32 v{b+7}, v{b+7}, v{b+11}
        v_cvt_pk_bf16_f32 v{b+8}, v{b+4}, v{b+5}
        v_cvt_pk_bf16_f32 v{b+9}, v{b+6}, v{b+7}
        v_lshlrev_b32 v{b+4}, 16, v{b+8}
        v_and_b32 v{b+5}, 0xffff0000, v{b+8}
        v_lshlrev_b32 v{b+6}, 16, v{b+9}
        v_and_b32 v{b+7}, 0xffff0000, v{b+9}
        v_add_f32 v{b+4}, v{b+4}, v{b}
        v_add_f32 v{b+5}, v{b+5}, v{b+1}
        v_add_f32 v{b+6}, v{b+6}, v{b+2}
        v_add_f32 v{b+7}, v{b+7}, v{b+3}
        v_cvt_pk_bf16_f32 v{b+8}, v{b+4}, v{b+5}
        v_cvt_pk_bf16_f32 v{b+9}, v{b+6}, v{b+7}
        buffer_store_dwordx2 v[{b+8}:{b+9}], v115, s[32:35], 0 offen offset:{32*i}
        """)
    g.stamp_end(12, "g2")
    g("s_endpgm")

HEADER = open("parallel_sum__ssm_conv_s4__dense_activation_mish__prompt.s.ref").read().split("; Override launch")[0]

def build():
    g = G()
    g.raw(HEADER.rstrip("\n"))
    g.raw(f"; @launch grid=(512,1,1) block=(512,1,1) lds=81920")
    g.raw('.amdgcn_target "amdgcn-amd-amdhsa--gfx950"')
    g.raw(".text")
    gen_mega(g)
    g.raw('.section .rodata,"a"')
    g.raw(".p2align 6")
    g.raw(kernel_desc("parallel_sum__ssm_conv_s4__dense_activation_mish__prompt_kernel", 128))
    return g.text()

if __name__ == "__main__":
    out = sys.argv[1] if len(sys.argv) > 1 else "parallel_sum__ssm_conv_s4__dense_activation_mish__prompt.s"
    txt = build()
    if os.environ.get('LIST'):
        txt = txt.replace("; @launch grid=(512,1,1)", "; @launch kernel=parallel_sum__ssm_conv_s4__dense_activation_mish__prompt_kernel grid=(512,1,1)")
    open(out, "w").write(txt)
    print("written", out)
```

```python
import sys, struct, os
STAMP = os.environ.get('STAMP') is not None
STAMP_WG = int(os.environ.get('STAMP', '0'))
TL = os.environ.get('TL') is not None
DB = os.environ.get('DB') is not None

def f2u(x): return struct.unpack('<I', struct.pack('<f', x))[0]
def fhex(x): return "0x%08x" % f2u(x)
LOG2E = 1.4426950408889634
INV2PI = 0.15915494309189535

WS_ST  = 0x000000
WS_CS  = 0x010000
WS_XT  = 0x200000
WS_KR  = 0x400000
KR_PITCH = 4160
WS_KS  = 0x620000
WS_FL  = 0x640000
WS_F2  = 0x680000
WS_W2F = 0x800000
WS_AT  = 0xA00000
WS_ACT = 0xC00000

class G:
    def __init__(self): self.L = []
    def __call__(self, s):
        for line in s.strip('\n').split('\n'):
            if line.strip(): self.L.append("    " + line.strip())
    def label(self, s): self.L.append(s + ":")
    def raw(self, s): self.L.append(s)
    def text(self): return "\n".join(self.L) + "\n"
    def stamp(self, i):
        if STAMP: self(f"s_memtime s[{64+2*i}:{65+2*i}]")
    def dbmark(self, slot, inv=False, start=False):
        if not DB: return
        t = f"DBM{len(self.L)}"
        self(f"""
        s_cmp_lg_u32 s94, 0
        s_cbranch_scc1 {t}
        {'' if start else 's_memrealtime s[90:91]'}
        s_waitcnt lgkmcnt(0)
        {'s_mov_b32 s90, s88' if start else ''}
        {'s_not_b32 s90, s90' if inv else ''}
        v_mov_b32 v126, {4*slot}
        v_mov_b32 v127, s90
        v_cmp_eq_u32 vcc, 0, v1
        s_and_saveexec_b64 s[92:93], vcc
        global_atomic_umax v126, v127, s[20:21]
        s_mov_b64 exec, s[92:93]
        """)
        self.label(t)
    def stamp_end(self, n, tag):
        if DB:
            self.dbmark(4, inv=True, start=True)
            self.dbmark(5, start=True)
            self.dbmark(6 if tag == 'g2' else 8)
        if TL:
            base = 0x3000000
            self(f"""
            s_waitcnt vmcnt(0) lgkmcnt(0)
            s_memrealtime s[90:91]
            s_memtime s[92:93]
            s_waitcnt lgkmcnt(0)
            s_cmp_lg_u32 s94, 0
            s_cbranch_scc1 TL_SKIP_{tag}
            s_lshl_b32 s83, s95, 4
            s_add_u32 s83, s83, {base}
            v_mov_b32 v0, s83
            v_mov_b32 v4, s88
            v_mov_b32 v5, s90
            s_sub_u32 s92, s92, s86
            v_mov_b32 v6, s92
            s_sub_u32 s84, s84, s86
            v_mov_b32 v7, s84
            global_store_dwordx4 v0, v[4:7], s[22:23]
            """)
            self.label(f"TL_SKIP_{tag}")
        if not STAMP: return
        self(f"""
        s_waitcnt vmcnt(0) lgkmcnt(0)
        s_memtime s[{64+2*n}:{65+2*n}]
        s_waitcnt lgkmcnt(0)
        s_cmp_lg_u32 s95, {STAMP_WG}
        s_cbranch_scc1 ST_SKIP_{tag}
        s_cmp_lg_u32 s94, 0
        s_cbranch_scc1 ST_SKIP_{tag}
        v_mov_b32 v0, 0x3200000
        """)
        for i in range(n+1):
            self(f"s_sub_u32 s93, s{64+2*i}, s64")
            self(f"v_mov_b32 v1, s93")
            self(f"global_store_dword v0, v1, s[22:23] offset:{4*i}")
        self.label(f"ST_SKIP_{tag}")
    def srd(self, d, pb, nbytes, off=0):
        if off:
            self(f"s_add_u32 s{d}, s{pb}, {off}")
            self(f"s_addc_u32 s{d+1}, s{pb+1}, 0")
        else:
            self(f"s_mov_b32 s{d}, s{pb}")
            self(f"s_mov_b32 s{d+1}, s{pb+1}")
        self(f"s_mov_b32 s{d+2}, {nbytes}")
        self(f"s_mov_b32 s{d+3}, 0x00020000")
    def poll(self, tag, soff, target, vt, vz):
        self(f"v_mov_b32 v{vz}, s{soff}")
        self.label(f"POLL_{tag}")
        self(f"""
        global_load_dword v{vt}, v{vz}, s[20:21] sc1
        s_waitcnt vmcnt(0)
        v_readfirstlane_b32 s{soff+1}, v{vt}
        s_nop 3
        s_cmp_ge_u32 s{soff+1}, {target}
        s_cbranch_scc1 POLLD_{tag}
        s_sleep 8
        s_branch POLL_{tag}
        """)
        self.label(f"POLLD_{tag}")

def poll_flags(g, tag, soff, ndw, vt, vz, base='s[20:21]', slp=8):
    g(f"""
    v_min_u32 v{vz}, {ndw-1}, v1
    v_lshlrev_b32 v{vz}, 2, v{vz}
    v_add_u32 v{vz}, s{soff}, v{vz}
    s_mov_b32 s{soff+1}, 0x01010101
    """)
    g.label(f"POLL_{tag}")
    g(f"""
    global_load_dword v{vt}, v{vz}, {base} sc1
    s_waitcnt vmcnt(0)
    v_cmp_ne_u32 vcc, s{soff+1}, v{vt}
    s_nop 3
    s_cmp_eq_u64 vcc, 0
    s_cbranch_scc1 POLLD_{tag}
    s_sleep {slp}
    s_branch POLL_{tag}
    """)
    g.label(f"POLLD_{tag}")

def wait_zero(g, tag, vt, vz):
    g(f"v_mov_b32 v{vz}, 0")
    g.label(f"WZ_{tag}")
    g(f"""
    global_load_dword v{vt}, v{vz}, s[20:21] sc1
    s_waitcnt vmcnt(0)
    v_cmp_eq_u32 vcc, 0, v{vt}
    s_nop 3
    s_cmp_eq_u64 vcc, 0
    s_cbranch_scc1 WZD_{tag}
    s_sleep 8
    s_branch WZ_{tag}
    """)
    g.label(f"WZD_{tag}")

def set_flag(g, sreg, va, vb):
    g(f"""
    v_mov_b32 v{va}, s{sreg}
    v_mov_b32 v{vb}, 0x01010101
    v_cmp_eq_u32 vcc, 0, v1
    s_and_saveexec_b64 s[50:51], vcc
    global_store_dword v{va}, v{vb}, s[22:23] sc1
    s_mov_b64 exec, s[50:51]
    """)

def cons_addr(g, vT, vD, vO, vx):
    g(f"""
    v_and_b32 v{vO}, 3, v{vT}
    v_lshlrev_b32 v{vO}, 3, v{vO}
    v_add_u32 v{vO}, v{vO}, v{vD}
    v_lshlrev_b32 v{vO}, 3, v{vO}
    v_lshrrev_b32 v{vx}, 2, v{vT}
    v_add_u32 v{vO}, v{vO}, v{vx}
    v_lshlrev_b32 v{vO}, 8, v{vO}
    v_add_u32 v{vO}, {WS_F2}, v{vO}
    """)

def poll_wf_all(g, tag, vt, vz):
    for ct in range(4):
        g(f"s_mov_b32 s62, {WS_FL + (ct+1)*4096}")
        poll_flags(g, f"{tag}{ct}", 62, 28, vt, vz, base="s[22:23]")

def kernel_begin(g, name):
    g.raw(f".globl {name}")
    g.raw(".p2align 8")
    g.raw(f".type {name},@function")
    g.label(name)
    g.stamp(0)
    G.kname = name
    if DB: g("s_memrealtime s[88:89]")
    if TL:
        g("s_memrealtime s[88:89]\ns_memtime s[86:87]")

def kernel_desc(name, vgpr, sgpr=96):
    acc = (vgpr + 3)//4*4
    return f""".amdhsa_kernel {name}
  .amdhsa_next_free_vgpr {vgpr}
  .amdhsa_next_free_sgpr {sgpr}
  .amdhsa_accum_offset {acc}
  .amdhsa_group_segment_fixed_size 0
  .amdhsa_kernarg_size 128
  .amdhsa_user_sgpr_count 2
  .amdhsa_user_sgpr_kernarg_segment_ptr 1
  .amdhsa_system_sgpr_workgroup_id_x 1
.end_amdhsa_kernel
"""
DPP = ["quad_perm:[1,0,3,2]", "quad_perm:[2,3,0,1]", "row_half_mirror", "row_mirror",
       "row_bcast:15 row_mask:0xa", "row_bcast:31 row_mask:0xc"]

KA_NL = 128
KA_NW = 112
KA_NG = 224
KA_TOTAL = KA_NL + KA_NW + KA_NG
KA_LDS = 81920
TP = 272
TCH = 96*TP
LNP = 1056
TRP = 288

def gen_mega(g):
    kernel_begin(g, "parallel_sum__ssm_conv_s4__dense_activation_mish__prompt_kernel")
    g(f"""
    s_cmp_ge_u32 s2, 512
    s_cbranch_scc1 M_END
    s_load_dwordx4 s[20:23], s[0:1], 112
    v_and_b32 v1, 63, v0
    v_lshrrev_b32 v2, 6, v0
    s_nop 0
    v_readfirstlane_b32 s3, v2
    s_mov_b32 s95, s2
    s_mov_b32 s94, s3
    """)
    if os.environ.get('CPF'):
        g(f"""
        s_cmp_lg_u32 s3, 7
        s_cbranch_scc1 M_NOCPF
        s_getpc_b64 s[48:49]
        v_lshlrev_b32 v4, 7, v1
        v_add_u32 v5, 8192, v4
        v_add_u32 v6, 16384, v4
        v_add_u32 v7, 24576, v4
        global_load_dword v120, v4, s[48:49]
        global_load_dword v120, v5, s[48:49]
        global_load_dword v120, v6, s[48:49]
        """)
        g.label("M_NOCPF")
    g(f"""
    s_cmp_ge_u32 s2, 256
    s_cbranch_scc1 M_G
    """)
    g(f"""
    s_setprio 3
    s_load_dwordx4 s[4:7], s[0:1], 56
    s_min_u32 s36, s3, 5
    s_lshl_b32 s36, s36, 3
    s_add_u32 s36, s36, 8
    s_load_dwordx2 s[8:9], s[0:1], s36
    s_lshl_b32 s28, s2, 2
    s_lshl_b32 s36, s2, 9
    v_and_b32 v5, 31, v1
    v_lshlrev_b32 v5, 4, v5
    v_add_u32 v6, s36, v5
    s_waitcnt lgkmcnt(0)
    s_load_dword s52, s[4:5], s28
    s_load_dword s53, s[6:7], s28
    global_load_dwordx4 v[112:115], v6, s[8:9]
    s_cmp_lg_u32 s2, 0
    s_cbranch_scc1 M_NOZ
    v_lshrrev_b32 v4, 6, v0
    v_lshlrev_b32 v4, 12, v4
    v_lshlrev_b32 v5, 2, v1
    v_add_u32 v4, v4, v5
    v_add_u32 v4, {WS_FL}, v4
    v_add_u32 v5, 0x8000, v4
    v_add_u32 v6, 0x10000, v4
    v_add_u32 v7, 0x18000, v4
    v_mov_b32 v8, 0
    global_store_dword v4, v8, s[22:23] sc1
    global_store_dword v5, v8, s[22:23] sc1
    global_store_dword v6, v8, s[22:23] sc1
    global_store_dword v7, v8, s[22:23] sc1
    v_mov_b32 v9, 0
    v_mov_b32 v10, 0
    v_mov_b32 v11, 0
    v_lshlrev_b32 v4, 4, v0
    v_add_u32 v4, {WS_F2}, v4
    """)
    for i in range(8):
        g(f"global_store_dwordx4 v4, v[8:11], s[22:23] sc1")
        if i < 7: g("v_add_u32 v4, 8192, v4")
    g(f"""
    s_waitcnt vmcnt(0)
    s_barrier
    s_cmp_lg_u32 s3, 0
    s_cbranch_scc1 M_NOZ
    v_mov_b32 v4, 0
    v_mov_b32 v5, 0x01010101
    v_cmp_eq_u32 vcc, 0, v1
    s_and_saveexec_b64 s[50:51], vcc
    global_store_dword v4, v5, s[20:21] sc1
    s_mov_b64 exec, s[50:51]
    """)
    g.label("M_NOZ")
    g(f"""
    s_mov_b32 s55, 0
    s_cmp_ge_u32 s2, {KA_NL}
    s_cbranch_scc1 M_NOTLN
    """)
    gen_ln(g)
    g("s_branch M_CONV")
    g.label("M_NOTLN")
    g(f"""
    s_cmp_ge_u32 s2, {KA_NL+KA_NW}
    s_cbranch_scc1 M_NOROLE
    """)
    gen_w2f(g)
    g("s_branch M_CONV")
    g.label("M_NOROLE")
    g(f"s_cmp_ge_u32 s2, {KA_NL+KA_NW+14}\ns_cbranch_scc1 M_NOROLE2")
    gen_cs(g)
    g("s_branch M_CONV")
    g.label("M_NOROLE2")
    g("s_waitcnt vmcnt(0)")
    g.label("M_CONV")
    gen_conv(g)
    g.label("M_G")
    g(f"""
    {'s_setprio 2' if os.environ.get('GPRIO') else ''}
    s_sub_u32 s2, s2, 256
    s_load_dwordx2 s[56:57], s[0:1], 0
    s_load_dwordx2 s[58:59], s[0:1], 104
    s_mov_b32 s61, 0
    s_cmp_ge_u32 s2, {KA_NG}
    s_cbranch_scc1 M_G2PRE
    """)
    gen_gemm1(g)
    g("s_branch M_G2")
    g.label("M_G2PRE")
    g("s_waitcnt lgkmcnt(0)\ns_cmp_lg_u32 s3, 0\ns_cbranch_scc1 G2_NOPOLL0")
    wait_zero(g, "g2", 2, 15)
    poll_wf_all(g, "g2w", 2, 15)
    g.label("G2_NOPOLL0")
    g("s_barrier")
    g.label("M_G2")
    gen_gemm2(g)
    g.label("M_END")
    g("s_endpgm")

def gen_ln(g):
    NR = 2
    g(f"""
    s_load_dwordx2 s[4:5], s[0:1], 0
    s_lshl_b32 s6, s2, 4
    s_lshl_b32 s7, s3, 1
    s_add_u32 s6, s6, s7
    s_lshl_b32 s7, s6, 10
    v_lshlrev_b32 v3, 4, v1
    s_waitcnt lgkmcnt(0)
    """)
    g.srd(8, 4, 2048*1024)
    g.srd(16, 22, 2048*1024, WS_XT)
    for i in range(NR):
        g(f"buffer_load_dwordx4 v[{16+4*i}:{19+4*i}], v3, s[8:11], s7 offen offset:{1024*i}")
    g("s_waitcnt vmcnt(0)")
    X = 32
    for i in range(NR):
        for j in range(4):
            g(f"v_lshlrev_b32 v{X+8*i+2*j}, 16, v{16+4*i+j}")
            g(f"v_and_b32 v{X+8*i+2*j+1}, 0xffff0000, v{16+4*i+j}")
    def reduce(base):
        for mod in DPP:
            for i in range(NR):
                g(f"v_add_f32_dpp v{base+i}, v{base+i}, v{base+i} {mod}")
            g("s_nop 0")
    for i in range(NR):
        b = X+8*i
        g(f"v_add_f32 v{4+i}, v{b}, v{b+1}")
        g(f"v_add_f32 v{8+i}, v{b+2}, v{b+3}")
        g(f"v_add_f32 v{12+i}, v{b+4}, v{b+5}")
        g(f"v_add_f32 v{64+i}, v{b+6}, v{b+7}")
    for i in range(NR):
        g(f"v_add_f32 v{4+i}, v{4+i}, v{8+i}")
        g(f"v_add_f32 v{12+i}, v{12+i}, v{64+i}")
    for i in range(NR):
        g(f"v_add_f32 v{4+i}, v{4+i}, v{12+i}")
    g("s_nop 1")
    reduce(4)
    for i in range(NR):
        g(f"v_readlane_b32 s{32+i}, v{4+i}, 63")
    g("s_nop 1")
    for i in range(NR):
        g(f"v_mov_b32 v{4+i}, s{32+i}")
    for i in range(NR):
        g(f"v_mul_f32 v{4+i}, {fhex(1.0/512)}, v{4+i}")
    for i in range(NR):
        for j in range(8):
            g(f"v_sub_f32 v{64+j}, v{X+8*i+j}, v{4+i}")
        g(f"v_mul_f32 v{8+i}, v64, v64")
        g(f"v_mul_f32 v{12+i}, v65, v65")
        for j in range(2, 8):
            g(f"v_fma_f32 v{8+i+4*(j&1)}, v{64+j}, v{64+j}, v{8+i+4*(j&1)}")
        g(f"v_add_f32 v{8+i}, v{8+i}, v{12+i}")
    g("s_nop 1")
    reduce(8)
    for i in range(NR):
        g(f"v_readlane_b32 s{32+i}, v{8+i}, 63")
    g("s_nop 1")
    for i in range(NR):
        g(f"v_mov_b32 v{8+i}, s{32+i}")
    for i in range(NR):
        g(f"v_mul_f32 v{8+i}, {fhex(1.0/512)}, v{8+i}")
    for i in range(NR):
        g(f"v_cvt_pk_bf16_f32 v{12+i}, v{4+i}, v{8+i}")
    for i in range(NR):
        g(f"v_lshlrev_b32 v{4+i}, 16, v{12+i}")
        g(f"v_and_b32 v{8+i}, 0xffff0000, v{12+i}")
    for i in range(NR):
        g(f"v_add_f32 v{8+i}, {fhex(1e-5)}, v{8+i}")
    for i in range(NR):
        g(f"v_cvt_pk_bf16_f32 v{8+i}, v{8+i}, v{8+i}")
    for i in range(NR):
        g(f"v_lshlrev_b32 v{8+i}, 16, v{8+i}")
    for i in range(NR):
        g(f"v_sqrt_f32 v{8+i}, v{8+i}")
    g("s_nop 0")
    for i in range(NR):
        g(f"v_cvt_pk_bf16_f32 v{8+i}, v{8+i}, v{8+i}")
    for i in range(NR):
        g(f"v_lshlrev_b32 v{8+i}, 16, v{8+i}")
    for i in range(NR):
        g(f"v_rcp_f32 v{12+i}, v{8+i}")
    g("s_nop 0")
    for i in range(NR):
        g(f"v_fma_f32 v{64+i}, -v{8+i}, v{12+i}, 1.0")
    for i in range(NR):
        g(f"v_fma_f32 v{17+2*i}, v{64+i}, v{12+i}, v{12+i}")
    for i in range(NR):
        g(f"v_mul_f32 v{16+2*i}, v{4+i}, v{17+2*i}")
    g(f"""
    s_lshl_b32 s42, s6, 3
    v_mov_b32 v24, s42
    s_add_u32 s44, s22, {WS_ST}
    s_addc_u32 s45, s23, 0
    v_cmp_eq_u32 vcc, 0, v1
    s_and_saveexec_b64 s[46:47], vcc
    global_store_dwordx4 v24, v[16:19], s[44:45] sc1
    s_mov_b64 exec, s[46:47]
    s_mul_i32 s36, s3, {NR*LNP}
    s_add_u32 s36, s36, {L_T}
    v_add_u32 v2, s36, v3
    """)
    for i in range(NR):
        b = X+8*i
        for j in range(8):
            g(f"v_sub_f32 v{b+j}, v{b+j}, v{4+i}")
        for j in range(4):
            g(f"v_cvt_pk_bf16_f32 v{64+j}, v{b+2*j}, v{b+2*j+1}")
        for j in range(4):
            g(f"v_lshlrev_b32 v{b+2*j}, 16, v{64+j}")
            g(f"v_and_b32 v{b+2*j+1}, 0xffff0000, v{64+j}")
        for j in range(8):
            g(f"v_mul_f32 v{64+j}, v{b+j}, v{12+i}")
        for j in range(8):
            g(f"v_fma_f32 v{b+j}, -v{64+j}, v{8+i}, v{b+j}")
        for j in range(8):
            g(f"v_fma_f32 v{64+j}, v{b+j}, v{12+i}, v{64+j}")
        for j in range(4):
            g(f"v_cvt_pk_bf16_f32 v{72+j}, v{64+2*j}, v{64+2*j+1}")
        for j in range(4):
            g(f"v_lshlrev_b32 v{64+2*j}, 16, v{72+j}")
            g(f"v_and_b32 v{64+2*j+1}, 0xffff0000, v{72+j}")
        o = 76 + 4*(i & 1)
        for j in range(4):
            g(f"v_cvt_pk_f16_f32 v{o+j}, v{64+2*j}, v{64+2*j+1}")
        g(f"ds_write_b128 v2, v[{o}:{o+3}] offset:{i*LNP}")
    g("s_waitcnt lgkmcnt(0)\ns_barrier")
    g(f"""
    v_and_b32 v4, 15, v1
    v_lshrrev_b32 v5, 4, v1
    v_and_b32 v6, 1, v5
    v_lshrrev_b32 v5, 1, v5
    v_lshlrev_b32 v7, 3, v6
    v_lshrrev_b32 v8, 2, v4
    v_add_u32 v7, v7, v8
    v_mul_u32_u24 v7, {LNP}, v7
    v_and_b32 v8, 3, v4
    v_lshlrev_b32 v8, 3, v8
    v_add_u32 v7, v7, v8
    v_lshlrev_b32 v8, 5, v5
    v_add_u32 v7, v7, v8
    s_lshl_b32 s36, s3, 7
    s_add_u32 s36, s36, {L_T}
    v_add_u32 v7, s36, v7
    ds_read_b64_tr_b16 v[16:17], v7
    ds_read_b64_tr_b16 v[18:19], v7 offset:{4*LNP}
    ds_read_b64_tr_b16 v[20:21], v7 offset:64
    ds_read_b64_tr_b16 v[22:23], v7 offset:{4*LNP+64}
    v_lshlrev_b32 v8, 4, v5
    v_add_u32 v8, v8, v4
    v_lshlrev_b32 v8, 5, v8
    v_lshlrev_b32 v9, 4, v6
    v_add_u32 v8, v8, v9
    s_lshl_b32 s36, s2, 14
    s_lshl_b32 s37, s3, 11
    s_add_u32 s36, s36, s37
    s_waitcnt lgkmcnt(0)
    buffer_store_dwordx4 v[16:19], v8, s[16:19], s36 offen sc1
    buffer_store_dwordx4 v[20:23], v8, s[16:19], s36 offen offset:1024 sc1
    """)
    g(f"""
    s_and_b32 s55, s2, 63
    s_lshl_b32 s55, s55, 2
    s_lshr_b32 s37, s2, 6
    s_mul_i32 s37, s37, {29*4096}
    s_add_u32 s55, s55, s37
    s_add_u32 s55, s55, {WS_FL}
    v_mov_b32 v4, 0
    global_load_dword v117, v4, s[20:21] sc1
    """)

def gen_w2f(g):
    g(f"""
    s_load_dwordx2 s[6:7], s[0:1], 96
    v_and_b32 v4, 15, v1
    v_lshrrev_b32 v5, 4, v1
    s_sub_u32 s38, s2, {KA_NL}
    s_lshr_b32 s24, s38, 2
    s_and_b32 s25, s38, 3
    v_lshlrev_b32 v8, 4, v1
    s_lshl_b32 s28, s25, 3
    s_add_u32 s28, s28, s3
    s_mul_i32 s28, s28, 56
    s_lshl_b32 s29, s24, 1
    s_add_u32 s28, s28, s29
    s_lshl_b32 s28, s28, 10
    v_lshrrev_b32 v3, 4, v0
    v_and_b32 v6, 15, v0
    v_lshlrev_b32 v7, 10, v3
    v_lshlrev_b32 v6, 4, v6
    v_add_u32 v7, v7, v6
    s_lshl_b32 s30, s24, 16
    s_lshl_b32 s31, s25, 8
    s_add_u32 s30, s30, s31
    s_add_u32 s31, s30, 32768
    s_waitcnt lgkmcnt(0)
    """)
    g.srd(8, 6, 512*1792*2)
    g.srd(12, 22, 512*1792*2, WS_W2F)
    g(f"""
    buffer_load_dwordx4 v[12:15], v7, s[8:11], s30 offen
    buffer_load_dwordx4 v[16:19], v7, s[8:11], s31 offen
    v_mul_u32_u24 v10, {TRP}, v3
    v_add_u32 v10, v10, v6
    v_add_u32 v10, {L_T}, v10
    v_lshlrev_b32 v6, 3, v5
    v_lshrrev_b32 v7, 2, v4
    v_add_u32 v6, v6, v7
    v_mul_u32_u24 v6, {TRP}, v6
    v_and_b32 v7, 3, v4
    v_lshlrev_b32 v7, 3, v7
    v_add_u32 v6, v6, v7
    s_lshl_b32 s36, s3, 5
    s_add_u32 s36, s36, {L_T}
    v_add_u32 v6, s36, v6
    s_waitcnt vmcnt(0)
    ds_write_b128 v10, v[12:15]
    ds_write_b128 v10, v[16:19] offset:{32*TRP}
    s_waitcnt lgkmcnt(0)
    s_barrier
    ds_read_b64_tr_b16 v[20:21], v6
    ds_read_b64_tr_b16 v[22:23], v6 offset:{4*TRP}
    ds_read_b64_tr_b16 v[24:25], v6 offset:{32*TRP}
    ds_read_b64_tr_b16 v[26:27], v6 offset:{36*TRP}
    s_waitcnt lgkmcnt(0)
    buffer_store_dwordx4 v[20:23], v8, s[12:15], s28 offen sc1
    buffer_store_dwordx4 v[24:27], v8, s[12:15], s28 offen offset:1024 sc1
    s_add_u32 s55, s25, 1
    s_lshl_b32 s55, s55, 12
    s_lshl_b32 s37, s24, 2
    s_add_u32 s55, s55, s37
    s_add_u32 s55, s55, {WS_FL}
    v_mov_b32 v4, 0
    global_load_dword v117, v4, s[20:21] sc1
    """)

def gen_cs(g):
    g(f"""
    s_load_dwordx4 s[4:7], s[0:1], 80
    s_sub_u32 s38, s2, {KA_NL+KA_NW}
    v_lshrrev_b32 v7, 4, v0
    v_and_b32 v8, 15, v0
    v_mul_u32_u24 v9, {16*3584}, v7
    v_lshlrev_b32 v8, 4, v8
    v_add_u32 v9, v9, v8
    s_lshl_b32 s40, s38, 8
    v_and_b32 v10, 127, v0
    v_lshlrev_b32 v10, 1, v10
    v_add_u32 v10, s40, v10
    s_waitcnt lgkmcnt(0)
    """)
    g.srd(8, 4, 512*3584)
    g("global_load_ushort v11, v10, s[6:7]")
    for r in range(16):
        g(f"s_add_u32 s41, s40, {r*3584}")
        g(f"buffer_load_dwordx4 v[{16+4*r}:{19+4*r}], v9, s[8:11], s41 offen")
    g("s_waitcnt vmcnt(0)")
    for j in range(4):
        g(f"v_lshlrev_b32 v{80+2*j}, 16, v{16+j}")
        g(f"v_and_b32 v{80+2*j+1}, 0xffff0000, v{16+j}")
    for r in range(1, 16):
        for j in range(4):
            g(f"v_lshlrev_b32 v12, 16, v{16+4*r+j}")
            g(f"v_and_b32 v13, 0xffff0000, v{16+4*r+j}")
            g(f"v_add_f32 v{80+2*j}, v{80+2*j}, v12")
            g(f"v_add_f32 v{80+2*j+1}, v{80+2*j+1}, v13")
    g(f"""
    v_lshlrev_b32 v12, 9, v7
    v_lshlrev_b32 v13, 1, v8
    v_add_u32 v12, v12, v13
    v_add_u32 v12, {L_T}, v12
    ds_write_b128 v12, v[80:83]
    ds_write_b128 v12, v[84:87] offset:16
    v_and_b32 v13, 127, v0
    v_lshlrev_b32 v13, 2, v13
    v_add_u32 v14, {L_T}, v13
    s_waitcnt lgkmcnt(0)
    s_barrier
    s_cmp_ge_u32 s3, 2
    s_cbranch_scc1 CS_DONE
    """)
    for r in range(32):
        g(f"ds_read_b32 v{16+r}, v14 offset:{512*r}")
    g("s_waitcnt lgkmcnt(0)")
    for st in [16, 8, 4, 2, 1]:
        for r in range(st):
            g(f"v_add_f32 v{16+r}, v{16+r}, v{16+st+r}")
    g(f"""
    s_add_u32 s44, s22, {WS_CS}
    s_addc_u32 s45, s23, 0
    s_lshl_b32 s41, s38, 9
    v_add_u32 v13, s41, v13
    v_add_u32 v14, {1792*4}, v13
    v_lshlrev_b32 v11, 16, v11
    global_store_dword v13, v16, s[44:45] sc1
    global_store_dword v14, v11, s[44:45] sc1
    """)
    g.label("CS_DONE")
    g(f"""
    s_lshl_b32 s55, s38, 2
    s_add_u32 s55, s55, {WS_FL+30*4096}
    v_mov_b32 v4, 0
    global_load_dword v117, v4, s[20:21] sc1
    """)

L_SC = 2*TCH
L_P = L_SC + 64
L_T = L_P + 3072
L_R = L_T + 16384
def gen_kgen_setup(g):
    g(f"""
    s_lshr_b32 s31, s3, 2
    s_and_b32 s30, s3, 3
    s_mov_b32 s40, 0
    s_mov_b32 s41, {fhex(16.0)}
    s_mov_b32 s42, 0
    s_mov_b32 s43, {fhex(1.0)}
    s_cmp_eq_u32 s30, 1
    s_cselect_b32 s40, {fhex(256.0)}, s40
    s_cselect_b32 s42, {fhex(8.0)}, s42
    s_cmp_eq_u32 s30, 2
    s_cselect_b32 s40, {fhex(512.0)}, s40
    s_cmp_eq_u32 s30, 3
    s_cselect_b32 s40, {fhex(1536.0)}, s40
    s_cselect_b32 s42, {fhex(32.0)}, s42
    s_cmp_ge_u32 s30, 2
    s_cselect_b32 s41, {fhex(64.0)}, s41
    s_cselect_b32 s43, {fhex(4.0)}, s43
    s_mul_i32 s32, s31, {TCH}
    s_mul_i32 s28, s30, {16*TP}
    s_add_u32 s28, s28, s32
    s_mul_i32 s29, s30, {8*TP}
    s_add_u32 s29, s29, {64*TP}
    s_add_u32 s29, s29, s32
    v_lshlrev_b32 v6, 2, v1
    v_add_u32 v7, s29, v6
    v_add_u32 v6, s28, v6
    v_and_b32 v8, 15, v1
    v_lshrrev_b32 v9, 4, v1
    v_mul_u32_u24 v8, {TP}, v8
    v_lshlrev_b32 v9, 4, v9
    v_add_u32 v8, v8, v9
    s_lshr_b32 s33, s30, 1
    s_mul_i32 s33, s33, {16*TP}
    s_add_u32 s33, s33, {64*TP}
    s_add_u32 s33, s33, s32
    v_add_u32 v9, s33, v8
    v_add_u32 v8, s28, v8
    v_and_b32 v10, 15, v1
    v_lshrrev_b32 v11, 4, v1
    v_lshlrev_b32 v11, 8, v11
    v_lshlrev_b32 v10, 2, v10
    v_add_u32 v10, v10, v11
    s_lshl_b32 s28, s30, 10
    s_lshl_b32 s29, s31, 12
    s_add_u32 s28, s28, s29
    s_add_u32 s28, s28, {L_T}
    v_add_u32 v10, s28, v10
    v_lshlrev_b32 v11, 2, v0
    v_sub_u32 v11, 2047, v11
    """)
    for j in range(4):
        g(f"""
        v_subrev_u32 v{16+j}, {j}, v11
        v_cvt_f32_u32 v{16+j}, v{16+j}
        v_cvt_pk_bf16_f32 v{16+j}, v{16+j}, v{16+j}
        v_lshlrev_b32 v{16+j}, 16, v{16+j}
        v_cvt_u32_f32 v{16+j}, v{16+j}
        v_subrev_u32 v12, 512, v{16+j}
        v_lshrrev_b32 v12, 2, v12
        v_add_u32 v12, 512, v12
        v_cmp_gt_u32 vcc, 512, v{16+j}
        s_nop 1
        v_cndmask_b32 v{16+j}, v12, v{16+j}, vcc
        v_lshlrev_b32 v{16+j}, 2, v{16+j}
        v_add_u32 v{16+j}, {L_T}, v{16+j}
        """)

def gen_kgen(g, dd):
    b = 52 + 8*dd
    def direct(sl, vare, vaim, vr, vi, t0, t1):
        g(f"""
        v_mul_f32 v{t0}, s{sl}, v{vare}
        v_mul_f32 v{t1}, s{sl}, v{vaim}
        v_exp_f32 v{t0}, v{t0}
        v_fract_f32 v{t1}, v{t1}
        v_cos_f32 v{vr}, v{t1}
        v_sin_f32 v{vi}, v{t1}
        s_nop 0
        v_mul_f32 v{vr}, v{t0}, v{vr}
        v_mul_f32 v{vi}, v{t0}, v{vi}
        """)
    def cmul(dr, di, ar, ai, br, bi):
        g(f"""
        v_mul_f32 v{dr}, v{ar}, v{br}
        v_mul_f32 v{di}, v{ar}, v{bi}
        v_fma_f32 v{dr}, -v{ai}, v{bi}, v{dr}
        v_fma_f32 v{di}, v{ai}, v{br}, v{di}
        """)
    def emit(zr, zi, vaddr, row, t):
        g(f"""
        v_cvt_pk_f16_f32 v{t}, v{zr}, v{zi}
        ds_write_b32 v{vaddr}, v{t} offset:{row*TP}
        """)
    g(f"""
    v_lshlrev_b32 v5, 16, v{b+6}
    v_mul_f32 v5, {fhex(LOG2E)}, v5
    v_exp_f32 v5, v5
    s_nop 0
    v_cvt_pk_bf16_f32 v5, v5, v5
    v_lshlrev_b32 v5, 16, v5
    """)
    for i in range(6):
        g(f"v_lshlrev_b32 v{b+i}, 16, v{b+i}")
    g(f"""
    v_mul_f32 v24, v5, v{b}
    v_mul_f32 v25, v5, v{b+1}
    v_mul_f32 v24, {fhex(LOG2E)}, v24
    v_mul_f32 v25, {fhex(INV2PI)}, v25
    v_sub_f32 v26, 0, v25
    v_mul_f32 v27, v5, v{b+2}
    v_mul_f32 v28, v5, v{b+3}
    """)
    cmul(29, 30, b+4, b+5, 27, 28)
    g(f"""
    v_max_f32 v31, abs(v29), abs(v30)
    v_max_f32 v31, {fhex(1e-30)}, v31
    """)
    direct(40, 24, 26, 32, 33, 40, 41)
    g(f"v_max_f32_dpp v31, v31, v31 {DPP[0]}")
    direct(41, 24, 26, 34, 35, 40, 41)
    g(f"v_max_f32_dpp v31, v31, v31 {DPP[1]}")
    direct(42, 24, 25, 44, 45, 40, 41)
    g(f"v_max_f32_dpp v31, v31, v31 {DPP[2]}")
    direct(43, 24, 25, 46, 47, 40, 41)
    for mod in DPP[3:]:
        g(f"v_max_f32_dpp v31, v31, v31 {mod}\ns_nop 1")
    g(f"""
    v_readlane_b32 s34, v31, 63
    s_nop 3
    v_mov_b32 v31, s34
    v_rcp_f32 v40, v31
    s_lshl_b32 s34, s31, 2
    s_add_u32 s34, s34, {L_SC + 8*dd}
    v_mov_b32 v41, s34
    ds_write_b32 v41, v31
    v_mul_f32 v29, v29, v40
    v_mul_f32 v30, v30, v40
    v_sub_f32 v30, 0, v30
    v_mov_b32 v68, 0
    v_mov_b32 v69, 0
    v_mov_b32 v70, 0
    v_mov_b32 v71, 0
    """)
    cmul(36, 37, 29, 30, 32, 33)
    if dd == 1:
        g("s_barrier")
    z = (36, 37); zn = (38, 39)
    y = (44, 45); yn = (48, 49)
    for k in range(16):
        emit(z[0], z[1], 6, k, 42 + (k & 1))
        if k < 8:
            emit(y[0], y[1], 7, k, 50 + (k & 1))
        if k < 15:
            cmul(zn[0], zn[1], z[0], z[1], 34, 35)
            z, zn = zn, z
        if k < 7:
            cmul(yn[0], yn[1], y[0], y[1], 46, 47)
            y, yn = yn, y
    g("s_waitcnt lgkmcnt(0)\ns_barrier")
    for gi in range(4):
        g(f"ds_read_b128 v[{72+8*gi}:{75+8*gi}], v8 offset:{64*gi}")
        g(f"ds_read_b128 v[{76+8*gi}:{79+8*gi}], v9 offset:{64*gi}")
    g(f"v_mov_b32 v12, {L_SC+8*dd}\nds_read_b64 v[14:15], v12")
    for gi in range(4):
        g(f"s_waitcnt lgkmcnt({7-2*gi})")
        g(f"v_mfma_f32_16x16x32_f16 v[68:71], v[{72+8*gi}:{75+8*gi}], v[{76+8*gi}:{79+8*gi}], v[68:71]")
    g(f"""
    s_waitcnt lgkmcnt(0)
    v_add_f32 v{104+dd}, v14, v15
    v_rcp_f32 v{106+dd}, v{104+dd}
    s_nop 6
    v_mul_f32 v68, v68, v31
    v_mul_f32 v69, v69, v31
    v_mul_f32 v70, v70, v31
    v_mul_f32 v71, v71, v31
    ds_write_b32 v10, v68 offset:{8192*dd}
    ds_write_b32 v10, v69 offset:{8192*dd+64}
    ds_write_b32 v10, v70 offset:{8192*dd+128}
    ds_write_b32 v10, v71 offset:{8192*dd+192}
    """)

NST = 5
def gen_gemm1(g):
    if os.environ.get('PRIO'): g("s_setprio 2")
    g(f"""
    s_load_dwordx2 s[4:5], s[0:1], 88
    s_load_dwordx2 s[6:7], s[0:1], 0
    s_load_dwordx2 s[36:37], s[0:1], 80
    s_lshr_b32 s25, s2, 3
    s_mul_i32 s26, s25, 37
    s_lshr_b32 s26, s26, 8
    s_mul_i32 s27, s26, 7
    s_sub_u32 s25, s25, s27
    s_and_b32 s24, s2, 6
    s_lshl_b32 s24, s24, 1
    s_add_u32 s24, s24, s26
    s_and_b32 s27, s2, 1
    s_mul_i32 s27, s27, 7
    s_add_u32 s25, s25, s27
    """)
    g(f"""
    v_lshrrev_b32 v3, 4, v1
    v_and_b32 v4, 15, v1
    v_lshlrev_b32 v5, 2, v3
    v_xor_b32 v4, v4, v5
    v_lshlrev_b32 v4, 4, v4
    s_lshl_b32 s26, s3, 2
    v_add_u32 v3, s26, v3
    v_mul_u32_u24 v3, 3584, v3
    v_add_u32 v3, v3, v4
    s_lshl_b32 s26, s25, 8
    """)
    if os.environ.get('E1'): g("s_mov_b32 s26, 0")
    g(f"""
    v_add_u32 v8, s26, v3
    v_lshrrev_b32 v3, 2, v1
    v_and_b32 v4, 3, v1
    v_lshrrev_b32 v5, 2, v3
    v_xor_b32 v4, v4, v5
    v_lshlrev_b32 v4, 4, v4
    s_lshl_b32 s26, s3, 4
    v_add_u32 v3, s26, v3
    v_lshlrev_b32 v3, 10, v3
    v_add_u32 v3, v3, v4
    s_lshl_b32 s26, s24, 17
    """)
    if os.environ.get('E1'): g("s_mov_b32 s26, 0")
    g(f"""
    v_add_u32 v9, s26, v3
    s_lshl_b32 s28, s3, 10
    s_waitcnt lgkmcnt(0)
    """)
    g.srd(8, 36, 512*3584)
    g.srd(12, 6, 2048*1024)
    g.srd(16, 22, 2048*3584, WS_ACT)
    g.stamp(1)
    def issue(k):
        buf = (k % NST) * 16384
        g(f"""
        s_mov_b32 s30, {32*3584*k}
        s_mov_b32 s31, {64*k}
        s_add_u32 m0, s28, {buf}
        s_nop 0
        buffer_load_dwordx4 v8, s[8:11], s30 offen lds
        s_add_u32 m0, s28, {buf + 8192}
        s_nop 0
        buffer_load_dwordx4 v9, s[12:15], s31 offen lds
        """)
    for k in range(NST):
        issue(k)
        if k < 2 and os.environ.get('ISB'): g("s_barrier")
    if os.environ.get('IPF'):
        g(f"""
        v_lshrrev_b32 v10, 1, v0
        v_add_u32 v10, 160, v10
        v_mul_u32_u24 v10, 3584, v10
        v_and_b32 v11, 1, v0
        v_lshlrev_b32 v11, 7, v11
        v_add_u32 v10, v10, v11
        s_lshl_b32 s26, s25, 8
        buffer_load_dword v63, v10, s[8:11], s26 offen
        v_lshrrev_b32 v10, 2, v0
        v_lshlrev_b32 v10, 10, v10
        v_and_b32 v11, 3, v0
        v_lshlrev_b32 v11, 7, v11
        v_add_u32 v10, v10, v11
        s_lshl_b32 s26, s24, 17
        s_add_u32 s26, s26, 512
        buffer_load_dword v63, v10, s[12:15], s26 offen
        """)
    g(f"""
    v_lshrrev_b32 v3, 4, v1
    v_and_b32 v4, 15, v1
    v_lshrrev_b32 v5, 2, v4
    v_lshrrev_b32 v6, 1, v3
    v_lshlrev_b32 v6, 3, v6
    v_add_u32 v6, v6, v5
    v_lshlrev_b32 v6, 8, v6
    v_and_b32 v7, 1, v4
    v_lshlrev_b32 v7, 3, v7
    v_add_u32 v6, v6, v7
    v_and_b32 v7, 1, v3
    v_lshlrev_b32 v7, 1, v7
    v_bfe_u32 v10, v4, 1, 1
    v_add_u32 v7, v7, v10
    s_and_b32 s29, s3, 1
    s_lshl_b32 s29, s29, 3
    v_add_u32 v7, s29, v7
    v_lshlrev_b32 v5, 2, v5
    v_xor_b32 v10, v7, v5
    v_lshlrev_b32 v10, 4, v10
    v_add_u32 v16, v6, v10
    v_add_u32 v7, 4, v7
    v_xor_b32 v10, v7, v5
    v_lshlrev_b32 v10, 4, v10
    v_add_u32 v17, v6, v10
    v_and_b32 v3, 31, v1
    v_lshrrev_b32 v4, 5, v1
    v_lshrrev_b32 v5, 2, v3
    v_and_b32 v5, 3, v5
    v_lshlrev_b32 v6, 6, v3
    s_lshr_b32 s30, s3, 1
    s_lshl_b32 s30, s30, 11
    s_add_u32 s30, s30, 8192
    v_add_u32 v6, s30, v6
    v_xor_b32 v7, v4, v5
    v_lshlrev_b32 v7, 4, v7
    v_add_u32 v18, v6, v7
    v_add_u32 v7, 2, v4
    v_xor_b32 v7, v7, v5
    v_lshlrev_b32 v7, 4, v7
    v_add_u32 v19, v6, v7
    """)
    A0 = 64
    for i in range(32):
        g(f"v_mov_b32 v{A0+i}, 0")
    for i in range(4):
        g(f"v_add_u32 v{11+i}, 0x10000, v{16+i}")
    FS = [96, 26]
    B2 = [8, 12, 16, 60]
    def rd(k, kk):
        buf = (k % NST) * 16384
        F = FS[k & 1]
        vb = 16
        if buf >= 65536:
            buf -= 65536; vb = 11
        f = F + 12*kk
        for mt in range(2):
            g(f"ds_read_b64_tr_b16 v[{f+4*mt}:{f+4*mt+1}], v{vb+mt} offset:{buf+4096*kk}")
            g(f"ds_read_b64_tr_b16 v[{f+4*mt+2}:{f+4*mt+3}], v{vb+mt} offset:{buf+4096*kk+1024}")
        g(f"ds_read_b128 v[{f+8}:{f+11}], v{vb+2+kk} offset:{buf}")
    g(f"""
    v_mov_b32 v58, 0
    v_mov_b32 v59, 0
    v_mov_b32 v61, 0
    v_mov_b32 v62, 0
    s_mov_b32 s33, 0x3f803f80
    s_lshr_b32 s34, s3, 1
    s_add_u32 s44, s22, {WS_ST}
    s_addc_u32 s45, s23, 0
    s_lshl_b32 s26, s24, 7
    s_lshl_b32 s27, s34, 5
    s_add_u32 s26, s26, s27
    v_add_u32 v22, s26, v3
    v_lshlrev_b32 v22, 3, v22
    s_and_b32 s40, s24, 7
    s_lshl_b32 s40, s40, 5
    s_lshr_b32 s41, s24, 3
    s_mul_i32 s41, s41, {29*4096}
    s_add_u32 s40, s40, s41
    s_add_u32 s40, s40, {WS_FL}
    s_waitcnt vmcnt({2*(NST-1) + (2 if os.environ.get('IPF') else 0)})
    s_barrier
    """)
    g.stamp(2)
    rd(0, 0); rd(0, 1)
    for k in range(16):
        F = FS[k & 1]
        def mf(kk, mt):
            f = F + 12*kk
            a = A0 + 16*mt
            g(f"v_mfma_f32_32x32x16_bf16 v[{a}:{a+15}], v[{f+4*mt}:{f+4*mt+3}], v[{f+8}:{f+11}], v[{a}:{a+15}]")
        if k < 15:
            younger = 2*(min(k+NST-1, 15) - (k+1))
            if k > 12: younger += 1
            if os.environ.get('IPF') and k + 1 < NST: younger += 2
            g(f"s_waitcnt vmcnt({younger}) lgkmcnt(0)")
            g("s_barrier")
            if k < 3: g.stamp(3+k)
            if k == 8: g.stamp(7)
            if k == 8 and os.environ.get('GPRIO') == '3': g("s_setprio 0")
            mf(0, 0)
            rd(k+1, 0)
            mf(0, 1)
            rd(k+1, 1)
            mf(1, 0)
            if k + NST < 16 and not os.environ.get('E2'):
                issue(k + NST)
            mf(1, 1)
        else:
            g("s_waitcnt lgkmcnt(0)")
            mf(0, 0); mf(0, 1); mf(1, 0); mf(1, 1)
        if k == 7:
            g("s_cmp_lg_u32 s3, 0\ns_cbranch_scc1 G1_NOZL\nv_mov_b32 v23, 0\nglobal_load_dword v61, v23, s[20:21] sc1")
            g.label("G1_NOZL")
        if k == 11:
            g("s_cmp_lg_u32 s3, 0\ns_cbranch_scc1 G1_NOPOLL")
            g(f"""
            s_waitcnt vmcnt(0)
            v_cmp_eq_u32 vcc, 0, v61
            s_nop 3
            s_cmp_eq_u64 vcc, 0
            s_cbranch_scc1 G1_ZOK
            """)
            wait_zero(g, "g1p", 20, 21)
            g.label("G1_ZOK")
            g(f"""
            v_cmp_le_u32 vcc, 28, v1
            s_nop 1
            v_cndmask_b32 v20, 0, 1, vcc
            v_mul_u32_u24 v21, 28, v20
            v_sub_u32 v21, v1, v21
            v_lshlrev_b32 v21, 2, v21
            v_lshlrev_b32 v20, 12, v20
            v_add_u32 v20, v20, v21
            v_add_u32 v21, {WS_FL+3*4096}, v20
            v_add_u32 v20, {WS_FL+4096}, v20
            v_subrev_u32 v23, 56, v1
            v_lshlrev_b32 v23, 2, v23
            v_add_u32 v23, s40, v23
            s_lshl_b32 s41, s25, 2
            s_add_u32 s41, s41, {WS_FL+30*4096}
            v_mov_b32 v24, s41
            v_cmp_le_u32 vcc, 56, v1
            s_nop 1
            v_cndmask_b32 v20, v20, v23, vcc
            v_cndmask_b32 v21, v21, v24, vcc
            v_mov_b32 v23, 0
            s_mov_b32 s41, 0x01010101
            """)
            g.label("POLL_g1c")
            g(f"""
            global_load_dword v25, v20, s[22:23] sc1
            global_load_dword v60, v21, s[22:23] sc1
            s_waitcnt vmcnt(0)
            v_cmp_ne_u32 vcc, s41, v25
            v_cmp_ne_u32 s[42:43], s41, v60
            s_nop 3
            s_or_b64 vcc, vcc, s[42:43]
            s_cmp_eq_u64 vcc, 0
            s_cbranch_scc1 POLLD_g1c
            s_sleep 8
            s_branch POLL_g1c
            """)
            g.label("POLLD_g1c")
            g.label("G1_NOPOLL")
        if k == 12:
            g("global_load_dwordx2 v[20:21], v22, s[44:45] sc1")
            g(f"""
            s_cmp_ge_u32 s3, 2
            s_cbranch_scc1 G1_NOCSL
            s_mul_i32 s30, s3, {1792*4}
            s_lshl_b32 s31, s25, 9
            s_add_u32 s30, s30, s31
            s_add_u32 s30, s30, {WS_CS}
            v_and_b32 v23, 31, v1
            v_lshlrev_b32 v23, 4, v23
            v_add_u32 v23, s30, v23
            s_lshl_b32 s31, s3, 10
            s_add_u32 m0, s31, 16384
            s_nop 0
            global_load_lds_dwordx4 v23, s[22:23] sc1
            """)
            g.label("G1_NOCSL")
        if k == 15:
            g(f"""
            s_lshr_b32 s30, s2, 3
            s_mul_i32 s30, s30, {64*1024}
            s_add_u32 s30, s30, {WS_W2F}
            v_lshlrev_b32 v23, 7, v0
            v_add_u32 v23, s30, v23
            global_load_dword v59, v23, s[22:23] sc1
            """)
    g.stamp(6)
    if os.environ.get('GPRIO') == '2': g("s_setprio 0")
    g(f"""
    s_and_b32 s27, s3, 1
    s_lshl_b32 s27, s27, 8
    v_lshlrev_b32 v25, 4, v4
    v_add_u32 v25, s27, v25
    s_waitcnt vmcnt(1)
    s_barrier
    """)
    for mt in range(2):
        for gi in range(4):
            g(f"ds_read_b128 v[{96+16*mt+4*gi}:{99+16*mt+4*gi}], v25 offset:{16384+128*mt+32*gi}")
    for gi in range(4):
        g(f"ds_read_b128 v[{26+4*gi}:{29+4*gi}], v25 offset:{16384+1024+32*gi}")
    for gi in range(4):
        g(f"ds_read_b128 v[{B2[gi]}:{B2[gi]+3}], v25 offset:{16384+1024+128+32*gi}")
    g(f"""
    s_lshl_b32 s26, s24, 3
    s_lshr_b32 s27, s3, 1
    s_lshl_b32 s27, s27, 1
    s_add_u32 s26, s26, s27
    v_lshrrev_b32 v5, 4, v3
    v_add_u32 v5, s26, v5
    v_mul_u32_u24 v5, {56*1024}, v5
    v_and_b32 v6, 15, v3
    v_lshlrev_b32 v6, 4, v6
    v_add_u32 v5, v5, v6
    v_lshlrev_b32 v6, 8, v4
    v_add_u32 v5, v5, v6
    s_lshl_b32 s26, s25, 2
    s_and_b32 s27, s3, 1
    s_lshl_b32 s27, s27, 1
    s_add_u32 s26, s26, s27
    s_lshl_b32 s26, s26, 10
    s_mov_b32 s27, {fhex(LOG2E)}
    s_waitcnt lgkmcnt(0)
    """)
    g.stamp(8)
    T = 42
    for mt in range(2):
        a = A0 + 16*mt
        for half in range(2):
            R = [a + 8*half + i for i in range(8)]
            CSv = [96 + 16*mt + 8*half + i for i in range(8)]
            Bv = [26 + 8*half + i for i in range(8)] if mt == 0 else [B2[2*half + (i>>2)] + (i&3) for i in range(8)]
            for j in range(8):
                g(f"v_fma_f32 v{CSv[j]}, -v20, v{CSv[j]}, v{Bv[j]}")
            for j in range(8):
                g(f"v_fma_f32 v{R[j]}, v{R[j]}, v21, v{CSv[j]}")
            for j in range(4):
                g(f"v_cvt_pk_bf16_f32 v{T+j}, v{R[2*j]}, v{R[2*j+1]}")
            for j in range(4):
                g(f"v_lshlrev_b32 v{R[2*j]}, 16, v{T+j}")
                g(f"v_and_b32 v{R[2*j+1]}, 0xffff0000, v{T+j}")
            for j in range(8):
                g(f"v_mul_f32 v{T+j}, s27, v{R[j]}")
            for j in range(8):
                g(f"v_exp_f32 v{T+j}, v{T+j}")
            for j in range(8):
                g(f"v_add_f32 v{T+8+j}, 2.0, v{T+j}")
            for j in range(8):
                g(f"v_fma_f32 v{T+j}, v{T+j}, v{T+8+j}, 2.0")
            for j in range(8):
                g(f"v_rcp_f32 v{T+j}, v{T+j}")
            for j in range(8):
                g(f"v_fma_f32 v{T+j}, -2.0, v{T+j}, 1.0")
            for j in range(8):
                g(f"v_mul_f32 v{T+j}, v{T+j}, v{R[j]}")
            for j in range(4):
                g(f"v_cvt_pk_bf16_f32 v{R[j]}, v{T+2*j}, v{T+2*j+1}")
            g(f"""
            s_nop 1
            v_permlane32_swap_b32 v{R[0]}, v{R[2]}
            v_permlane32_swap_b32 v{R[1]}, v{R[3]}
            s_nop 0
            buffer_store_dwordx4 v[{R[0]}:{R[3]}], v5, s[16:19], s26 offen offset:{1024*mt+512*half} sc1
            """)
    g.stamp(9)
    if TL: g("s_memtime s[84:85]")
    g.dbmark(7)
    g(f"""
    s_lshl_b32 s60, s24, 1
    s_lshl_b32 s62, s25, 2
    s_mov_b32 s61, 1
    {'s_setprio 0' if os.environ.get('GPRIO') == '1' else ''}
    """)

KB_NG = 256
KB_NC = 256
KB_TOTAL = KB_NG + KB_NC
KB_LDS = 81920
CV_COPY = 8*KR_PITCH
CV_U = 95*80
CV_D = CV_COPY + CV_U

def gen_conv(g):
    g(f"""
    s_lshr_b32 s24, s3, 2
    s_lshl_b32 s25, s2, 1
    s_add_u32 s25, s25, s24
    s_and_b32 s26, s3, 3
    s_mul_i32 s27, s24, {CV_D}
    v_and_b32 v3, 255, v0
    v_and_b32 v5, 31, v1
    v_lshlrev_b32 v5, 4, v5
    s_waitcnt lgkmcnt(0)
    s_mov_b32 s35, s52
    s_mov_b32 s36, s53
    """)
    g.stamp(1)
    g.srd(12, 22, 2048*1024, WS_XT)
    g.srd(16, 22, 2048*1024, WS_AT)
    g(f"""
    v_lshrrev_b32 v116, 1, v3
    v_lshlrev_b32 v116, 14, v116
    v_and_b32 v8, 1, v3
    v_lshlrev_b32 v8, 4, v8
    v_add_u32 v116, v116, v8
    s_lshl_b32 s54, s25, 5
    s_min_u32 s37, s3, 5
    s_lshl_b32 s37, s37, 9
    s_add_u32 s37, s37, {L_P}
    v_add_u32 v56, s37, v5
    """)
    gen_kgen_setup(g)
    g(f"""
    ds_write_b128 v56, v[112:115]
    v_lshlrev_b32 v12, 1, v1
    s_lshl_b32 s28, s31, 7
    s_add_u32 s28, s28, {L_P}
    v_add_u32 v12, s28, v12
    s_waitcnt vmcnt(0) lgkmcnt(0)
    s_barrier
    s_cmp_lg_u32 s3, 7
    s_cbranch_scc1 KG_NOSIG
    s_cmp_eq_u32 s55, 0
    s_cbranch_scc1 KG_NOSIG
    v_cmp_eq_u32 vcc, 0, v117
    s_nop 3
    s_cmp_eq_u64 vcc, 0
    s_cbranch_scc1 KG_ZOK
    """)
    wait_zero(g, "kg", 117, 118)
    g.label("KG_ZOK")
    set_flag(g, 55, 117, 118)
    g.label("KG_NOSIG")
    g(f"s_setprio {os.environ.get('CPRIO','0')}")
    for dd in range(2):
        for i in range(6):
            g(f"ds_read_u16 v{52+8*dd+i}, v12 offset:{512*i+256*dd}")
    g(f"""
    s_and_b32 s28, s35, 0xffff
    s_lshr_b32 s29, s35, 16
    v_mov_b32 v58, s28
    v_mov_b32 v66, s29
    s_waitcnt lgkmcnt(0)
    """)
    g.stamp(2)
    gen_kgen(g, 0)
    gen_kgen(g, 1)
    g("s_cmp_lg_u32 s3, 0\ns_cbranch_scc1 CV_NOPOLL")
    wait_zero(g, "cv", 20, 21)
    g(f"s_mov_b32 s48, {WS_FL}")
    poll_flags(g, "cv", 48, 64, 20, 21, base="s[22:23]", slp=8)
    g(f"s_mov_b32 s48, {WS_FL+29*4096}")
    poll_flags(g, "cv2", 48, 64, 20, 21, base="s[22:23]", slp=8)
    g.label("CV_NOPOLL")
    g("s_waitcnt lgkmcnt(0)\ns_barrier")
    g("buffer_load_dwordx4 v[108:111], v116, s[12:15], s54 offen sc1")
    g.stamp(3)
    for dd in range(2):
        for j in range(4):
            g(f"ds_read_b32 v{20+8*dd+j}, v{16+j} offset:{8192*dd}")
            g(f"ds_read_b32 v{24+8*dd+j}, v{16+j} offset:{8192*dd+4096}")
    g(f"""
    v_lshlrev_b32 v12, 3, v0
    v_add_u32 v12, {L_R}, v12
    v_mov_b32 v40, 0
    v_mov_b32 v41, 0
    v_mov_b32 v42, 0
    v_mov_b32 v43, 0
    v_lshlrev_b32 v4, 4, v3
    s_mul_i32 s28, s24, {KR_PITCH}
    s_add_u32 s28, s28, {L_R}
    v_add_u32 v13, s28, v4
    s_waitcnt lgkmcnt(0)
    """)
    for dd in range(2):
        for j in range(4):
            g(f"v_add_f32 v{20+8*dd+j}, v{20+8*dd+j}, v{24+8*dd+j}")
        for j in range(4):
            g(f"v_mul_f32 v{20+8*dd+j}, v{20+8*dd+j}, v{106+dd}")
        g(f"v_cvt_pk_f16_f32 v{36+2*dd}, v{20+8*dd}, v{21+8*dd}")
        g(f"v_cvt_pk_f16_f32 v{37+2*dd}, v{22+8*dd}, v{23+8*dd}")
        g(f"ds_write_b64 v12, v[{36+2*dd}:{37+2*dd}] offset:{KR_PITCH*dd}")
    g(f"""
    v_cmp_gt_u32 vcc, 8, v0
    s_and_saveexec_b64 s[30:31], vcc
    ds_write_b64 v12, v[40:41] offset:4096
    ds_write_b64 v12, v[40:41] offset:{KR_PITCH+4096}
    s_mov_b64 exec, s[30:31]
    s_waitcnt lgkmcnt(0)
    s_barrier
    ds_read_b128 v[64:67], v13
    ds_read_b128 v[68:71], v13 offset:16
    v_lshrrev_b32 v5, 2, v3
    v_and_b32 v6, 3, v3
    v_lshlrev_b32 v6, 4, v6
    v_mul_u32_u24 v5, {KR_PITCH}, v5
    v_add_u32 v5, v5, v6
    v_add_u32 v5, 4096, v5
    v_add_u32 v5, s27, v5
    v_add_u32 v6, s27, v4
    v_lshrrev_b32 v24, 2, v3
    v_and_b32 v25, 3, v3
    v_mul_u32_u24 v24, 80, v24
    v_lshlrev_b32 v25, 4, v25
    v_add_u32 v24, v24, v25
    v_add_u32 v24, s27, v24
    s_waitcnt lgkmcnt(0)
    s_barrier
    v_cmp_gt_u32 vcc, 155, v3
    s_and_saveexec_b64 s[30:31], vcc
    ds_write_b128 v6, v[40:43] offset:{CV_COPY}
    s_mov_b64 exec, s[30:31]
    v_cmp_gt_u32 vcc, 32, v3
    s_and_saveexec_b64 s[30:31], vcc
    ds_write_b128 v5, v[40:43]
    s_mov_b64 exec, s[30:31]
    ds_write_b128 v6, v[64:67]
    ds_write_b128 v6, v[66:69] offset:{4*KR_PITCH}
    """)
    for j in range(1, 7):
        g(f"v_mov_b32 v{73+j}, v{64+j}")
    for j in range(7):
        g(f"v_alignbit_b32 v{80+j}, v{65+j}, v{64+j}, 16")
    for j in range(1, 7):
        g(f"v_alignbit_b32 v{87+j}, v{65+j}, v{64+j}, 16")
    g(f"""
    ds_write_b128 v6, v[74:77] offset:{2*KR_PITCH}
    ds_write_b128 v6, v[76:79] offset:{6*KR_PITCH}
    ds_write_b128 v6, v[80:83] offset:{1*KR_PITCH}
    ds_write_b128 v6, v[82:85] offset:{5*KR_PITCH}
    ds_write_b128 v6, v[88:91] offset:{3*KR_PITCH}
    ds_write_b128 v6, v[90:93] offset:{7*KR_PITCH}
    s_waitcnt vmcnt(0)
    ds_write_b128 v24, v[108:111] offset:{CV_COPY+31*80}
    s_lshr_b32 s30, s36, 16
    s_and_b32 s31, s36, 0xffff
    s_cmp_eq_u32 s24, 0
    s_cselect_b32 s36, s31, s30
    v_mov_b32 v60, s36
    s_cselect_b64 vcc, -1, 0
    v_cndmask_b32 v61, v105, v104, vcc
    """)
    g(f"""
    v_and_b32 v3, 31, v1
    v_lshrrev_b32 v4, 5, v1
    v_and_b32 v5, 7, v3
    v_sub_u32 v5, 7, v5
    v_mul_u32_u24 v5, {KR_PITCH}, v5
    v_lshrrev_b32 v6, 3, v3
    v_sub_u32 v6, v4, v6
    v_lshlrev_b32 v6, 4, v6
    v_add_u32 v5, v5, v6
    s_lshl_b32 s28, s26, 9
    s_sub_u32 s28, {4080 - 64*39}, s28
    s_add_u32 s28, s28, s27
    v_add_u32 v5, s28, v5
    v_mul_u32_u24 v6, 80, v3
    v_lshlrev_b32 v7, 4, v4
    v_add_u32 v6, v6, v7
    s_mul_i32 s28, s26, {8*80}
    s_sub_u32 s28, {CV_COPY + 24*80}, s28
    s_add_u32 s28, s28, s27
    v_add_u32 v6, s28, v6
    """)
    for i in range(32):
        g(f"v_mov_b32 v{24+i}, 0")
    g("s_waitcnt lgkmcnt(0)\ns_barrier")
    g.stamp(4)
    AC = 24
    def rd(step):
        dl, kk = step >> 1, step & 1
        ao = (7-dl)*64 + 32*kk
        bo = (7-dl)*80 + 32*kk
        f = 64 + 16*(step % 3)
        g(f"ds_read_b128 v[{f}:{f+3}], v5 offset:{ao+2048}")
        g(f"ds_read_b128 v[{f+4}:{f+7}], v5 offset:{ao}")
        g(f"ds_read_b128 v[{f+8}:{f+11}], v6 offset:{bo}")
        g(f"ds_read_b128 v[{f+12}:{f+15}], v6 offset:{bo+2560}")
    rd(0); rd(1)
    for step in range(16):
        if step + 2 < 16:
            rd(step+2)
            g("s_waitcnt lgkmcnt(8)")
        elif step + 1 < 16:
            g("s_waitcnt lgkmcnt(4)")
        else:
            g("s_waitcnt lgkmcnt(0)")
        f = 64 + 16*(step % 3)
        g(f"v_mfma_f32_32x32x16_f16 v[{AC}:{AC+15}], v[{f}:{f+3}], v[{f+8}:{f+11}], v[{AC}:{AC+15}]")
        g(f"v_mfma_f32_32x32x16_f16 v[{AC+16}:{AC+31}], v[{f}:{f+3}], v[{f+12}:{f+15}], v[{AC+16}:{AC+31}]")
        g(f"v_mfma_f32_32x32x16_f16 v[{AC+16}:{AC+31}], v[{f+4}:{f+7}], v[{f+8}:{f+11}], v[{AC+16}:{AC+31}]")
    g.stamp(5)
    g(f"""
    s_barrier
    v_lshlrev_b32 v7, 4, v1
    s_lshl_b32 s28, s26, 13
    s_add_u32 s28, s28, s27
    v_add_u32 v8, s28, v7
    v_lshrrev_b32 v11, 2, v1
    v_and_b32 v17, 3, v1
    s_and_b32 s29, s26, 1
    s_lshl_b32 s29, s29, 4
    v_add_u32 v11, s29, v11
    v_lshlrev_b32 v9, 10, v17
    v_lshlrev_b32 v10, 4, v11
    v_add_u32 v9, v9, v10
    s_lshr_b32 s28, s26, 1
    s_lshl_b32 s29, s28, 12
    s_add_u32 s29, s29, s27
    v_add_u32 v9, s29, v9
    v_mul_u32_u24 v10, 80, v11
    v_lshlrev_b32 v17, 4, v17
    v_add_u32 v10, v10, v17
    s_mul_i32 s28, s28, 2560
    s_add_u32 s28, s28, {CV_COPY + 31*80}
    s_add_u32 s28, s28, s27
    v_add_u32 v10, s28, v10
    s_nop 4
    """)
    for i in range(8):
        g(f"ds_write_b128 v8, v[{AC+4*i}:{AC+4*i+3}] offset:{1024*i}")
    g("ds_read_b128 v[12:15], v10")
    g.stamp(7)
    g("s_waitcnt lgkmcnt(0)\ns_barrier")
    g.stamp(8)
    for w in range(4):
        g(f"ds_read_b128 v[{64+8*w}:{67+8*w}], v9 offset:{8192*w}")
        g(f"ds_read_b128 v[{68+8*w}:{71+8*w}], v9 offset:{8192*w+512}")
    g(f"""
    v_lshlrev_b32 v60, 16, v60
    v_lshlrev_b32 v16, 4, v1
    s_lshl_b32 s28, s26, 10
    s_lshl_b32 s29, s25, 12
    s_add_u32 s28, s28, s29
    v_cvt_f32_f16 v24, v12
    v_cvt_f32_f16_sdwa v25, v12 dst_sel:DWORD dst_unused:UNUSED_PAD src0_sel:WORD_1
    v_cvt_f32_f16 v26, v13
    v_cvt_f32_f16_sdwa v27, v13 dst_sel:DWORD dst_unused:UNUSED_PAD src0_sel:WORD_1
    v_cvt_f32_f16 v28, v14
    v_cvt_f32_f16_sdwa v29, v14 dst_sel:DWORD dst_unused:UNUSED_PAD src0_sel:WORD_1
    v_cvt_f32_f16 v30, v15
    v_cvt_f32_f16_sdwa v31, v15 dst_sel:DWORD dst_unused:UNUSED_PAD src0_sel:WORD_1
    """)
    for i in range(8):
        g(f"v_mul_f32 v{24+i}, v{24+i}, v60")
    for j in range(4):
        g(f"v_cvt_pk_bf16_f32 v{32+j}, v{24+2*j}, v{24+2*j+1}")
    for j in range(4):
        g(f"v_lshlrev_b32 v{24+2*j}, 16, v{32+j}")
        g(f"v_and_b32 v{24+2*j+1}, 0xffff0000, v{32+j}")
    g("s_waitcnt lgkmcnt(0)")
    for i in range(8):
        g(f"v_add_f32 v{64+i}, v{64+i}, v{72+i}")
        g(f"v_add_f32 v{80+i}, v{80+i}, v{88+i}")
    for i in range(8):
        g(f"v_add_f32 v{64+i}, v{64+i}, v{80+i}")
    for i in range(8):
        g(f"v_mul_f32 v{64+i}, v{64+i}, v61")
    for j in range(4):
        g(f"v_cvt_pk_bf16_f32 v{32+j}, v{64+2*j}, v{64+2*j+1}")
    for j in range(4):
        g(f"v_lshlrev_b32 v{64+2*j}, 16, v{32+j}")
        g(f"v_and_b32 v{64+2*j+1}, 0xffff0000, v{32+j}")
    for i in range(8):
        g(f"v_add_f32 v{64+i}, v{64+i}, v{24+i}")
    for j in range(4):
        g(f"v_cvt_pk_bf16_f32 v{32+j}, v{64+2*j}, v{64+2*j+1}")
    g(f"""
    buffer_store_dwordx4 v[32:35], v16, s[16:19], s28 offen sc1
    """)
    g.stamp(9)
    g(f"""
    s_waitcnt vmcnt(0)
    """)
    g.stamp(10)
    g(f"""
    s_barrier
    s_cmp_lg_u32 s3, 0
    s_cbranch_scc1 CV_NOSIG
    s_lshr_b32 s28, s2, 5
    s_and_b32 s29, s2, 31
    s_lshl_b32 s29, s29, 2
    s_add_u32 s29, s29, 64
    v_mov_b32 v13, s28
    """)
    cons_addr(g, 1, 13, 12, 14)
    g(f"""
    v_add_u32 v12, s29, v12
    v_mov_b32 v13, 0x01010101
    v_cmp_gt_u32 vcc, 32, v1
    s_and_saveexec_b64 s[30:31], vcc
    global_store_dword v12, v13, s[22:23] sc1
    s_mov_b64 exec, s[30:31]
    """)
    g.label("CV_NOSIG")
    g.stamp(6)
    g.stamp_end(11, "cv")
    g("s_endpgm")

def gen_gemm2(g):
    g(f"""
    s_and_b32 s25, s2, 7
    s_lshl_b32 s25, s25, 2
    s_lshr_b32 s24, s2, 3
    s_lshr_b32 s26, s24, 3
    s_add_u32 s25, s25, s26
    s_and_b32 s24, s24, 7
    s_mul_i32 s36, s3, {7*1024}
    v_lshlrev_b32 v5, 4, v1
    v_add_u32 v8, s36, v5
    v_add_u32 v9, 4096, v8
    s_mul_i32 s40, s24, {4*56*1024}
    s_add_u32 s41, s40, {56*1024}
    s_add_u32 s42, s40, {2*56*1024}
    s_add_u32 s43, s40, {3*56*1024}
    s_mul_i32 s44, s25, {4*56*1024}
    s_add_u32 s45, s44, {56*1024}
    s_add_u32 s46, s44, {2*56*1024}
    s_add_u32 s47, s44, {3*56*1024}
    """)
    g.srd(8, 22, 512*3584, WS_W2F)
    g.srd(12, 22, 2048*3584, WS_ACT)
    g.srd(16, 22, 2048*1024, WS_AT)
    g.srd(28, 56, 2048*1024)
    g.srd(32, 58, 2048*1024)
    AC = 16
    AR = [80, 96]
    BR = 112
    def ldA(st):
        fb = AR[st & 1]; va = 8 + (st >> 2)
        for i in range(4):
            g(f"buffer_load_dwordx4 v[{fb+4*i}:{fb+4*i+3}], v{va}, s[8:11], s{40+i} offen offset:{1024*(st&3)} sc1")
    def ldB(st, j):
        va = 8 + (st >> 2)
        g(f"buffer_load_dwordx4 v[{BR+4*j}:{BR+4*j+3}], v{va}, s[12:15], s{44+j} offen offset:{1024*(st&3)} sc1")
    ldA(0)
    ldA(1)
    g(f"""
    v_and_b32 v3, 15, v1
    v_lshrrev_b32 v4, 4, v1
    s_lshl_b32 s37, s25, 6
    s_lshr_b32 s38, s3, 1
    s_lshl_b32 s38, s38, 4
    s_add_u32 s37, s37, s38
    v_add_u32 v6, s37, v3
    v_lshlrev_b32 v7, 10, v6
    v_lshlrev_b32 v14, 3, v4
    v_add_u32 v7, v7, v14
    s_lshl_b32 s38, s24, 7
    s_and_b32 s39, s3, 1
    s_lshl_b32 s48, s39, 6
    s_add_u32 s38, s38, s48
    v_add_u32 v7, s38, v7
    buffer_load_dwordx2 v[10:11], v7, s[28:31], 0 offen
    buffer_load_dwordx2 v[12:13], v7, s[28:31], 0 offen offset:32
    s_cmp_eq_u32 s61, 0
    s_cbranch_scc1 G2_NOSIG
    s_waitcnt vmcnt(10)
    """)
    g.stamp(1)
    g(f"""
    s_barrier
    """)
    g.stamp(2)
    g(f"""
    s_cmp_lg_u32 s3, 0
    s_cbranch_scc1 G2_NOSIG
    """)
    g(f"""
    v_lshrrev_b32 v16, 3, v1
    v_add_u32 v16, s60, v16
    v_and_b32 v17, 7, v1
    """)
    cons_addr(g, 16, 17, 18, 19)
    g(f"""
    v_add_u32 v18, s62, v18
    v_mov_b32 v19, 0x01010101
    v_cmp_gt_u32 vcc, 16, v1
    s_and_saveexec_b64 s[50:51], vcc
    global_store_dword v18, v19, s[22:23] sc1
    s_mov_b64 exec, s[50:51]
    """)
    g.label("G2_NOSIG")
    for i in range(64):
        g(f"v_mov_b32 v{AC+i}, 0")
    g(f"""
    s_mul_i32 s37, s3, 224
    s_lshr_b32 s38, s37, 7
    s_add_u32 s37, s37, 223
    s_lshr_b32 s37, s37, 7
    s_lshl_b32 s48, s2, 8
    s_add_u32 s48, s48, {WS_F2}
    v_add_u32 v15, s38, v1
    v_min_u32 v15, s37, v15
    v_lshlrev_b32 v15, 2, v15
    v_add_u32 v15, s48, v15
    s_mov_b32 s49, 0x01010101
    """)
    g.label("POLL_g2a")
    g(f"""
    global_load_dword v2, v15, s[22:23] sc1
    s_waitcnt vmcnt(0)
    v_cmp_ne_u32 vcc, s49, v2
    s_nop 3
    s_cmp_eq_u64 vcc, 0
    s_cbranch_scc1 POLLD_g2a
    s_sleep 8
    s_branch POLL_g2a
    """)
    g.label("POLLD_g2a")
    g.stamp(10)
    for j in range(4): ldB(0, j)
    order = ['A0']*1
    seq = [('A',0)]*4 + [('A',1)]*4 + [('B',0,j) for j in range(4)]
    for st in range(7):
        for j in range(4):
            last = max(i for i, e in enumerate(seq) if (e[0]=='A' and e[1]==st) or (e[0]=='B' and e[1]==st and e[2]==j))
            g(f"s_waitcnt vmcnt({len(seq)-1-last})")
            fa = AR[st & 1]
            for i in range(4):
                a = AC + 4*(4*i+j)
                g(f"v_mfma_f32_16x16x32_bf16 v[{a}:{a+3}], v[{fa+4*i}:{fa+4*i+3}], v[{BR+4*j}:{BR+4*j+3}], v[{a}:{a+3}]")
            if st + 1 < 7:
                ldB(st+1, j); seq.append(('B', st+1, j))
        if st + 2 < 7:
            ldA(st+2); seq += [('A', st+2)]*4
    g.stamp(11)
    g(f"""
    v_lshlrev_b32 v14, 14, v4
    v_lshlrev_b32 v6, 1, v6
    v_add_u32 v14, v14, v6
    s_and_b32 s39, s3, 1
    s_lshl_b32 s38, s24, 18
    s_lshl_b32 s48, s39, 17
    s_add_u32 s38, s38, s48
    v_add_u32 v14, s38, v14
    v_add_u32 v112, 4096, v14
    v_add_u32 v113, 8192, v14
    v_add_u32 v114, 12288, v14
    v_mov_b32 v115, v7
    s_and_b32 s36, s3, 3
    s_lshl_b32 s36, s36, 14
    v_add_u32 v6, s36, v5
    s_lshl_b32 s48, s2, 8
    s_add_u32 s48, s48, {WS_F2+64}
    s_cmp_lt_u32 s3, 4
    s_cbranch_scc1 G2_LOW1
    """)
    for t in range(16):
        g(f"ds_write_b128 v6, v[{AC+4*t}:{AC+4*t+3}] offset:{t*1024}")
    g("s_branch G2_J1")
    g.label("G2_LOW1")
    g("s_cmp_lg_u32 s3, 0\ns_cbranch_scc1 G2_J1")
    poll_flags(g, "g2", 48, 32, 2, 15, base="s[22:23]", slp=4)
    g.label("G2_J1")
    g("s_waitcnt lgkmcnt(0)\ns_barrier")
    g.stamp(3)
    g("s_mov_b32 s39, 65536")
    for i in range(2):
        for r in range(4):
            va = [14, 112, 113, 114][r]
            g(f"buffer_load_ushort v{116+4*i+r}, v{va}, s[16:19], {'0' if i == 0 else 's39'} offen sc1")
    g("s_cmp_ge_u32 s3, 4\ns_cbranch_scc1 G2_J2")
    for h in range(2):
        for t in range(8):
            g(f"ds_read_b128 v[{80+4*t}:{83+4*t}], v6 offset:{(8*h+t)*1024}")
        g("s_waitcnt lgkmcnt(0)")
        for t in range(8):
            for r in range(4):
                g(f"v_add_f32 v{AC+32*h+4*t+r}, v{AC+32*h+4*t+r}, v{80+4*t+r}")
    for t in range(16):
        g(f"ds_write_b128 v6, v[{AC+4*t}:{AC+4*t+3}] offset:{t*1024}")
    g.label("G2_J2")
    g(f"""
    s_and_b32 s37, s3, 1
    s_lshl_b32 s37, s37, 13
    s_lshr_b32 s38, s3, 1
    s_lshl_b32 s38, s38, 10
    s_add_u32 s37, s37, s38
    v_add_u32 v7, s37, v5
    s_waitcnt lgkmcnt(0)
    s_barrier
    """)
    for i in range(2):
        for w in range(4):
            g(f"ds_read_b128 v[{16+16*i+4*w}:{19+16*i+4*w}], v7 offset:{w*16384+i*4096}")
    g("s_waitcnt lgkmcnt(0)")
    for i in range(2):
        for r in range(4):
            b = 16+16*i+r
            g(f"v_add_f32 v{b}, v{b}, v{b+4}")
            g(f"v_add_f32 v{b+8}, v{b+8}, v{b+12}")
        for r in range(4):
            b = 16+16*i+r
            g(f"v_add_f32 v{b}, v{b}, v{b+8}")
    g.stamp(4)
    g("s_waitcnt vmcnt(0)")
    g.stamp(5)
    for i in range(2):
        b = 16+16*i
        g(f"""
        v_cvt_pk_bf16_f32 v{b+4}, v{b}, v{b+1}
        v_cvt_pk_bf16_f32 v{b+5}, v{b+2}, v{b+3}
        v_lshlrev_b32 v{b}, 16, v{b+4}
        v_and_b32 v{b+1}, 0xffff0000, v{b+4}
        v_lshlrev_b32 v{b+2}, 16, v{b+5}
        v_and_b32 v{b+3}, 0xffff0000, v{b+5}
        v_lshlrev_b32 v{b+4}, 16, v{10+2*i}
        v_and_b32 v{b+5}, 0xffff0000, v{10+2*i}
        v_lshlrev_b32 v{b+6}, 16, v{11+2*i}
        v_and_b32 v{b+7}, 0xffff0000, v{11+2*i}
        v_lshlrev_b32 v{b+8}, 16, v{116+4*i}
        v_lshlrev_b32 v{b+9}, 16, v{117+4*i}
        v_lshlrev_b32 v{b+10}, 16, v{118+4*i}
        v_lshlrev_b32 v{b+11}, 16, v{119+4*i}
        v_add_f32 v{b+4}, v{b+4}, v{b+8}
        v_add_f32 v{b+5}, v{b+5}, v{b+9}
        v_add_f32 v{b+6}, v{b+6}, v{b+10}
        v_add_f32 v{b+7}, v{b+7}, v{b+11}
        v_cvt_pk_bf16_f32 v{b+8}, v{b+4}, v{b+5}
        v_cvt_pk_bf16_f32 v{b+9}, v{b+6}, v{b+7}
        v_lshlrev_b32 v{b+4}, 16, v{b+8}
        v_and_b32 v{b+5}, 0xffff0000, v{b+8}
        v_lshlrev_b32 v{b+6}, 16, v{b+9}
        v_and_b32 v{b+7}, 0xffff0000, v{b+9}
        v_add_f32 v{b+4}, v{b+4}, v{b}
        v_add_f32 v{b+5}, v{b+5}, v{b+1}
        v_add_f32 v{b+6}, v{b+6}, v{b+2}
        v_add_f32 v{b+7}, v{b+7}, v{b+3}
        v_cvt_pk_bf16_f32 v{b+8}, v{b+4}, v{b+5}
        v_cvt_pk_bf16_f32 v{b+9}, v{b+6}, v{b+7}
        buffer_store_dwordx2 v[{b+8}:{b+9}], v115, s[32:35], 0 offen offset:{32*i}
        """)
    g.stamp_end(12, "g2")
    g("s_endpgm")

HEADER = open("parallel_sum__ssm_conv_s4__dense_activation_mish__prompt.s.ref").read().split("; Override launch")[0]

def build():
    g = G()
    g.raw(HEADER.rstrip("\n"))
    g.raw(f"; @launch grid=(512,1,1) block=(512,1,1) lds=81920")
    g.raw('.amdgcn_target "amdgcn-amd-amdhsa--gfx950"')
    g.raw(".text")
    gen_mega(g)
    g.raw('.section .rodata,"a"')
    g.raw(".p2align 6")
    g.raw(kernel_desc("parallel_sum__ssm_conv_s4__dense_activation_mish__prompt_kernel", 128))
    return g.text()

if __name__ == "__main__":
    out = sys.argv[1] if len(sys.argv) > 1 else "parallel_sum__ssm_conv_s4__dense_activation_mish__prompt.s"
    txt = build()
    if os.environ.get('LIST'):
        txt = txt.replace("; @launch grid=(512,1,1)", "; @launch kernel=parallel_sum__ssm_conv_s4__dense_activation_mish__prompt_kernel grid=(512,1,1)")
    open(out, "w").write(txt)
    print("written", out)
```

```python
import sys, struct, os
STAMP = os.environ.get('STAMP') is not None
STAMP_WG = int(os.environ.get('STAMP', '0'))
TL = os.environ.get('TL') is not None
DB = os.environ.get('DB') is not None
RT = os.environ.get('RT')

def f2u(x): return struct.unpack('<I', struct.pack('<f', x))[0]
def fhex(x): return "0x%08x" % f2u(x)
LOG2E = 1.4426950408889634
INV2PI = 0.15915494309189535

WS_ST  = 0x000000
WS_CS  = 0x010000
WS_XT  = 0x200000
WS_KR  = 0x400000
KR_PITCH = 4160
WS_KS  = 0x620000
WS_FL  = 0x640000
WS_F2  = 0x680000
WS_W2F = 0x800000
WS_AT  = 0xA00000
WS_ACT = 0xC00000

class G:
    def __init__(self): self.L = []
    def __call__(self, s):
        for line in s.strip('\n').split('\n'):
            if line.strip(): self.L.append("    " + line.strip())
    def label(self, s): self.L.append(s + ":")
    def raw(self, s): self.L.append(s)
    def text(self): return "\n".join(self.L) + "\n"
    def stamp(self, i):
        if STAMP: self(f"s_memtime s[{64+2*i}:{65+2*i}]")
        if RT: self(f"s_memrealtime s[{64+2*i}:{65+2*i}]")
    def dbmark(self, slot, inv=False, start=False):
        if not DB: return
        t = f"DBM{len(self.L)}"
        self(f"""
        s_cmp_lg_u32 s94, 0
        s_cbranch_scc1 {t}
        {'' if start else 's_memrealtime s[90:91]'}
        s_waitcnt lgkmcnt(0)
        {'s_mov_b32 s90, s88' if start else ''}
        {'s_not_b32 s90, s90' if inv else ''}
        v_mov_b32 v126, {4*slot}
        v_mov_b32 v127, s90
        v_cmp_eq_u32 vcc, 0, v1
        s_and_saveexec_b64 s[92:93], vcc
        global_atomic_umax v126, v127, s[20:21]
        s_mov_b64 exec, s[92:93]
        """)
        self.label(t)
    def stamp_end(self, n, tag):
        if RT:
            cw, gw = [int(x) for x in RT.split(',')]
            wg = gw if tag == 'g2' else cw
            sel = [0, 6, 9, 10, 11, 12] if tag == 'g2' else [0, 1, 3, 5, 6, 11]
            base = 40 if tag == 'g2' else 16
            self(f"""
            s_waitcnt vmcnt(0) lgkmcnt(0)
            s_memrealtime s[{64+2*n}:{65+2*n}]
            s_waitcnt lgkmcnt(0)
            s_cmp_lg_u32 s95, {wg}
            s_cbranch_scc1 RT_SKIP_{tag}
            s_cmp_lg_u32 s94, 0
            s_cbranch_scc1 RT_SKIP_{tag}
            v_mov_b32 v0, 0
            """)
            for i, k in enumerate(sel):
                self(f"v_mov_b32 v1, s{64+2*k}")
                self(f"global_store_dword v0, v1, s[20:21] offset:{base+4*i}")
            self.label(f"RT_SKIP_{tag}")
        if DB:
            self.dbmark(4, inv=True, start=True)
            self.dbmark(5, start=True)
            self.dbmark(6 if tag == 'g2' else 8)
        if TL:
            base = 0x3000000
            self(f"""
            s_waitcnt vmcnt(0) lgkmcnt(0)
            s_memrealtime s[90:91]
            s_memtime s[92:93]
            s_waitcnt lgkmcnt(0)
            s_cmp_lg_u32 s94, 0
            s_cbranch_scc1 TL_SKIP_{tag}
            s_lshl_b32 s83, s95, 4
            s_add_u32 s83, s83, {base}
            v_mov_b32 v0, s83
            v_mov_b32 v4, s88
            v_mov_b32 v5, s90
            s_sub_u32 s92, s92, s86
            v_mov_b32 v6, s92
            s_sub_u32 s84, s84, s86
            v_mov_b32 v7, s84
            global_store_dwordx4 v0, v[4:7], s[22:23]
            """)
            self.label(f"TL_SKIP_{tag}")
        if not STAMP: return
        self(f"""
        s_waitcnt vmcnt(0) lgkmcnt(0)
        s_memtime s[{64+2*n}:{65+2*n}]
        s_waitcnt lgkmcnt(0)
        s_cmp_lg_u32 s95, {STAMP_WG}
        s_cbranch_scc1 ST_SKIP_{tag}
        s_cmp_lg_u32 s94, 0
        s_cbranch_scc1 ST_SKIP_{tag}
        v_mov_b32 v0, 0x3200000
        """)
        for i in range(n+1):
            self(f"s_sub_u32 s93, s{64+2*i}, s64")
            self(f"v_mov_b32 v1, s93")
            self(f"global_store_dword v0, v1, s[22:23] offset:{4*i}")
        self.label(f"ST_SKIP_{tag}")
    def srd(self, d, pb, nbytes, off=0):
        if off:
            self(f"s_add_u32 s{d}, s{pb}, {off}")
            self(f"s_addc_u32 s{d+1}, s{pb+1}, 0")
        else:
            self(f"s_mov_b32 s{d}, s{pb}")
            self(f"s_mov_b32 s{d+1}, s{pb+1}")
        self(f"s_mov_b32 s{d+2}, {nbytes}")
        self(f"s_mov_b32 s{d+3}, 0x00020000")
    def poll(self, tag, soff, target, vt, vz):
        self(f"v_mov_b32 v{vz}, s{soff}")
        self.label(f"POLL_{tag}")
        self(f"""
        global_load_dword v{vt}, v{vz}, s[20:21] sc1
        s_waitcnt vmcnt(0)
        v_readfirstlane_b32 s{soff+1}, v{vt}
        s_nop 3
        s_cmp_ge_u32 s{soff+1}, {target}
        s_cbranch_scc1 POLLD_{tag}
        s_sleep 8
        s_branch POLL_{tag}
        """)
        self.label(f"POLLD_{tag}")

def poll_flags(g, tag, soff, ndw, vt, vz, base='s[20:21]', slp=8):
    g(f"""
    v_min_u32 v{vz}, {ndw-1}, v1
    v_lshlrev_b32 v{vz}, 2, v{vz}
    v_add_u32 v{vz}, s{soff}, v{vz}
    s_mov_b32 s{soff+1}, 0x01010101
    """)
    g.label(f"POLL_{tag}")
    g(f"""
    global_load_dword v{vt}, v{vz}, {base} sc1
    s_waitcnt vmcnt(0)
    v_cmp_ne_u32 vcc, s{soff+1}, v{vt}
    s_nop 3
    s_cmp_eq_u64 vcc, 0
    s_cbranch_scc1 POLLD_{tag}
    s_sleep {slp}
    s_branch POLL_{tag}
    """)
    g.label(f"POLLD_{tag}")

def wait_zero(g, tag, vt, vz):
    g(f"v_mov_b32 v{vz}, 0")
    g.label(f"WZ_{tag}")
    g(f"""
    global_load_dword v{vt}, v{vz}, s[20:21] sc1
    s_waitcnt vmcnt(0)
    v_cmp_eq_u32 vcc, 0, v{vt}
    s_nop 3
    s_cmp_eq_u64 vcc, 0
    s_cbranch_scc1 WZD_{tag}
    s_sleep 8
    s_branch WZ_{tag}
    """)
    g.label(f"WZD_{tag}")

def set_flag(g, sreg, va, vb):
    g(f"""
    v_mov_b32 v{va}, s{sreg}
    v_mov_b32 v{vb}, 0x01010101
    v_cmp_eq_u32 vcc, 0, v1
    s_and_saveexec_b64 s[50:51], vcc
    global_store_dword v{va}, v{vb}, s[22:23] sc1
    s_mov_b64 exec, s[50:51]
    """)

def cons_addr(g, vT, vD, vO, vx):
    g(f"""
    v_and_b32 v{vO}, 3, v{vT}
    v_lshlrev_b32 v{vO}, 3, v{vO}
    v_add_u32 v{vO}, v{vO}, v{vD}
    v_lshlrev_b32 v{vO}, 3, v{vO}
    v_lshrrev_b32 v{vx}, 2, v{vT}
    v_add_u32 v{vO}, v{vO}, v{vx}
    v_lshlrev_b32 v{vO}, 8, v{vO}
    v_add_u32 v{vO}, {WS_F2}, v{vO}
    """)

def poll_wf_all(g, tag, vt, vz):
    for ct in range(4):
        g(f"s_mov_b32 s62, {WS_FL + (ct+1)*4096}")
        poll_flags(g, f"{tag}{ct}", 62, 28, vt, vz, base="s[22:23]")

def kernel_begin(g, name):
    g.raw(f".globl {name}")
    g.raw(".p2align 8")
    g.raw(f".type {name},@function")
    g.label(name)
    g.stamp(0)
    G.kname = name
    if DB: g("s_memrealtime s[88:89]")
    if TL:
        g("s_memrealtime s[88:89]\ns_memtime s[86:87]")

def kernel_desc(name, vgpr, sgpr=96):
    acc = (vgpr + 3)//4*4
    return f""".amdhsa_kernel {name}
  .amdhsa_next_free_vgpr {vgpr}
  .amdhsa_next_free_sgpr {sgpr}
  .amdhsa_accum_offset {acc}
  .amdhsa_group_segment_fixed_size 0
  .amdhsa_kernarg_size 128
  .amdhsa_user_sgpr_count 2
  .amdhsa_user_sgpr_kernarg_segment_ptr 1
  .amdhsa_system_sgpr_workgroup_id_x 1
.end_amdhsa_kernel
"""
DPP = ["quad_perm:[1,0,3,2]", "quad_perm:[2,3,0,1]", "row_half_mirror", "row_mirror",
       "row_bcast:15 row_mask:0xa", "row_bcast:31 row_mask:0xc"]

KA_NL = 128
KA_NW = 112
KA_NG = 224
KA_TOTAL = KA_NL + KA_NW + KA_NG
KA_LDS = 81920
TP = 272
TCH = 96*TP
LNP = 1056
TRP = 288

def gen_mega(g):
    kernel_begin(g, "parallel_sum__ssm_conv_s4__dense_activation_mish__prompt_kernel")
    g(f"""
    s_cmp_ge_u32 s2, 512
    s_cbranch_scc1 M_END
    s_load_dwordx4 s[20:23], s[0:1], 112
    v_and_b32 v1, 63, v0
    v_lshrrev_b32 v2, 6, v0
    s_nop 0
    v_readfirstlane_b32 s3, v2
    s_mov_b32 s95, s2
    s_mov_b32 s94, s3
    {'s_xor_b32 s2, s2, 256' if os.environ.get('SWAP') else ''}
    """)
    if os.environ.get('CPF'):
        g(f"""
        s_cmp_lg_u32 s3, 7
        s_cbranch_scc1 M_NOCPF
        s_getpc_b64 s[48:49]
        v_lshlrev_b32 v4, 7, v1
        v_add_u32 v5, 8192, v4
        v_add_u32 v6, 16384, v4
        v_add_u32 v7, 24576, v4
        global_load_dword v120, v4, s[48:49]
        global_load_dword v120, v5, s[48:49]
        global_load_dword v120, v6, s[48:49]
        """)
        g.label("M_NOCPF")
    g(f"""
    s_cmp_ge_u32 s2, 256
    s_cbranch_scc1 M_G
    """)
    g(f"""
    s_setprio 3
    s_load_dwordx4 s[4:7], s[0:1], 56
    s_min_u32 s36, s3, 5
    s_lshl_b32 s36, s36, 3
    s_add_u32 s36, s36, 8
    s_load_dwordx2 s[8:9], s[0:1], s36
    s_lshl_b32 s28, s2, 2
    s_lshl_b32 s36, s2, 9
    v_and_b32 v5, 31, v1
    v_lshlrev_b32 v5, 4, v5
    v_add_u32 v6, s36, v5
    s_waitcnt lgkmcnt(0)
    s_load_dword s52, s[4:5], s28
    s_load_dword s53, s[6:7], s28
    global_load_dwordx4 v[112:115], v6, s[8:9]
    s_cmp_lg_u32 s2, 0
    s_cbranch_scc1 M_NOZ
    v_lshrrev_b32 v4, 6, v0
    v_lshlrev_b32 v4, 12, v4
    v_lshlrev_b32 v5, 2, v1
    v_add_u32 v4, v4, v5
    v_add_u32 v4, {WS_FL}, v4
    v_add_u32 v5, 0x8000, v4
    v_add_u32 v6, 0x10000, v4
    v_add_u32 v7, 0x18000, v4
    v_mov_b32 v8, 0
    global_store_dword v4, v8, s[22:23] sc1
    global_store_dword v5, v8, s[22:23] sc1
    global_store_dword v6, v8, s[22:23] sc1
    global_store_dword v7, v8, s[22:23] sc1
    v_mov_b32 v9, 0
    v_mov_b32 v10, 0
    v_mov_b32 v11, 0
    v_lshlrev_b32 v4, 4, v0
    v_add_u32 v4, {WS_F2}, v4
    """)
    for i in range(8):
        g(f"global_store_dwordx4 v4, v[8:11], s[22:23] sc1")
        if i < 7: g("v_add_u32 v4, 8192, v4")
    g(f"""
    s_waitcnt vmcnt(0)
    s_barrier
    s_cmp_lg_u32 s3, 0
    s_cbranch_scc1 M_NOZ
    v_mov_b32 v4, 0
    v_mov_b32 v5, 0x01010101
    v_cmp_eq_u32 vcc, 0, v1
    s_and_saveexec_b64 s[50:51], vcc
    global_store_dword v4, v5, s[20:21] sc1
    s_mov_b64 exec, s[50:51]
    """)
    g.label("M_NOZ")
    g(f"""
    s_mov_b32 s55, 0
    s_cmp_ge_u32 s2, {KA_NL}
    s_cbranch_scc1 M_NOTLN
    """)
    gen_ln(g)
    g("s_branch M_CONV")
    g.label("M_NOTLN")
    g(f"""
    s_cmp_ge_u32 s2, {KA_NL+KA_NW}
    s_cbranch_scc1 M_NOROLE
    """)
    gen_w2f(g)
    g("s_branch M_CONV")
    g.label("M_NOROLE")
    g(f"s_cmp_ge_u32 s2, {KA_NL+KA_NW+14}\ns_cbranch_scc1 M_NOROLE2")
    gen_cs(g)
    g("s_branch M_CONV")
    g.label("M_NOROLE2")
    g("s_waitcnt vmcnt(0)")
    g.label("M_CONV")
    gen_conv(g)
    g.label("M_G")
    g(f"""
    {'s_setprio 2' if os.environ.get('GPRIO') else ''}
    s_sub_u32 s2, s2, 256
    s_load_dwordx2 s[56:57], s[0:1], 0
    s_load_dwordx2 s[58:59], s[0:1], 104
    s_mov_b32 s61, 0
    s_cmp_ge_u32 s2, {KA_NG}
    s_cbranch_scc1 M_G2PRE
    """)
    gen_gemm1(g)
    g("s_branch M_G2")
    g.label("M_G2PRE")
    g("s_waitcnt lgkmcnt(0)\ns_cmp_lg_u32 s3, 0\ns_cbranch_scc1 G2_NOPOLL0")
    wait_zero(g, "g2", 2, 15)
    poll_wf_all(g, "g2w", 2, 15)
    g.label("G2_NOPOLL0")
    g("s_barrier")
    g.label("M_G2")
    gen_gemm2(g)
    g.label("M_END")
    g("s_endpgm")

def gen_ln(g):
    NR = 2
    g(f"""
    s_load_dwordx2 s[4:5], s[0:1], 0
    s_lshl_b32 s6, s2, 4
    s_lshl_b32 s7, s3, 1
    s_add_u32 s6, s6, s7
    s_lshl_b32 s7, s6, 10
    v_lshlrev_b32 v3, 4, v1
    s_waitcnt lgkmcnt(0)
    """)
    g.srd(8, 4, 2048*1024)
    g.srd(16, 22, 2048*1024, WS_XT)
    for i in range(NR):
        g(f"buffer_load_dwordx4 v[{16+4*i}:{19+4*i}], v3, s[8:11], s7 offen offset:{1024*i}")
    g("s_waitcnt vmcnt(0)")
    X = 32
    for i in range(NR):
        for j in range(4):
            g(f"v_lshlrev_b32 v{X+8*i+2*j}, 16, v{16+4*i+j}")
            g(f"v_and_b32 v{X+8*i+2*j+1}, 0xffff0000, v{16+4*i+j}")
    def reduce(base):
        for mod in DPP:
            for i in range(NR):
                g(f"v_add_f32_dpp v{base+i}, v{base+i}, v{base+i} {mod}")
            g("s_nop 0")
    for i in range(NR):
        b = X+8*i
        g(f"v_add_f32 v{4+i}, v{b}, v{b+1}")
        g(f"v_add_f32 v{8+i}, v{b+2}, v{b+3}")
        g(f"v_add_f32 v{12+i}, v{b+4}, v{b+5}")
        g(f"v_add_f32 v{64+i}, v{b+6}, v{b+7}")
    for i in range(NR):
        g(f"v_add_f32 v{4+i}, v{4+i}, v{8+i}")
        g(f"v_add_f32 v{12+i}, v{12+i}, v{64+i}")
    for i in range(NR):
        g(f"v_add_f32 v{4+i}, v{4+i}, v{12+i}")
    g("s_nop 1")
    reduce(4)
    for i in range(NR):
        g(f"v_readlane_b32 s{32+i}, v{4+i}, 63")
    g("s_nop 1")
    for i in range(NR):
        g(f"v_mov_b32 v{4+i}, s{32+i}")
    for i in range(NR):
        g(f"v_mul_f32 v{4+i}, {fhex(1.0/512)}, v{4+i}")
    for i in range(NR):
        for j in range(8):
            g(f"v_sub_f32 v{64+j}, v{X+8*i+j}, v{4+i}")
        g(f"v_mul_f32 v{8+i}, v64, v64")
        g(f"v_mul_f32 v{12+i}, v65, v65")
        for j in range(2, 8):
            g(f"v_fma_f32 v{8+i+4*(j&1)}, v{64+j}, v{64+j}, v{8+i+4*(j&1)}")
        g(f"v_add_f32 v{8+i}, v{8+i}, v{12+i}")
    g("s_nop 1")
    reduce(8)
    for i in range(NR):
        g(f"v_readlane_b32 s{32+i}, v{8+i}, 63")
    g("s_nop 1")
    for i in range(NR):
        g(f"v_mov_b32 v{8+i}, s{32+i}")
    for i in range(NR):
        g(f"v_mul_f32 v{8+i}, {fhex(1.0/512)}, v{8+i}")
    for i in range(NR):
        g(f"v_cvt_pk_bf16_f32 v{12+i}, v{4+i}, v{8+i}")
    for i in range(NR):
        g(f"v_lshlrev_b32 v{4+i}, 16, v{12+i}")
        g(f"v_and_b32 v{8+i}, 0xffff0000, v{12+i}")
    for i in range(NR):
        g(f"v_add_f32 v{8+i}, {fhex(1e-5)}, v{8+i}")
    for i in range(NR):
        g(f"v_cvt_pk_bf16_f32 v{8+i}, v{8+i}, v{8+i}")
    for i in range(NR):
        g(f"v_lshlrev_b32 v{8+i}, 16, v{8+i}")
    for i in range(NR):
        g(f"v_sqrt_f32 v{8+i}, v{8+i}")
    g("s_nop 0")
    for i in range(NR):
        g(f"v_cvt_pk_bf16_f32 v{8+i}, v{8+i}, v{8+i}")
    for i in range(NR):
        g(f"v_lshlrev_b32 v{8+i}, 16, v{8+i}")
    for i in range(NR):
        g(f"v_rcp_f32 v{12+i}, v{8+i}")
    g("s_nop 0")
    for i in range(NR):
        g(f"v_fma_f32 v{64+i}, -v{8+i}, v{12+i}, 1.0")
    for i in range(NR):
        g(f"v_fma_f32 v{17+2*i}, v{64+i}, v{12+i}, v{12+i}")
    for i in range(NR):
        g(f"v_mul_f32 v{16+2*i}, v{4+i}, v{17+2*i}")
    g(f"""
    s_lshl_b32 s42, s6, 3
    v_mov_b32 v24, s42
    s_add_u32 s44, s22, {WS_ST}
    s_addc_u32 s45, s23, 0
    v_cmp_eq_u32 vcc, 0, v1
    s_and_saveexec_b64 s[46:47], vcc
    global_store_dwordx4 v24, v[16:19], s[44:45] sc1
    s_mov_b64 exec, s[46:47]
    s_mul_i32 s36, s3, {NR*LNP}
    s_add_u32 s36, s36, {L_T}
    v_add_u32 v2, s36, v3
    """)
    for i in range(NR):
        b = X+8*i
        for j in range(8):
            g(f"v_sub_f32 v{b+j}, v{b+j}, v{4+i}")
        for j in range(4):
            g(f"v_cvt_pk_bf16_f32 v{64+j}, v{b+2*j}, v{b+2*j+1}")
        for j in range(4):
            g(f"v_lshlrev_b32 v{b+2*j}, 16, v{64+j}")
            g(f"v_and_b32 v{b+2*j+1}, 0xffff0000, v{64+j}")
        for j in range(8):
            g(f"v_mul_f32 v{64+j}, v{b+j}, v{12+i}")
        for j in range(8):
            g(f"v_fma_f32 v{b+j}, -v{64+j}, v{8+i}, v{b+j}")
        for j in range(8):
            g(f"v_fma_f32 v{64+j}, v{b+j}, v{12+i}, v{64+j}")
        for j in range(4):
            g(f"v_cvt_pk_bf16_f32 v{72+j}, v{64+2*j}, v{64+2*j+1}")
        for j in range(4):
            g(f"v_lshlrev_b32 v{64+2*j}, 16, v{72+j}")
            g(f"v_and_b32 v{64+2*j+1}, 0xffff0000, v{72+j}")
        o = 76 + 4*(i & 1)
        for j in range(4):
            g(f"v_cvt_pk_f16_f32 v{o+j}, v{64+2*j}, v{64+2*j+1}")
        g(f"ds_write_b128 v2, v[{o}:{o+3}] offset:{i*LNP}")
    g("s_waitcnt lgkmcnt(0)\ns_barrier")
    g(f"""
    v_and_b32 v4, 15, v1
    v_lshrrev_b32 v5, 4, v1
    v_and_b32 v6, 1, v5
    v_lshrrev_b32 v5, 1, v5
    v_lshlrev_b32 v7, 3, v6
    v_lshrrev_b32 v8, 2, v4
    v_add_u32 v7, v7, v8
    v_mul_u32_u24 v7, {LNP}, v7
    v_and_b32 v8, 3, v4
    v_lshlrev_b32 v8, 3, v8
    v_add_u32 v7, v7, v8
    v_lshlrev_b32 v8, 5, v5
    v_add_u32 v7, v7, v8
    s_lshl_b32 s36, s3, 7
    s_add_u32 s36, s36, {L_T}
    v_add_u32 v7, s36, v7
    ds_read_b64_tr_b16 v[16:17], v7
    ds_read_b64_tr_b16 v[18:19], v7 offset:{4*LNP}
    ds_read_b64_tr_b16 v[20:21], v7 offset:64
    ds_read_b64_tr_b16 v[22:23], v7 offset:{4*LNP+64}
    v_lshlrev_b32 v8, 4, v5
    v_add_u32 v8, v8, v4
    v_lshlrev_b32 v8, 5, v8
    v_lshlrev_b32 v9, 4, v6
    v_add_u32 v8, v8, v9
    s_lshl_b32 s36, s2, 14
    s_lshl_b32 s37, s3, 11
    s_add_u32 s36, s36, s37
    s_waitcnt lgkmcnt(0)
    buffer_store_dwordx4 v[16:19], v8, s[16:19], s36 offen sc1
    buffer_store_dwordx4 v[20:23], v8, s[16:19], s36 offen offset:1024 sc1
    """)
    g(f"""
    s_and_b32 s55, s2, 63
    s_lshl_b32 s55, s55, 2
    s_lshr_b32 s37, s2, 6
    s_mul_i32 s37, s37, {29*4096}
    s_add_u32 s55, s55, s37
    s_add_u32 s55, s55, {WS_FL}
    v_mov_b32 v4, 0
    global_load_dword v117, v4, s[20:21] sc1
    """)

def gen_w2f(g):
    g(f"""
    s_load_dwordx2 s[6:7], s[0:1], 96
    v_and_b32 v4, 15, v1
    v_lshrrev_b32 v5, 4, v1
    s_sub_u32 s38, s2, {KA_NL}
    s_lshr_b32 s24, s38, 2
    s_and_b32 s25, s38, 3
    v_lshlrev_b32 v8, 4, v1
    s_lshl_b32 s28, s25, 3
    s_add_u32 s28, s28, s3
    s_mul_i32 s28, s28, 56
    s_lshl_b32 s29, s24, 1
    s_add_u32 s28, s28, s29
    s_lshl_b32 s28, s28, 10
    v_lshrrev_b32 v3, 4, v0
    v_and_b32 v6, 15, v0
    v_lshlrev_b32 v7, 10, v3
    v_lshlrev_b32 v6, 4, v6
    v_add_u32 v7, v7, v6
    s_lshl_b32 s30, s24, 16
    s_lshl_b32 s31, s25, 8
    s_add_u32 s30, s30, s31
    s_add_u32 s31, s30, 32768
    s_waitcnt lgkmcnt(0)
    """)
    g.srd(8, 6, 512*1792*2)
    g.srd(12, 22, 512*1792*2, WS_W2F)
    g(f"""
    buffer_load_dwordx4 v[12:15], v7, s[8:11], s30 offen
    buffer_load_dwordx4 v[16:19], v7, s[8:11], s31 offen
    v_mul_u32_u24 v10, {TRP}, v3
    v_add_u32 v10, v10, v6
    v_add_u32 v10, {L_T}, v10
    v_lshlrev_b32 v6, 3, v5
    v_lshrrev_b32 v7, 2, v4
    v_add_u32 v6, v6, v7
    v_mul_u32_u24 v6, {TRP}, v6
    v_and_b32 v7, 3, v4
    v_lshlrev_b32 v7, 3, v7
    v_add_u32 v6, v6, v7
    s_lshl_b32 s36, s3, 5
    s_add_u32 s36, s36, {L_T}
    v_add_u32 v6, s36, v6
    s_waitcnt vmcnt(0)
    ds_write_b128 v10, v[12:15]
    ds_write_b128 v10, v[16:19] offset:{32*TRP}
    s_waitcnt lgkmcnt(0)
    s_barrier
    ds_read_b64_tr_b16 v[20:21], v6
    ds_read_b64_tr_b16 v[22:23], v6 offset:{4*TRP}
    ds_read_b64_tr_b16 v[24:25], v6 offset:{32*TRP}
    ds_read_b64_tr_b16 v[26:27], v6 offset:{36*TRP}
    s_waitcnt lgkmcnt(0)
    buffer_store_dwordx4 v[20:23], v8, s[12:15], s28 offen sc1
    buffer_store_dwordx4 v[24:27], v8, s[12:15], s28 offen offset:1024 sc1
    s_add_u32 s55, s25, 1
    s_lshl_b32 s55, s55, 12
    s_lshl_b32 s37, s24, 2
    s_add_u32 s55, s55, s37
    s_add_u32 s55, s55, {WS_FL}
    v_mov_b32 v4, 0
    global_load_dword v117, v4, s[20:21] sc1
    """)

def gen_cs(g):
    g(f"""
    s_load_dwordx4 s[4:7], s[0:1], 80
    s_sub_u32 s38, s2, {KA_NL+KA_NW}
    v_lshrrev_b32 v7, 4, v0
    v_and_b32 v8, 15, v0
    v_mul_u32_u24 v9, {16*3584}, v7
    v_lshlrev_b32 v8, 4, v8
    v_add_u32 v9, v9, v8
    s_lshl_b32 s40, s38, 8
    v_and_b32 v10, 127, v0
    v_lshlrev_b32 v10, 1, v10
    v_add_u32 v10, s40, v10
    s_waitcnt lgkmcnt(0)
    """)
    g.srd(8, 4, 512*3584)
    g("global_load_ushort v11, v10, s[6:7]")
    for r in range(16):
        g(f"s_add_u32 s41, s40, {r*3584}")
        g(f"buffer_load_dwordx4 v[{16+4*r}:{19+4*r}], v9, s[8:11], s41 offen")
    g("s_waitcnt vmcnt(0)")
    for j in range(4):
        g(f"v_lshlrev_b32 v{80+2*j}, 16, v{16+j}")
        g(f"v_and_b32 v{80+2*j+1}, 0xffff0000, v{16+j}")
    for r in range(1, 16):
        for j in range(4):
            g(f"v_lshlrev_b32 v12, 16, v{16+4*r+j}")
            g(f"v_and_b32 v13, 0xffff0000, v{16+4*r+j}")
            g(f"v_add_f32 v{80+2*j}, v{80+2*j}, v12")
            g(f"v_add_f32 v{80+2*j+1}, v{80+2*j+1}, v13")
    g(f"""
    v_lshlrev_b32 v12, 9, v7
    v_lshlrev_b32 v13, 1, v8
    v_add_u32 v12, v12, v13
    v_add_u32 v12, {L_T}, v12
    ds_write_b128 v12, v[80:83]
    ds_write_b128 v12, v[84:87] offset:16
    v_and_b32 v13, 127, v0
    v_lshlrev_b32 v13, 2, v13
    v_add_u32 v14, {L_T}, v13
    s_waitcnt lgkmcnt(0)
    s_barrier
    s_cmp_ge_u32 s3, 2
    s_cbranch_scc1 CS_DONE
    """)
    for r in range(32):
        g(f"ds_read_b32 v{16+r}, v14 offset:{512*r}")
    g("s_waitcnt lgkmcnt(0)")
    for st in [16, 8, 4, 2, 1]:
        for r in range(st):
            g(f"v_add_f32 v{16+r}, v{16+r}, v{16+st+r}")
    g(f"""
    s_add_u32 s44, s22, {WS_CS}
    s_addc_u32 s45, s23, 0
    s_lshl_b32 s41, s38, 9
    v_add_u32 v13, s41, v13
    v_add_u32 v14, {1792*4}, v13
    v_lshlrev_b32 v11, 16, v11
    global_store_dword v13, v16, s[44:45] sc1
    global_store_dword v14, v11, s[44:45] sc1
    """)
    g.label("CS_DONE")
    g(f"""
    s_lshl_b32 s55, s38, 2
    s_add_u32 s55, s55, {WS_FL+30*4096}
    v_mov_b32 v4, 0
    global_load_dword v117, v4, s[20:21] sc1
    """)

L_SC = 2*TCH
L_P = L_SC + 64
L_T = L_P + 3072
L_R = L_T + 16384
def gen_kgen_setup(g):
    g(f"""
    s_lshr_b32 s31, s3, 2
    s_and_b32 s30, s3, 3
    s_mov_b32 s40, 0
    s_mov_b32 s41, {fhex(16.0)}
    s_mov_b32 s42, 0
    s_mov_b32 s43, {fhex(1.0)}
    s_cmp_eq_u32 s30, 1
    s_cselect_b32 s40, {fhex(256.0)}, s40
    s_cselect_b32 s42, {fhex(8.0)}, s42
    s_cmp_eq_u32 s30, 2
    s_cselect_b32 s40, {fhex(512.0)}, s40
    s_cmp_eq_u32 s30, 3
    s_cselect_b32 s40, {fhex(1536.0)}, s40
    s_cselect_b32 s42, {fhex(32.0)}, s42
    s_cmp_ge_u32 s30, 2
    s_cselect_b32 s41, {fhex(64.0)}, s41
    s_cselect_b32 s43, {fhex(4.0)}, s43
    s_mul_i32 s32, s31, {TCH}
    s_mul_i32 s28, s30, {16*TP}
    s_add_u32 s28, s28, s32
    s_mul_i32 s29, s30, {8*TP}
    s_add_u32 s29, s29, {64*TP}
    s_add_u32 s29, s29, s32
    v_lshlrev_b32 v6, 2, v1
    v_add_u32 v7, s29, v6
    v_add_u32 v6, s28, v6
    v_and_b32 v8, 15, v1
    v_lshrrev_b32 v9, 4, v1
    v_mul_u32_u24 v8, {TP}, v8
    v_lshlrev_b32 v9, 4, v9
    v_add_u32 v8, v8, v9
    s_lshr_b32 s33, s30, 1
    s_mul_i32 s33, s33, {16*TP}
    s_add_u32 s33, s33, {64*TP}
    s_add_u32 s33, s33, s32
    v_add_u32 v9, s33, v8
    v_add_u32 v8, s28, v8
    v_and_b32 v10, 15, v1
    v_lshrrev_b32 v11, 4, v1
    v_lshlrev_b32 v11, 8, v11
    v_lshlrev_b32 v10, 2, v10
    v_add_u32 v10, v10, v11
    s_lshl_b32 s28, s30, 10
    s_lshl_b32 s29, s31, 12
    s_add_u32 s28, s28, s29
    s_add_u32 s28, s28, {L_T}
    v_add_u32 v10, s28, v10
    v_lshlrev_b32 v11, 2, v0
    v_sub_u32 v11, 2047, v11
    """)
    for j in range(4):
        g(f"""
        v_subrev_u32 v{16+j}, {j}, v11
        v_cvt_f32_u32 v{16+j}, v{16+j}
        v_cvt_pk_bf16_f32 v{16+j}, v{16+j}, v{16+j}
        v_lshlrev_b32 v{16+j}, 16, v{16+j}
        v_cvt_u32_f32 v{16+j}, v{16+j}
        v_subrev_u32 v12, 512, v{16+j}
        v_lshrrev_b32 v12, 2, v12
        v_add_u32 v12, 512, v12
        v_cmp_gt_u32 vcc, 512, v{16+j}
        s_nop 1
        v_cndmask_b32 v{16+j}, v12, v{16+j}, vcc
        v_lshlrev_b32 v{16+j}, 2, v{16+j}
        v_add_u32 v{16+j}, {L_T}, v{16+j}
        """)

def gen_kgen(g, dd):
    b = 52 + 8*dd
    def direct(sl, vare, vaim, vr, vi, t0, t1):
        g(f"""
        v_mul_f32 v{t0}, s{sl}, v{vare}
        v_mul_f32 v{t1}, s{sl}, v{vaim}
        v_exp_f32 v{t0}, v{t0}
        v_fract_f32 v{t1}, v{t1}
        v_cos_f32 v{vr}, v{t1}
        v_sin_f32 v{vi}, v{t1}
        s_nop 0
        v_mul_f32 v{vr}, v{t0}, v{vr}
        v_mul_f32 v{vi}, v{t0}, v{vi}
        """)
    def cmul(dr, di, ar, ai, br, bi):
        g(f"""
        v_mul_f32 v{dr}, v{ar}, v{br}
        v_mul_f32 v{di}, v{ar}, v{bi}
        v_fma_f32 v{dr}, -v{ai}, v{bi}, v{dr}
        v_fma_f32 v{di}, v{ai}, v{br}, v{di}
        """)
    def emit(zr, zi, vaddr, row, t):
        g(f"""
        v_cvt_pk_f16_f32 v{t}, v{zr}, v{zi}
        ds_write_b32 v{vaddr}, v{t} offset:{row*TP}
        """)
    g(f"""
    v_lshlrev_b32 v5, 16, v{b+6}
    v_mul_f32 v5, {fhex(LOG2E)}, v5
    v_exp_f32 v5, v5
    s_nop 0
    v_cvt_pk_bf16_f32 v5, v5, v5
    v_lshlrev_b32 v5, 16, v5
    """)
    for i in range(6):
        g(f"v_lshlrev_b32 v{b+i}, 16, v{b+i}")
    g(f"""
    v_mul_f32 v24, v5, v{b}
    v_mul_f32 v25, v5, v{b+1}
    v_mul_f32 v24, {fhex(LOG2E)}, v24
    v_mul_f32 v25, {fhex(INV2PI)}, v25
    v_sub_f32 v26, 0, v25
    v_mul_f32 v27, v5, v{b+2}
    v_mul_f32 v28, v5, v{b+3}
    """)
    cmul(29, 30, b+4, b+5, 27, 28)
    g(f"""
    v_max_f32 v31, abs(v29), abs(v30)
    v_max_f32 v31, {fhex(1e-30)}, v31
    """)
    direct(40, 24, 26, 32, 33, 40, 41)
    g(f"v_max_f32_dpp v31, v31, v31 {DPP[0]}")
    direct(41, 24, 26, 34, 35, 40, 41)
    g(f"v_max_f32_dpp v31, v31, v31 {DPP[1]}")
    direct(42, 24, 25, 44, 45, 40, 41)
    g(f"v_max_f32_dpp v31, v31, v31 {DPP[2]}")
    direct(43, 24, 25, 46, 47, 40, 41)
    for mod in DPP[3:]:
        g(f"v_max_f32_dpp v31, v31, v31 {mod}\ns_nop 1")
    g(f"""
    v_readlane_b32 s34, v31, 63
    s_nop 3
    v_mov_b32 v31, s34
    v_rcp_f32 v40, v31
    s_lshl_b32 s34, s31, 2
    s_add_u32 s34, s34, {L_SC + 8*dd}
    v_mov_b32 v41, s34
    ds_write_b32 v41, v31
    v_mul_f32 v29, v29, v40
    v_mul_f32 v30, v30, v40
    v_sub_f32 v30, 0, v30
    v_mov_b32 v68, 0
    v_mov_b32 v69, 0
    v_mov_b32 v70, 0
    v_mov_b32 v71, 0
    """)
    cmul(36, 37, 29, 30, 32, 33)
    if dd == 1:
        g("s_barrier")
    z = (36, 37); zn = (38, 39)
    y = (44, 45); yn = (48, 49)
    for k in range(16):
        emit(z[0], z[1], 6, k, 42 + (k & 1))
        if k < 8:
            emit(y[0], y[1], 7, k, 50 + (k & 1))
        if k < 15:
            cmul(zn[0], zn[1], z[0], z[1], 34, 35)
            z, zn = zn, z
        if k < 7:
            cmul(yn[0], yn[1], y[0], y[1], 46, 47)
            y, yn = yn, y
    g("s_waitcnt lgkmcnt(0)\ns_barrier")
    for gi in range(4):
        g(f"ds_read_b128 v[{72+8*gi}:{75+8*gi}], v8 offset:{64*gi}")
        g(f"ds_read_b128 v[{76+8*gi}:{79+8*gi}], v9 offset:{64*gi}")
    g(f"v_mov_b32 v12, {L_SC+8*dd}\nds_read_b64 v[14:15], v12")
    for gi in range(4):
        g(f"s_waitcnt lgkmcnt({7-2*gi})")
        g(f"v_mfma_f32_16x16x32_f16 v[68:71], v[{72+8*gi}:{75+8*gi}], v[{76+8*gi}:{79+8*gi}], v[68:71]")
    g(f"""
    s_waitcnt lgkmcnt(0)
    v_add_f32 v{104+dd}, v14, v15
    v_rcp_f32 v{106+dd}, v{104+dd}
    s_nop 6
    v_mul_f32 v68, v68, v31
    v_mul_f32 v69, v69, v31
    v_mul_f32 v70, v70, v31
    v_mul_f32 v71, v71, v31
    ds_write_b32 v10, v68 offset:{8192*dd}
    ds_write_b32 v10, v69 offset:{8192*dd+64}
    ds_write_b32 v10, v70 offset:{8192*dd+128}
    ds_write_b32 v10, v71 offset:{8192*dd+192}
    """)

NST = 5
def gen_gemm1(g):
    if os.environ.get('PRIO'): g("s_setprio 2")
    g(f"""
    s_load_dwordx2 s[4:5], s[0:1], 88
    s_load_dwordx2 s[6:7], s[0:1], 0
    s_load_dwordx2 s[36:37], s[0:1], 80
    s_lshr_b32 s25, s2, 3
    s_mul_i32 s26, s25, 37
    s_lshr_b32 s26, s26, 8
    s_mul_i32 s27, s26, 7
    s_sub_u32 s25, s25, s27
    s_and_b32 s24, s2, 6
    s_lshl_b32 s24, s24, 1
    s_add_u32 s24, s24, s26
    s_and_b32 s27, s2, 1
    s_mul_i32 s27, s27, 7
    s_add_u32 s25, s25, s27
    """)
    g(f"""
    v_lshrrev_b32 v3, 4, v1
    v_and_b32 v4, 15, v1
    v_lshlrev_b32 v5, 2, v3
    v_xor_b32 v4, v4, v5
    v_lshlrev_b32 v4, 4, v4
    s_lshl_b32 s26, s3, 2
    v_add_u32 v3, s26, v3
    v_mul_u32_u24 v3, 3584, v3
    v_add_u32 v3, v3, v4
    s_lshl_b32 s26, s25, 8
    """)
    if os.environ.get('E1'): g("s_mov_b32 s26, 0")
    g(f"""
    v_add_u32 v8, s26, v3
    v_lshrrev_b32 v3, 2, v1
    v_and_b32 v4, 3, v1
    v_lshrrev_b32 v5, 2, v3
    v_xor_b32 v4, v4, v5
    v_lshlrev_b32 v4, 4, v4
    s_lshl_b32 s26, s3, 4
    v_add_u32 v3, s26, v3
    v_lshlrev_b32 v3, 10, v3
    v_add_u32 v3, v3, v4
    s_lshl_b32 s26, s24, 17
    """)
    if os.environ.get('E1'): g("s_mov_b32 s26, 0")
    g(f"""
    v_add_u32 v9, s26, v3
    s_lshl_b32 s28, s3, 10
    s_waitcnt lgkmcnt(0)
    """)
    g.srd(8, 36, 512*3584)
    g.srd(12, 6, 2048*1024)
    g.srd(16, 22, 2048*3584, WS_ACT)
    g.stamp(1)
    def issue(k):
        buf = (k % NST) * 16384
        g(f"""
        s_mov_b32 s30, {32*3584*k}
        s_mov_b32 s31, {64*k}
        s_add_u32 m0, s28, {buf}
        s_nop 0
        buffer_load_dwordx4 v8, s[8:11], s30 offen lds
        s_add_u32 m0, s28, {buf + 8192}
        s_nop 0
        buffer_load_dwordx4 v9, s[12:15], s31 offen lds
        """)
    NI = int(os.environ.get('NI', NST))
    for k in range(NI):
        issue(k)
        if k < 2 and os.environ.get('ISB'): g("s_barrier")
    if os.environ.get('IPF'):
        g(f"""
        v_lshrrev_b32 v10, 1, v0
        v_add_u32 v10, 160, v10
        v_mul_u32_u24 v10, 3584, v10
        v_and_b32 v11, 1, v0
        v_lshlrev_b32 v11, 7, v11
        v_add_u32 v10, v10, v11
        s_lshl_b32 s26, s25, 8
        buffer_load_dword v63, v10, s[8:11], s26 offen
        v_lshrrev_b32 v10, 2, v0
        v_lshlrev_b32 v10, 10, v10
        v_and_b32 v11, 3, v0
        v_lshlrev_b32 v11, 7, v11
        v_add_u32 v10, v10, v11
        s_lshl_b32 s26, s24, 17
        s_add_u32 s26, s26, 512
        buffer_load_dword v63, v10, s[12:15], s26 offen
        """)
    g(f"""
    v_lshrrev_b32 v3, 4, v1
    v_and_b32 v4, 15, v1
    v_lshrrev_b32 v5, 2, v4
    v_lshrrev_b32 v6, 1, v3
    v_lshlrev_b32 v6, 3, v6
    v_add_u32 v6, v6, v5
    v_lshlrev_b32 v6, 8, v6
    v_and_b32 v7, 1, v4
    v_lshlrev_b32 v7, 3, v7
    v_add_u32 v6, v6, v7
    v_and_b32 v7, 1, v3
    v_lshlrev_b32 v7, 1, v7
    v_bfe_u32 v10, v4, 1, 1
    v_add_u32 v7, v7, v10
    s_and_b32 s29, s3, 1
    s_lshl_b32 s29, s29, 3
    v_add_u32 v7, s29, v7
    v_lshlrev_b32 v5, 2, v5
    v_xor_b32 v10, v7, v5
    v_lshlrev_b32 v10, 4, v10
    v_add_u32 v16, v6, v10
    v_add_u32 v7, 4, v7
    v_xor_b32 v10, v7, v5
    v_lshlrev_b32 v10, 4, v10
    v_add_u32 v17, v6, v10
    v_and_b32 v3, 31, v1
    v_lshrrev_b32 v4, 5, v1
    v_lshrrev_b32 v5, 2, v3
    v_and_b32 v5, 3, v5
    v_lshlrev_b32 v6, 6, v3
    s_lshr_b32 s30, s3, 1
    s_lshl_b32 s30, s30, 11
    s_add_u32 s30, s30, 8192
    v_add_u32 v6, s30, v6
    v_xor_b32 v7, v4, v5
    v_lshlrev_b32 v7, 4, v7
    v_add_u32 v18, v6, v7
    v_add_u32 v7, 2, v4
    v_xor_b32 v7, v7, v5
    v_lshlrev_b32 v7, 4, v7
    v_add_u32 v19, v6, v7
    """)
    A0 = 64
    for i in range(32):
        g(f"v_mov_b32 v{A0+i}, 0")
    for i in range(4):
        g(f"v_add_u32 v{11+i}, 0x10000, v{16+i}")
    FS = [96, 26]
    PK = int(os.environ.get('PK', 11))
    B2 = [8, 12, 16, 60]
    def rd(k, kk):
        buf = (k % NST) * 16384
        F = FS[k & 1]
        vb = 16
        if buf >= 65536:
            buf -= 65536; vb = 11
        f = F + 12*kk
        for mt in range(2):
            g(f"ds_read_b64_tr_b16 v[{f+4*mt}:{f+4*mt+1}], v{vb+mt} offset:{buf+4096*kk}")
            g(f"ds_read_b64_tr_b16 v[{f+4*mt+2}:{f+4*mt+3}], v{vb+mt} offset:{buf+4096*kk+1024}")
        g(f"ds_read_b128 v[{f+8}:{f+11}], v{vb+2+kk} offset:{buf}")
    g(f"""
    v_mov_b32 v58, 0
    v_mov_b32 v59, 0
    v_mov_b32 v61, 0
    v_mov_b32 v62, 0
    s_mov_b32 s33, 0x3f803f80
    s_lshr_b32 s34, s3, 1
    s_add_u32 s44, s22, {WS_ST}
    s_addc_u32 s45, s23, 0
    s_lshl_b32 s26, s24, 7
    s_lshl_b32 s27, s34, 5
    s_add_u32 s26, s26, s27
    v_add_u32 v22, s26, v3
    v_lshlrev_b32 v22, 3, v22
    s_and_b32 s40, s24, 7
    s_lshl_b32 s40, s40, 5
    s_lshr_b32 s41, s24, 3
    s_mul_i32 s41, s41, {29*4096}
    s_add_u32 s40, s40, s41
    s_add_u32 s40, s40, {WS_FL}
    s_waitcnt vmcnt({2*(NI-1) + (2 if os.environ.get('IPF') else 0)})
    s_barrier
    """)
    for k in range(NI, NST):
        issue(k)
    g.stamp(2)
    rd(0, 0); rd(0, 1)
    for k in range(16):
        F = FS[k & 1]
        def mf(kk, mt):
            f = F + 12*kk
            a = A0 + 16*mt
            g(f"v_mfma_f32_32x32x16_bf16 v[{a}:{a+15}], v[{f+4*mt}:{f+4*mt+3}], v[{f+8}:{f+11}], v[{a}:{a+15}]")
        if k < 15:
            younger = 2*(min(k+NST-1, 15) - (k+1))
            if k > PK+1: younger += 1
            if os.environ.get('IPF') and k + 1 < NST: younger += 2
            g(f"s_waitcnt vmcnt({younger}) lgkmcnt(0)")
            g("s_barrier")
            if k < 3: g.stamp(3+k)
            if k == 8: g.stamp(7)
            if k == 8 and os.environ.get('GPRIO') == '3': g("s_setprio 0")
            mf(0, 0)
            rd(k+1, 0)
            mf(0, 1)
            rd(k+1, 1)
            mf(1, 0)
            if k + NST < 16 and not os.environ.get('E2'):
                issue(k + NST)
            mf(1, 1)
        else:
            g("s_waitcnt lgkmcnt(0)")
            mf(0, 0); mf(0, 1); mf(1, 0); mf(1, 1)
        if k == 7:
            g("s_cmp_lg_u32 s3, 0\ns_cbranch_scc1 G1_NOZL\nv_mov_b32 v23, 0\nglobal_load_dword v61, v23, s[20:21] sc1")
            g.label("G1_NOZL")
        if k == PK:
            g("s_cmp_lg_u32 s3, 0\ns_cbranch_scc1 G1_NOPOLL")
            g(f"""
            s_waitcnt vmcnt(0)
            v_cmp_eq_u32 vcc, 0, v61
            s_nop 3
            s_cmp_eq_u64 vcc, 0
            s_cbranch_scc1 G1_ZOK
            """)
            wait_zero(g, "g1p", 20, 21)
            g.label("G1_ZOK")
            g(f"""
            v_cmp_le_u32 vcc, 28, v1
            s_nop 1
            v_cndmask_b32 v20, 0, 1, vcc
            v_mul_u32_u24 v21, 28, v20
            v_sub_u32 v21, v1, v21
            v_lshlrev_b32 v21, 2, v21
            v_lshlrev_b32 v20, 12, v20
            v_add_u32 v20, v20, v21
            v_add_u32 v21, {WS_FL+3*4096}, v20
            v_add_u32 v20, {WS_FL+4096}, v20
            v_subrev_u32 v23, 56, v1
            v_lshlrev_b32 v23, 2, v23
            v_add_u32 v23, s40, v23
            s_lshl_b32 s41, s25, 2
            s_add_u32 s41, s41, {WS_FL+30*4096}
            v_mov_b32 v24, s41
            v_cmp_le_u32 vcc, 56, v1
            s_nop 1
            v_cndmask_b32 v20, v20, v23, vcc
            v_cndmask_b32 v21, v21, v24, vcc
            v_mov_b32 v23, 0
            s_mov_b32 s41, 0x01010101
            """)
            g.label("POLL_g1c")
            g(f"""
            global_load_dword v25, v20, s[22:23] sc1
            global_load_dword v60, v21, s[22:23] sc1
            s_waitcnt vmcnt(0)
            v_cmp_ne_u32 vcc, s41, v25
            v_cmp_ne_u32 s[42:43], s41, v60
            s_nop 3
            s_or_b64 vcc, vcc, s[42:43]
            s_cmp_eq_u64 vcc, 0
            s_cbranch_scc1 POLLD_g1c
            s_sleep 8
            s_branch POLL_g1c
            """)
            g.label("POLLD_g1c")
            g.label("G1_NOPOLL")
        if k == PK+1:
            g("global_load_dwordx2 v[20:21], v22, s[44:45] sc1")
            g(f"""
            s_cmp_ge_u32 s3, 2
            s_cbranch_scc1 G1_NOCSL
            s_mul_i32 s30, s3, {1792*4}
            s_lshl_b32 s31, s25, 9
            s_add_u32 s30, s30, s31
            s_add_u32 s30, s30, {WS_CS}
            v_and_b32 v23, 31, v1
            v_lshlrev_b32 v23, 4, v23
            v_add_u32 v23, s30, v23
            s_lshl_b32 s31, s3, 10
            s_add_u32 m0, s31, 16384
            s_nop 0
            global_load_lds_dwordx4 v23, s[22:23] sc1
            """)
            g.label("G1_NOCSL")
        if k == 15:
            g(f"""
            s_lshr_b32 s30, s2, 3
            s_mul_i32 s30, s30, {64*1024}
            s_add_u32 s30, s30, {WS_W2F}
            v_lshlrev_b32 v23, 7, v0
            v_add_u32 v23, s30, v23
            global_load_dword v59, v23, s[22:23] sc1
            """)
    g.stamp(6)
    if os.environ.get('GPRIO') == '2': g("s_setprio 0")
    g(f"""
    s_and_b32 s27, s3, 1
    s_lshl_b32 s27, s27, 8
    v_lshlrev_b32 v25, 4, v4
    v_add_u32 v25, s27, v25
    s_waitcnt vmcnt(1)
    s_barrier
    """)
    for mt in range(2):
        for gi in range(4):
            g(f"ds_read_b128 v[{96+16*mt+4*gi}:{99+16*mt+4*gi}], v25 offset:{16384+128*mt+32*gi}")
    for gi in range(4):
        g(f"ds_read_b128 v[{26+4*gi}:{29+4*gi}], v25 offset:{16384+1024+32*gi}")
    for gi in range(4):
        g(f"ds_read_b128 v[{B2[gi]}:{B2[gi]+3}], v25 offset:{16384+1024+128+32*gi}")
    g(f"""
    s_lshl_b32 s26, s24, 3
    s_lshr_b32 s27, s3, 1
    s_lshl_b32 s27, s27, 1
    s_add_u32 s26, s26, s27
    v_lshrrev_b32 v5, 4, v3
    v_add_u32 v5, s26, v5
    v_mul_u32_u24 v5, {56*1024}, v5
    v_and_b32 v6, 15, v3
    v_lshlrev_b32 v6, 4, v6
    v_add_u32 v5, v5, v6
    v_lshlrev_b32 v6, 8, v4
    v_add_u32 v5, v5, v6
    s_lshl_b32 s26, s25, 2
    s_and_b32 s27, s3, 1
    s_lshl_b32 s27, s27, 1
    s_add_u32 s26, s26, s27
    s_lshl_b32 s26, s26, 10
    s_mov_b32 s27, {fhex(LOG2E)}
    s_waitcnt lgkmcnt(0)
    """)
    g.stamp(8)
    T = 42
    for mt in range(2):
        a = A0 + 16*mt
        for half in range(2):
            R = [a + 8*half + i for i in range(8)]
            CSv = [96 + 16*mt + 8*half + i for i in range(8)]
            Bv = [26 + 8*half + i for i in range(8)] if mt == 0 else [B2[2*half + (i>>2)] + (i&3) for i in range(8)]
            for j in range(8):
                g(f"v_fma_f32 v{CSv[j]}, -v20, v{CSv[j]}, v{Bv[j]}")
            for j in range(8):
                g(f"v_fma_f32 v{R[j]}, v{R[j]}, v21, v{CSv[j]}")
            for j in range(4):
                g(f"v_cvt_pk_bf16_f32 v{T+j}, v{R[2*j]}, v{R[2*j+1]}")
            for j in range(4):
                g(f"v_lshlrev_b32 v{R[2*j]}, 16, v{T+j}")
                g(f"v_and_b32 v{R[2*j+1]}, 0xffff0000, v{T+j}")
            for j in range(8):
                g(f"v_mul_f32 v{T+j}, s27, v{R[j]}")
            for j in range(8):
                g(f"v_exp_f32 v{T+j}, v{T+j}")
            for j in range(8):
                g(f"v_add_f32 v{T+8+j}, 2.0, v{T+j}")
            for j in range(8):
                g(f"v_fma_f32 v{T+j}, v{T+j}, v{T+8+j}, 2.0")
            for j in range(8):
                g(f"v_rcp_f32 v{T+j}, v{T+j}")
            for j in range(8):
                g(f"v_fma_f32 v{T+j}, -2.0, v{T+j}, 1.0")
            for j in range(8):
                g(f"v_mul_f32 v{T+j}, v{T+j}, v{R[j]}")
            for j in range(4):
                g(f"v_cvt_pk_bf16_f32 v{R[j]}, v{T+2*j}, v{T+2*j+1}")
            g(f"""
            s_nop 1
            v_permlane32_swap_b32 v{R[0]}, v{R[2]}
            v_permlane32_swap_b32 v{R[1]}, v{R[3]}
            s_nop 0
            buffer_store_dwordx4 v[{R[0]}:{R[3]}], v5, s[16:19], s26 offen offset:{1024*mt+512*half} sc1
            """)
    g.stamp(9)
    if TL: g("s_memtime s[84:85]")
    g.dbmark(7)
    g(f"""
    s_lshl_b32 s60, s24, 1
    s_lshl_b32 s62, s25, 2
    s_mov_b32 s61, 1
    {'s_setprio 0' if os.environ.get('GPRIO') == '1' else ''}
    """)

KB_NG = 256
KB_NC = 256
KB_TOTAL = KB_NG + KB_NC
KB_LDS = 81920
CV_COPY = 8*KR_PITCH
CV_U = 95*80
CV_D = CV_COPY + CV_U

def gen_conv(g):
    g(f"""
    s_lshr_b32 s24, s3, 2
    s_lshl_b32 s25, s2, 1
    s_add_u32 s25, s25, s24
    s_and_b32 s26, s3, 3
    s_mul_i32 s27, s24, {CV_D}
    v_and_b32 v3, 255, v0
    v_and_b32 v5, 31, v1
    v_lshlrev_b32 v5, 4, v5
    s_waitcnt lgkmcnt(0)
    s_mov_b32 s35, s52
    s_mov_b32 s36, s53
    """)
    g.stamp(1)
    g.srd(12, 22, 2048*1024, WS_XT)
    g.srd(16, 22, 2048*1024, WS_AT)
    g(f"""
    v_lshrrev_b32 v116, 1, v3
    v_lshlrev_b32 v116, 14, v116
    v_and_b32 v8, 1, v3
    v_lshlrev_b32 v8, 4, v8
    v_add_u32 v116, v116, v8
    s_lshl_b32 s54, s25, 5
    s_min_u32 s37, s3, 5
    s_lshl_b32 s37, s37, 9
    s_add_u32 s37, s37, {L_P}
    v_add_u32 v56, s37, v5
    """)
    gen_kgen_setup(g)
    g(f"""
    ds_write_b128 v56, v[112:115]
    v_lshlrev_b32 v12, 1, v1
    s_lshl_b32 s28, s31, 7
    s_add_u32 s28, s28, {L_P}
    v_add_u32 v12, s28, v12
    s_waitcnt vmcnt(0) lgkmcnt(0)
    s_barrier
    s_cmp_lg_u32 s3, 7
    s_cbranch_scc1 KG_NOSIG
    s_cmp_eq_u32 s55, 0
    s_cbranch_scc1 KG_NOSIG
    v_cmp_eq_u32 vcc, 0, v117
    s_nop 3
    s_cmp_eq_u64 vcc, 0
    s_cbranch_scc1 KG_ZOK
    """)
    wait_zero(g, "kg", 117, 118)
    g.label("KG_ZOK")
    set_flag(g, 55, 117, 118)
    g.label("KG_NOSIG")
    g(f"s_setprio {os.environ.get('CPRIO','0')}")
    for dd in range(2):
        for i in range(6):
            g(f"ds_read_u16 v{52+8*dd+i}, v12 offset:{512*i+256*dd}")
    g(f"""
    s_and_b32 s28, s35, 0xffff
    s_lshr_b32 s29, s35, 16
    v_mov_b32 v58, s28
    v_mov_b32 v66, s29
    s_waitcnt lgkmcnt(0)
    """)
    g.stamp(2)
    gen_kgen(g, 0)
    gen_kgen(g, 1)
    g("s_cmp_lg_u32 s3, 0\ns_cbranch_scc1 CV_NOPOLL")
    wait_zero(g, "cv", 20, 21)
    g(f"s_mov_b32 s48, {WS_FL}")
    poll_flags(g, "cv", 48, 64, 20, 21, base="s[22:23]", slp=8)
    g(f"s_mov_b32 s48, {WS_FL+29*4096}")
    poll_flags(g, "cv2", 48, 64, 20, 21, base="s[22:23]", slp=8)
    g.label("CV_NOPOLL")
    g("s_waitcnt lgkmcnt(0)\ns_barrier")
    g("buffer_load_dwordx4 v[108:111], v116, s[12:15], s54 offen sc1")
    g.stamp(3)
    for dd in range(2):
        for j in range(4):
            g(f"ds_read_b32 v{20+8*dd+j}, v{16+j} offset:{8192*dd}")
            g(f"ds_read_b32 v{24+8*dd+j}, v{16+j} offset:{8192*dd+4096}")
    g(f"""
    v_lshlrev_b32 v12, 3, v0
    v_add_u32 v12, {L_R}, v12
    v_mov_b32 v40, 0
    v_mov_b32 v41, 0
    v_mov_b32 v42, 0
    v_mov_b32 v43, 0
    v_lshlrev_b32 v4, 4, v3
    s_mul_i32 s28, s24, {KR_PITCH}
    s_add_u32 s28, s28, {L_R}
    v_add_u32 v13, s28, v4
    s_waitcnt lgkmcnt(0)
    """)
    for dd in range(2):
        for j in range(4):
            g(f"v_add_f32 v{20+8*dd+j}, v{20+8*dd+j}, v{24+8*dd+j}")
        for j in range(4):
            g(f"v_mul_f32 v{20+8*dd+j}, v{20+8*dd+j}, v{106+dd}")
        g(f"v_cvt_pk_f16_f32 v{36+2*dd}, v{20+8*dd}, v{21+8*dd}")
        g(f"v_cvt_pk_f16_f32 v{37+2*dd}, v{22+8*dd}, v{23+8*dd}")
        g(f"ds_write_b64 v12, v[{36+2*dd}:{37+2*dd}] offset:{KR_PITCH*dd}")
    g(f"""
    v_cmp_gt_u32 vcc, 8, v0
    s_and_saveexec_b64 s[30:31], vcc
    ds_write_b64 v12, v[40:41] offset:4096
    ds_write_b64 v12, v[40:41] offset:{KR_PITCH+4096}
    s_mov_b64 exec, s[30:31]
    s_waitcnt lgkmcnt(0)
    s_barrier
    ds_read_b128 v[64:67], v13
    ds_read_b128 v[68:71], v13 offset:16
    v_lshrrev_b32 v5, 2, v3
    v_and_b32 v6, 3, v3
    v_lshlrev_b32 v6, 4, v6
    v_mul_u32_u24 v5, {KR_PITCH}, v5
    v_add_u32 v5, v5, v6
    v_add_u32 v5, 4096, v5
    v_add_u32 v5, s27, v5
    v_add_u32 v6, s27, v4
    v_lshrrev_b32 v24, 2, v3
    v_and_b32 v25, 3, v3
    v_mul_u32_u24 v24, 80, v24
    v_lshlrev_b32 v25, 4, v25
    v_add_u32 v24, v24, v25
    v_add_u32 v24, s27, v24
    s_waitcnt lgkmcnt(0)
    s_barrier
    v_cmp_gt_u32 vcc, 155, v3
    s_and_saveexec_b64 s[30:31], vcc
    ds_write_b128 v6, v[40:43] offset:{CV_COPY}
    s_mov_b64 exec, s[30:31]
    v_cmp_gt_u32 vcc, 32, v3
    s_and_saveexec_b64 s[30:31], vcc
    ds_write_b128 v5, v[40:43]
    s_mov_b64 exec, s[30:31]
    ds_write_b128 v6, v[64:67]
    ds_write_b128 v6, v[66:69] offset:{4*KR_PITCH}
    """)
    for j in range(1, 7):
        g(f"v_mov_b32 v{73+j}, v{64+j}")
    for j in range(7):
        g(f"v_alignbit_b32 v{80+j}, v{65+j}, v{64+j}, 16")
    for j in range(1, 7):
        g(f"v_alignbit_b32 v{87+j}, v{65+j}, v{64+j}, 16")
    g(f"""
    ds_write_b128 v6, v[74:77] offset:{2*KR_PITCH}
    ds_write_b128 v6, v[76:79] offset:{6*KR_PITCH}
    ds_write_b128 v6, v[80:83] offset:{1*KR_PITCH}
    ds_write_b128 v6, v[82:85] offset:{5*KR_PITCH}
    ds_write_b128 v6, v[88:91] offset:{3*KR_PITCH}
    ds_write_b128 v6, v[90:93] offset:{7*KR_PITCH}
    s_waitcnt vmcnt(0)
    ds_write_b128 v24, v[108:111] offset:{CV_COPY+31*80}
    s_lshr_b32 s30, s36, 16
    s_and_b32 s31, s36, 0xffff
    s_cmp_eq_u32 s24, 0
    s_cselect_b32 s36, s31, s30
    v_mov_b32 v60, s36
    s_cselect_b64 vcc, -1, 0
    v_cndmask_b32 v61, v105, v104, vcc
    """)
    g(f"""
    v_and_b32 v3, 31, v1
    v_lshrrev_b32 v4, 5, v1
    v_and_b32 v5, 7, v3
    v_sub_u32 v5, 7, v5
    v_mul_u32_u24 v5, {KR_PITCH}, v5
    v_lshrrev_b32 v6, 3, v3
    v_sub_u32 v6, v4, v6
    v_lshlrev_b32 v6, 4, v6
    v_add_u32 v5, v5, v6
    s_lshl_b32 s28, s26, 9
    s_sub_u32 s28, {4080 - 64*39}, s28
    s_add_u32 s28, s28, s27
    v_add_u32 v5, s28, v5
    v_mul_u32_u24 v6, 80, v3
    v_lshlrev_b32 v7, 4, v4
    v_add_u32 v6, v6, v7
    s_mul_i32 s28, s26, {8*80}
    s_sub_u32 s28, {CV_COPY + 24*80}, s28
    s_add_u32 s28, s28, s27
    v_add_u32 v6, s28, v6
    """)
    for i in range(32):
        g(f"v_mov_b32 v{24+i}, 0")
    g("s_waitcnt lgkmcnt(0)\ns_barrier")
    g.stamp(4)
    AC = 24
    def rd(step):
        dl, kk = step >> 1, step & 1
        ao = (7-dl)*64 + 32*kk
        bo = (7-dl)*80 + 32*kk
        f = 64 + 16*(step % 3)
        g(f"ds_read_b128 v[{f}:{f+3}], v5 offset:{ao+2048}")
        g(f"ds_read_b128 v[{f+4}:{f+7}], v5 offset:{ao}")
        g(f"ds_read_b128 v[{f+8}:{f+11}], v6 offset:{bo}")
        g(f"ds_read_b128 v[{f+12}:{f+15}], v6 offset:{bo+2560}")
    rd(0); rd(1)
    for step in range(16):
        if step + 2 < 16:
            rd(step+2)
            g("s_waitcnt lgkmcnt(8)")
        elif step + 1 < 16:
            g("s_waitcnt lgkmcnt(4)")
        else:
            g("s_waitcnt lgkmcnt(0)")
        f = 64 + 16*(step % 3)
        g(f"v_mfma_f32_32x32x16_f16 v[{AC}:{AC+15}], v[{f}:{f+3}], v[{f+8}:{f+11}], v[{AC}:{AC+15}]")
        g(f"v_mfma_f32_32x32x16_f16 v[{AC+16}:{AC+31}], v[{f}:{f+3}], v[{f+12}:{f+15}], v[{AC+16}:{AC+31}]")
        g(f"v_mfma_f32_32x32x16_f16 v[{AC+16}:{AC+31}], v[{f+4}:{f+7}], v[{f+8}:{f+11}], v[{AC+16}:{AC+31}]")
    g.stamp(5)
    g(f"""
    s_barrier
    v_lshlrev_b32 v7, 4, v1
    s_lshl_b32 s28, s26, 13
    s_add_u32 s28, s28, s27
    v_add_u32 v8, s28, v7
    v_lshrrev_b32 v11, 2, v1
    v_and_b32 v17, 3, v1
    s_and_b32 s29, s26, 1
    s_lshl_b32 s29, s29, 4
    v_add_u32 v11, s29, v11
    v_lshlrev_b32 v9, 10, v17
    v_lshlrev_b32 v10, 4, v11
    v_add_u32 v9, v9, v10
    s_lshr_b32 s28, s26, 1
    s_lshl_b32 s29, s28, 12
    s_add_u32 s29, s29, s27
    v_add_u32 v9, s29, v9
    v_mul_u32_u24 v10, 80, v11
    v_lshlrev_b32 v17, 4, v17
    v_add_u32 v10, v10, v17
    s_mul_i32 s28, s28, 2560
    s_add_u32 s28, s28, {CV_COPY + 31*80}
    s_add_u32 s28, s28, s27
    v_add_u32 v10, s28, v10
    s_nop 4
    """)
    for i in range(8):
        g(f"ds_write_b128 v8, v[{AC+4*i}:{AC+4*i+3}] offset:{1024*i}")
    g("ds_read_b128 v[12:15], v10")
    g.stamp(7)
    g("s_waitcnt lgkmcnt(0)\ns_barrier")
    g.stamp(8)
    for w in range(4):
        g(f"ds_read_b128 v[{64+8*w}:{67+8*w}], v9 offset:{8192*w}")
        g(f"ds_read_b128 v[{68+8*w}:{71+8*w}], v9 offset:{8192*w+512}")
    g(f"""
    v_lshlrev_b32 v60, 16, v60
    v_lshlrev_b32 v16, 4, v1
    s_lshl_b32 s28, s26, 10
    s_lshl_b32 s29, s25, 12
    s_add_u32 s28, s28, s29
    v_cvt_f32_f16 v24, v12
    v_cvt_f32_f16_sdwa v25, v12 dst_sel:DWORD dst_unused:UNUSED_PAD src0_sel:WORD_1
    v_cvt_f32_f16 v26, v13
    v_cvt_f32_f16_sdwa v27, v13 dst_sel:DWORD dst_unused:UNUSED_PAD src0_sel:WORD_1
    v_cvt_f32_f16 v28, v14
    v_cvt_f32_f16_sdwa v29, v14 dst_sel:DWORD dst_unused:UNUSED_PAD src0_sel:WORD_1
    v_cvt_f32_f16 v30, v15
    v_cvt_f32_f16_sdwa v31, v15 dst_sel:DWORD dst_unused:UNUSED_PAD src0_sel:WORD_1
    """)
    for i in range(8):
        g(f"v_mul_f32 v{24+i}, v{24+i}, v60")
    for j in range(4):
        g(f"v_cvt_pk_bf16_f32 v{32+j}, v{24+2*j}, v{24+2*j+1}")
    for j in range(4):
        g(f"v_lshlrev_b32 v{24+2*j}, 16, v{32+j}")
        g(f"v_and_b32 v{24+2*j+1}, 0xffff0000, v{32+j}")
    g("s_waitcnt lgkmcnt(0)")
    for i in range(8):
        g(f"v_add_f32 v{64+i}, v{64+i}, v{72+i}")
        g(f"v_add_f32 v{80+i}, v{80+i}, v{88+i}")
    for i in range(8):
        g(f"v_add_f32 v{64+i}, v{64+i}, v{80+i}")
    for i in range(8):
        g(f"v_mul_f32 v{64+i}, v{64+i}, v61")
    for j in range(4):
        g(f"v_cvt_pk_bf16_f32 v{32+j}, v{64+2*j}, v{64+2*j+1}")
    for j in range(4):
        g(f"v_lshlrev_b32 v{64+2*j}, 16, v{32+j}")
        g(f"v_and_b32 v{64+2*j+1}, 0xffff0000, v{32+j}")
    for i in range(8):
        g(f"v_add_f32 v{64+i}, v{64+i}, v{24+i}")
    for j in range(4):
        g(f"v_cvt_pk_bf16_f32 v{32+j}, v{64+2*j}, v{64+2*j+1}")
    g(f"""
    buffer_store_dwordx4 v[32:35], v16, s[16:19], s28 offen sc1
    """)
    g.stamp(9)
    g(f"""
    s_waitcnt vmcnt(0)
    """)
    g.stamp(10)
    g(f"""
    s_barrier
    s_cmp_lg_u32 s3, 0
    s_cbranch_scc1 CV_NOSIG
    s_lshr_b32 s28, s2, 5
    s_and_b32 s29, s2, 31
    s_lshl_b32 s29, s29, 2
    s_add_u32 s29, s29, 64
    v_mov_b32 v13, s28
    """)
    cons_addr(g, 1, 13, 12, 14)
    g(f"""
    v_add_u32 v12, s29, v12
    v_mov_b32 v13, 0x01010101
    v_cmp_gt_u32 vcc, 32, v1
    s_and_saveexec_b64 s[30:31], vcc
    global_store_dword v12, v13, s[22:23] sc1
    s_mov_b64 exec, s[30:31]
    """)
    g.label("CV_NOSIG")
    g.stamp(6)
    g.stamp_end(11, "cv")
    g("s_endpgm")

def gen_gemm2(g):
    g(f"""
    s_and_b32 s25, s2, 7
    s_lshl_b32 s25, s25, 2
    s_lshr_b32 s24, s2, 3
    s_lshr_b32 s26, s24, 3
    s_add_u32 s25, s25, s26
    s_and_b32 s24, s24, 7
    s_mul_i32 s36, s3, {7*1024}
    v_lshlrev_b32 v5, 4, v1
    v_add_u32 v8, s36, v5
    v_add_u32 v9, 4096, v8
    s_mul_i32 s40, s24, {4*56*1024}
    s_add_u32 s41, s40, {56*1024}
    s_add_u32 s42, s40, {2*56*1024}
    s_add_u32 s43, s40, {3*56*1024}
    s_mul_i32 s44, s25, {4*56*1024}
    s_add_u32 s45, s44, {56*1024}
    s_add_u32 s46, s44, {2*56*1024}
    s_add_u32 s47, s44, {3*56*1024}
    """)
    g.srd(8, 22, 512*3584, WS_W2F)
    g.srd(12, 22, 2048*3584, WS_ACT)
    g.srd(16, 22, 2048*1024, WS_AT)
    g.srd(28, 56, 2048*1024)
    g.srd(32, 58, 2048*1024)
    AC = 16
    AR = [80, 96]
    BR = 112
    def ldA(st):
        fb = AR[st & 1]; va = 8 + (st >> 2)
        for i in range(4):
            g(f"buffer_load_dwordx4 v[{fb+4*i}:{fb+4*i+3}], v{va}, s[8:11], s{40+i} offen offset:{1024*(st&3)} sc1")
    def ldB(st, j):
        va = 8 + (st >> 2)
        g(f"buffer_load_dwordx4 v[{BR+4*j}:{BR+4*j+3}], v{va}, s[12:15], s{44+j} offen offset:{1024*(st&3)} sc1")
    ldA(0)
    ldA(1)
    g(f"""
    v_and_b32 v3, 15, v1
    v_lshrrev_b32 v4, 4, v1
    s_lshl_b32 s37, s25, 6
    s_lshr_b32 s38, s3, 1
    s_lshl_b32 s38, s38, 4
    s_add_u32 s37, s37, s38
    v_add_u32 v6, s37, v3
    v_lshlrev_b32 v7, 10, v6
    v_lshlrev_b32 v14, 3, v4
    v_add_u32 v7, v7, v14
    s_lshl_b32 s38, s24, 7
    s_and_b32 s39, s3, 1
    s_lshl_b32 s48, s39, 6
    s_add_u32 s38, s38, s48
    v_add_u32 v7, s38, v7
    buffer_load_dwordx2 v[10:11], v7, s[28:31], 0 offen
    buffer_load_dwordx2 v[12:13], v7, s[28:31], 0 offen offset:32
    s_cmp_eq_u32 s61, 0
    s_cbranch_scc1 G2_NOSIG
    s_waitcnt vmcnt(10)
    """)
    g.stamp(1)
    g(f"""
    s_barrier
    """)
    g.stamp(2)
    g(f"""
    s_cmp_lg_u32 s3, 0
    s_cbranch_scc1 G2_NOSIG
    """)
    g(f"""
    v_lshrrev_b32 v16, 3, v1
    v_add_u32 v16, s60, v16
    v_and_b32 v17, 7, v1
    """)
    cons_addr(g, 16, 17, 18, 19)
    g(f"""
    v_add_u32 v18, s62, v18
    v_mov_b32 v19, 0x01010101
    v_cmp_gt_u32 vcc, 16, v1
    s_and_saveexec_b64 s[50:51], vcc
    global_store_dword v18, v19, s[22:23] sc1
    s_mov_b64 exec, s[50:51]
    """)
    g.label("G2_NOSIG")
    for i in range(64):
        g(f"v_mov_b32 v{AC+i}, 0")
    g(f"""
    s_mul_i32 s37, s3, 224
    s_lshr_b32 s38, s37, 7
    s_add_u32 s37, s37, 223
    s_lshr_b32 s37, s37, 7
    s_lshl_b32 s48, s2, 8
    s_add_u32 s48, s48, {WS_F2}
    v_add_u32 v15, s38, v1
    v_min_u32 v15, s37, v15
    v_lshlrev_b32 v15, 2, v15
    v_add_u32 v15, s48, v15
    s_mov_b32 s49, 0x01010101
    """)
    g.label("POLL_g2a")
    g(f"""
    global_load_dword v2, v15, s[22:23] sc1
    s_waitcnt vmcnt(0)
    v_cmp_ne_u32 vcc, s49, v2
    s_nop 3
    s_cmp_eq_u64 vcc, 0
    s_cbranch_scc1 POLLD_g2a
    s_sleep 8
    s_branch POLL_g2a
    """)
    g.label("POLLD_g2a")
    g.stamp(10)
    for j in range(4): ldB(0, j)
    order = ['A0']*1
    seq = [('A',0)]*4 + [('A',1)]*4 + [('B',0,j) for j in range(4)]
    for st in range(7):
        for j in range(4):
            last = max(i for i, e in enumerate(seq) if (e[0]=='A' and e[1]==st) or (e[0]=='B' and e[1]==st and e[2]==j))
            g(f"s_waitcnt vmcnt({len(seq)-1-last})")
            fa = AR[st & 1]
            for i in range(4):
                a = AC + 4*(4*i+j)
                g(f"v_mfma_f32_16x16x32_bf16 v[{a}:{a+3}], v[{fa+4*i}:{fa+4*i+3}], v[{BR+4*j}:{BR+4*j+3}], v[{a}:{a+3}]")
            if st + 1 < 7:
                ldB(st+1, j); seq.append(('B', st+1, j))
        if st + 2 < 7:
            ldA(st+2); seq += [('A', st+2)]*4
    g.stamp(11)
    g(f"""
    v_lshlrev_b32 v14, 14, v4
    v_lshlrev_b32 v6, 1, v6
    v_add_u32 v14, v14, v6
    s_and_b32 s39, s3, 1
    s_lshl_b32 s38, s24, 18
    s_lshl_b32 s48, s39, 17
    s_add_u32 s38, s38, s48
    v_add_u32 v14, s38, v14
    v_add_u32 v112, 4096, v14
    v_add_u32 v113, 8192, v14
    v_add_u32 v114, 12288, v14
    v_mov_b32 v115, v7
    s_and_b32 s36, s3, 3
    s_lshl_b32 s36, s36, 14
    v_add_u32 v6, s36, v5
    s_lshl_b32 s48, s2, 8
    s_add_u32 s48, s48, {WS_F2+64}
    s_cmp_lt_u32 s3, 4
    s_cbranch_scc1 G2_LOW1
    """)
    for t in range(16):
        g(f"ds_write_b128 v6, v[{AC+4*t}:{AC+4*t+3}] offset:{t*1024}")
    g("s_branch G2_J1")
    g.label("G2_LOW1")
    g("s_cmp_lg_u32 s3, 0\ns_cbranch_scc1 G2_J1")
    poll_flags(g, "g2", 48, 32, 2, 15, base="s[22:23]", slp=4)
    g.label("G2_J1")
    g("s_waitcnt lgkmcnt(0)\ns_barrier")
    g.stamp(3)
    g("s_mov_b32 s39, 65536")
    for i in range(2):
        for r in range(4):
            va = [14, 112, 113, 114][r]
            g(f"buffer_load_ushort v{116+4*i+r}, v{va}, s[16:19], {'0' if i == 0 else 's39'} offen sc1")
    g("s_cmp_ge_u32 s3, 4\ns_cbranch_scc1 G2_J2")
    for h in range(2):
        for t in range(8):
            g(f"ds_read_b128 v[{80+4*t}:{83+4*t}], v6 offset:{(8*h+t)*1024}")
        g("s_waitcnt lgkmcnt(0)")
        for t in range(8):
            for r in range(4):
                g(f"v_add_f32 v{AC+32*h+4*t+r}, v{AC+32*h+4*t+r}, v{80+4*t+r}")
    for t in range(16):
        g(f"ds_write_b128 v6, v[{AC+4*t}:{AC+4*t+3}] offset:{t*1024}")
    g.label("G2_J2")
    g(f"""
    s_and_b32 s37, s3, 1
    s_lshl_b32 s37, s37, 13
    s_lshr_b32 s38, s3, 1
    s_lshl_b32 s38, s38, 10
    s_add_u32 s37, s37, s38
    v_add_u32 v7, s37, v5
    s_waitcnt lgkmcnt(0)
    s_barrier
    """)
    for i in range(2):
        for w in range(4):
            g(f"ds_read_b128 v[{16+16*i+4*w}:{19+16*i+4*w}], v7 offset:{w*16384+i*4096}")
    g("s_waitcnt lgkmcnt(0)")
    for i in range(2):
        for r in range(4):
            b = 16+16*i+r
            g(f"v_add_f32 v{b}, v{b}, v{b+4}")
            g(f"v_add_f32 v{b+8}, v{b+8}, v{b+12}")
        for r in range(4):
            b = 16+16*i+r
            g(f"v_add_f32 v{b}, v{b}, v{b+8}")
    g.stamp(4)
    g("s_waitcnt vmcnt(0)")
    g.stamp(5)
    for i in range(2):
        b = 16+16*i
        g(f"""
        v_cvt_pk_bf16_f32 v{b+4}, v{b}, v{b+1}
        v_cvt_pk_bf16_f32 v{b+5}, v{b+2}, v{b+3}
        v_lshlrev_b32 v{b}, 16, v{b+4}
        v_and_b32 v{b+1}, 0xffff0000, v{b+4}
        v_lshlrev_b32 v{b+2}, 16, v{b+5}
        v_and_b32 v{b+3}, 0xffff0000, v{b+5}
        v_lshlrev_b32 v{b+4}, 16, v{10+2*i}
        v_and_b32 v{b+5}, 0xffff0000, v{10+2*i}
        v_lshlrev_b32 v{b+6}, 16, v{11+2*i}
        v_and_b32 v{b+7}, 0xffff0000, v{11+2*i}
        v_lshlrev_b32 v{b+8}, 16, v{116+4*i}
        v_lshlrev_b32 v{b+9}, 16, v{117+4*i}
        v_lshlrev_b32 v{b+10}, 16, v{118+4*i}
        v_lshlrev_b32 v{b+11}, 16, v{119+4*i}
        v_add_f32 v{b+4}, v{b+4}, v{b+8}
        v_add_f32 v{b+5}, v{b+5}, v{b+9}
        v_add_f32 v{b+6}, v{b+6}, v{b+10}
        v_add_f32 v{b+7}, v{b+7}, v{b+11}
        v_cvt_pk_bf16_f32 v{b+8}, v{b+4}, v{b+5}
        v_cvt_pk_bf16_f32 v{b+9}, v{b+6}, v{b+7}
        v_lshlrev_b32 v{b+4}, 16, v{b+8}
        v_and_b32 v{b+5}, 0xffff0000, v{b+8}
        v_lshlrev_b32 v{b+6}, 16, v{b+9}
        v_and_b32 v{b+7}, 0xffff0000, v{b+9}
        v_add_f32 v{b+4}, v{b+4}, v{b}
        v_add_f32 v{b+5}, v{b+5}, v{b+1}
        v_add_f32 v{b+6}, v{b+6}, v{b+2}
        v_add_f32 v{b+7}, v{b+7}, v{b+3}
        v_cvt_pk_bf16_f32 v{b+8}, v{b+4}, v{b+5}
        v_cvt_pk_bf16_f32 v{b+9}, v{b+6}, v{b+7}
        buffer_store_dwordx2 v[{b+8}:{b+9}], v115, s[32:35], 0 offen offset:{32*i}
        """)
    g.stamp_end(12, "g2")
    g("s_endpgm")

HEADER = open("parallel_sum__ssm_conv_s4__dense_activation_mish__prompt.s.ref").read().split("; Override launch")[0]

def build():
    g = G()
    g.raw(HEADER.rstrip("\n"))
    g.raw(f"; @launch grid=(512,1,1) block=(512,1,1) lds=81920")
    g.raw('.amdgcn_target "amdgcn-amd-amdhsa--gfx950"')
    g.raw(".text")
    gen_mega(g)
    g.raw('.section .rodata,"a"')
    g.raw(".p2align 6")
    g.raw(kernel_desc("parallel_sum__ssm_conv_s4__dense_activation_mish__prompt_kernel", 128))
    return g.text()

if __name__ == "__main__":
    out = sys.argv[1] if len(sys.argv) > 1 else "parallel_sum__ssm_conv_s4__dense_activation_mish__prompt.s"
    txt = build()
    if os.environ.get('LIST'):
        txt = txt.replace("; @launch grid=(512,1,1)", "; @launch kernel=parallel_sum__ssm_conv_s4__dense_activation_mish__prompt_kernel grid=(512,1,1)")
    open(out, "w").write(txt)
    print("written", out)
```

```python
import sys, struct, os
STAMP = os.environ.get('STAMP') is not None
STAMP_WG = int(os.environ.get('STAMP', '0'))
TL = os.environ.get('TL') is not None
DB = os.environ.get('DB') is not None
RT = os.environ.get('RT')

def f2u(x): return struct.unpack('<I', struct.pack('<f', x))[0]
def fhex(x): return "0x%08x" % f2u(x)
LOG2E = 1.4426950408889634
INV2PI = 0.15915494309189535

WS_ST  = 0x000000
WS_CS  = 0x010000
WS_XT  = 0x200000
WS_KR  = 0x400000
KR_PITCH = 4160
WS_KS  = 0x620000
WS_FL  = 0x640000
WS_F2  = 0x680000
WS_W2F = 0x800000
WS_AT  = 0xA00000
WS_ACT = 0xC00000

class G:
    def __init__(self): self.L = []
    def __call__(self, s):
        for line in s.strip('\n').split('\n'):
            if line.strip(): self.L.append("    " + line.strip())
    def label(self, s): self.L.append(s + ":")
    def raw(self, s): self.L.append(s)
    def text(self): return "\n".join(self.L) + "\n"
    def stamp(self, i):
        if STAMP: self(f"s_memtime s[{64+2*i}:{65+2*i}]")
        if RT: self(f"s_memrealtime s[{64+2*i}:{65+2*i}]")
    def dbmark(self, slot, inv=False, start=False):
        if not DB: return
        t = f"DBM{len(self.L)}"
        self(f"""
        s_cmp_lg_u32 s94, 0
        s_cbranch_scc1 {t}
        {'' if start else 's_memrealtime s[90:91]'}
        s_waitcnt lgkmcnt(0)
        {'s_mov_b32 s90, s88' if start else ''}
        {'s_not_b32 s90, s90' if inv else ''}
        v_mov_b32 v126, {4*slot}
        v_mov_b32 v127, s90
        v_cmp_eq_u32 vcc, 0, v1
        s_and_saveexec_b64 s[92:93], vcc
        global_atomic_umax v126, v127, s[20:21]
        s_mov_b64 exec, s[92:93]
        """)
        self.label(t)
    def stamp_end(self, n, tag):
        if RT:
            cw, gw = [int(x) for x in RT.split(',')]
            wg = gw if tag == 'g2' else cw
            sel = [0, 6, 9, 10, 11, 12] if tag == 'g2' else [0, 1, 3, 5, 6, 11]
            base = 40 if tag == 'g2' else 16
            self(f"""
            s_waitcnt vmcnt(0) lgkmcnt(0)
            s_memrealtime s[{64+2*n}:{65+2*n}]
            s_waitcnt lgkmcnt(0)
            s_cmp_lg_u32 s95, {wg}
            s_cbranch_scc1 RT_SKIP_{tag}
            s_cmp_lg_u32 s94, 0
            s_cbranch_scc1 RT_SKIP_{tag}
            v_mov_b32 v0, 0
            """)
            for i, k in enumerate(sel):
                self(f"v_mov_b32 v1, s{64+2*k}")
                self(f"global_store_dword v0, v1, s[20:21] offset:{base+4*i}")
            self.label(f"RT_SKIP_{tag}")
        if DB:
            self.dbmark(4, inv=True, start=True)
            self.dbmark(5, start=True)
            self.dbmark(6 if tag == 'g2' else 8)
        if TL:
            base = 0x3000000
            self(f"""
            s_waitcnt vmcnt(0) lgkmcnt(0)
            s_memrealtime s[90:91]
            s_memtime s[92:93]
            s_waitcnt lgkmcnt(0)
            s_cmp_lg_u32 s94, 0
            s_cbranch_scc1 TL_SKIP_{tag}
            s_lshl_b32 s83, s95, 4
            s_add_u32 s83, s83, {base}
            v_mov_b32 v0, s83
            v_mov_b32 v4, s88
            v_mov_b32 v5, s90
            s_sub_u32 s92, s92, s86
            v_mov_b32 v6, s92
            s_sub_u32 s84, s84, s86
            v_mov_b32 v7, s84
            global_store_dwordx4 v0, v[4:7], s[22:23]
            """)
            self.label(f"TL_SKIP_{tag}")
        if not STAMP: return
        self(f"""
        s_waitcnt vmcnt(0) lgkmcnt(0)
        s_memtime s[{64+2*n}:{65+2*n}]
        s_waitcnt lgkmcnt(0)
        s_cmp_lg_u32 s95, {STAMP_WG}
        s_cbranch_scc1 ST_SKIP_{tag}
        s_cmp_lg_u32 s94, 0
        s_cbranch_scc1 ST_SKIP_{tag}
        v_mov_b32 v0, 0x3200000
        """)
        for i in range(n+1):
            self(f"s_sub_u32 s93, s{64+2*i}, s64")
            self(f"v_mov_b32 v1, s93")
            self(f"global_store_dword v0, v1, s[22:23] offset:{4*i}")
        self.label(f"ST_SKIP_{tag}")
    def srd(self, d, pb, nbytes, off=0):
        if off:
            self(f"s_add_u32 s{d}, s{pb}, {off}")
            self(f"s_addc_u32 s{d+1}, s{pb+1}, 0")
        else:
            self(f"s_mov_b32 s{d}, s{pb}")
            self(f"s_mov_b32 s{d+1}, s{pb+1}")
        self(f"s_mov_b32 s{d+2}, {nbytes}")
        self(f"s_mov_b32 s{d+3}, 0x00020000")
    def poll(self, tag, soff, target, vt, vz):
        self(f"v_mov_b32 v{vz}, s{soff}")
        self.label(f"POLL_{tag}")
        self(f"""
        global_load_dword v{vt}, v{vz}, s[20:21] sc1
        s_waitcnt vmcnt(0)
        v_readfirstlane_b32 s{soff+1}, v{vt}
        s_nop 3
        s_cmp_ge_u32 s{soff+1}, {target}
        s_cbranch_scc1 POLLD_{tag}
        s_sleep 8
        s_branch POLL_{tag}
        """)
        self.label(f"POLLD_{tag}")

def poll_flags(g, tag, soff, ndw, vt, vz, base='s[20:21]', slp=8):
    g(f"""
    v_min_u32 v{vz}, {ndw-1}, v1
    v_lshlrev_b32 v{vz}, 2, v{vz}
    v_add_u32 v{vz}, s{soff}, v{vz}
    s_mov_b32 s{soff+1}, 0x01010101
    """)
    g.label(f"POLL_{tag}")
    g(f"""
    global_load_dword v{vt}, v{vz}, {base} sc1
    s_waitcnt vmcnt(0)
    v_cmp_ne_u32 vcc, s{soff+1}, v{vt}
    s_nop 3
    s_cmp_eq_u64 vcc, 0
    s_cbranch_scc1 POLLD_{tag}
    s_sleep {slp}
    s_branch POLL_{tag}
    """)
    g.label(f"POLLD_{tag}")

def wait_zero(g, tag, vt, vz):
    g(f"v_mov_b32 v{vz}, 0")
    g.label(f"WZ_{tag}")
    g(f"""
    global_load_dword v{vt}, v{vz}, s[20:21] sc1
    s_waitcnt vmcnt(0)
    v_cmp_eq_u32 vcc, 0, v{vt}
    s_nop 3
    s_cmp_eq_u64 vcc, 0
    s_cbranch_scc1 WZD_{tag}
    s_sleep 8
    s_branch WZ_{tag}
    """)
    g.label(f"WZD_{tag}")

def set_flag(g, sreg, va, vb):
    g(f"""
    v_mov_b32 v{va}, s{sreg}
    v_mov_b32 v{vb}, 0x01010101
    v_cmp_eq_u32 vcc, 0, v1
    s_and_saveexec_b64 s[50:51], vcc
    global_store_dword v{va}, v{vb}, s[22:23] sc1
    s_mov_b64 exec, s[50:51]
    """)

def cons_addr(g, vT, vD, vO, vx):
    g(f"""
    v_and_b32 v{vO}, 3, v{vT}
    v_lshlrev_b32 v{vO}, 3, v{vO}
    v_add_u32 v{vO}, v{vO}, v{vD}
    v_lshlrev_b32 v{vO}, 3, v{vO}
    v_lshrrev_b32 v{vx}, 2, v{vT}
    v_add_u32 v{vO}, v{vO}, v{vx}
    v_lshlrev_b32 v{vO}, 8, v{vO}
    v_add_u32 v{vO}, {WS_F2}, v{vO}
    """)

def poll_wf_all(g, tag, vt, vz):
    for ct in range(4):
        g(f"s_mov_b32 s62, {WS_FL + (ct+1)*4096}")
        poll_flags(g, f"{tag}{ct}", 62, 28, vt, vz, base="s[22:23]")

def kernel_begin(g, name):
    g.raw(f".globl {name}")
    g.raw(".p2align 8")
    g.raw(f".type {name},@function")
    g.label(name)
    g.stamp(0)
    G.kname = name
    if DB: g("s_memrealtime s[88:89]")
    if TL:
        g("s_memrealtime s[88:89]\ns_memtime s[86:87]")

def kernel_desc(name, vgpr, sgpr=96):
    acc = (vgpr + 3)//4*4
    return f""".amdhsa_kernel {name}
  .amdhsa_next_free_vgpr {vgpr}
  .amdhsa_next_free_sgpr {sgpr}
  .amdhsa_accum_offset {acc}
  .amdhsa_group_segment_fixed_size 0
  .amdhsa_kernarg_size 128
  .amdhsa_user_sgpr_count 2
  .amdhsa_user_sgpr_kernarg_segment_ptr 1
  .amdhsa_system_sgpr_workgroup_id_x 1
.end_amdhsa_kernel
"""
DPP = ["quad_perm:[1,0,3,2]", "quad_perm:[2,3,0,1]", "row_half_mirror", "row_mirror",
       "row_bcast:15 row_mask:0xa", "row_bcast:31 row_mask:0xc"]

KA_NL = 128
KA_NW = 112
KA_NG = 224
KA_TOTAL = KA_NL + KA_NW + KA_NG
KA_LDS = 81920
TP = 272
TCH = 96*TP
LNP = 1056
TRP = 288

def gen_mega(g):
    kernel_begin(g, "parallel_sum__ssm_conv_s4__dense_activation_mish__prompt_kernel")
    g(f"""
    s_cmp_ge_u32 s2, 512
    s_cbranch_scc1 M_END
    s_load_dwordx4 s[20:23], s[0:1], 112
    v_and_b32 v1, 63, v0
    v_lshrrev_b32 v2, 6, v0
    s_nop 0
    v_readfirstlane_b32 s3, v2
    s_mov_b32 s95, s2
    s_mov_b32 s94, s3
    {'s_xor_b32 s2, s2, 256' if os.environ.get('SWAP') else ''}
    """)
    if os.environ.get('CPF'):
        g(f"""
        s_cmp_lg_u32 s3, 7
        s_cbranch_scc1 M_NOCPF
        s_getpc_b64 s[48:49]
        v_lshlrev_b32 v4, 7, v1
        v_add_u32 v5, 8192, v4
        v_add_u32 v6, 16384, v4
        v_add_u32 v7, 24576, v4
        global_load_dword v120, v4, s[48:49]
        global_load_dword v120, v5, s[48:49]
        global_load_dword v120, v6, s[48:49]
        """)
        g.label("M_NOCPF")
    g(f"""
    s_cmp_ge_u32 s2, 256
    s_cbranch_scc1 M_G
    """)
    g(f"""
    s_setprio 3
    s_load_dwordx4 s[4:7], s[0:1], 56
    s_min_u32 s36, s3, 5
    s_lshl_b32 s36, s36, 3
    s_add_u32 s36, s36, 8
    s_load_dwordx2 s[8:9], s[0:1], s36
    s_lshl_b32 s28, s2, 2
    s_lshl_b32 s36, s2, 9
    v_and_b32 v5, 31, v1
    v_lshlrev_b32 v5, 4, v5
    v_add_u32 v6, s36, v5
    s_waitcnt lgkmcnt(0)
    s_load_dword s52, s[4:5], s28
    s_load_dword s53, s[6:7], s28
    global_load_dwordx4 v[112:115], v6, s[8:9]
    s_cmp_lg_u32 s2, 0
    s_cbranch_scc1 M_NOZ
    v_lshrrev_b32 v4, 6, v0
    v_lshlrev_b32 v4, 12, v4
    v_lshlrev_b32 v5, 2, v1
    v_add_u32 v4, v4, v5
    v_add_u32 v4, {WS_FL}, v4
    v_add_u32 v5, 0x8000, v4
    v_add_u32 v6, 0x10000, v4
    v_add_u32 v7, 0x18000, v4
    v_mov_b32 v8, 0
    global_store_dword v4, v8, s[22:23] sc1
    global_store_dword v5, v8, s[22:23] sc1
    global_store_dword v6, v8, s[22:23] sc1
    global_store_dword v7, v8, s[22:23] sc1
    v_mov_b32 v9, 0
    v_mov_b32 v10, 0
    v_mov_b32 v11, 0
    v_lshlrev_b32 v4, 4, v0
    v_add_u32 v4, {WS_F2}, v4
    """)
    for i in range(8):
        g(f"global_store_dwordx4 v4, v[8:11], s[22:23] sc1")
        if i < 7: g("v_add_u32 v4, 8192, v4")
    g(f"""
    s_waitcnt vmcnt(0)
    s_barrier
    s_cmp_lg_u32 s3, 0
    s_cbranch_scc1 M_NOZ
    v_mov_b32 v4, 0
    v_mov_b32 v5, 0x01010101
    v_cmp_eq_u32 vcc, 0, v1
    s_and_saveexec_b64 s[50:51], vcc
    global_store_dword v4, v5, s[20:21] sc1
    s_mov_b64 exec, s[50:51]
    """)
    g.label("M_NOZ")
    g(f"""
    s_mov_b32 s55, 0
    s_cmp_ge_u32 s2, {KA_NL}
    s_cbranch_scc1 M_NOTLN
    """)
    gen_ln(g)
    g("s_branch M_CONV")
    g.label("M_NOTLN")
    g(f"""
    s_cmp_ge_u32 s2, {KA_NL+KA_NW}
    s_cbranch_scc1 M_NOROLE
    """)
    gen_w2f(g)
    g("s_branch M_CONV")
    g.label("M_NOROLE")
    g(f"s_cmp_ge_u32 s2, {KA_NL+KA_NW+14}\ns_cbranch_scc1 M_NOROLE2")
    gen_cs(g)
    g("s_branch M_CONV")
    g.label("M_NOROLE2")
    g("s_waitcnt vmcnt(0)")
    g.label("M_CONV")
    gen_conv(g)
    g.label("M_G")
    g(f"""
    {'s_setprio 2' if os.environ.get('GPRIO') else ''}
    s_sub_u32 s2, s2, 256
    s_load_dwordx2 s[56:57], s[0:1], 0
    s_load_dwordx2 s[58:59], s[0:1], 104
    s_mov_b32 s61, 0
    s_cmp_ge_u32 s2, {KA_NG}
    s_cbranch_scc1 M_G2PRE
    """)
    gen_gemm1(g)
    g("s_branch M_G2")
    g.label("M_G2PRE")
    g("s_waitcnt lgkmcnt(0)\ns_cmp_lg_u32 s3, 0\ns_cbranch_scc1 G2_NOPOLL0")
    wait_zero(g, "g2", 2, 15)
    poll_wf_all(g, "g2w", 2, 15)
    g.label("G2_NOPOLL0")
    g("s_barrier")
    g.label("M_G2")
    gen_gemm2(g)
    g.label("M_END")
    g("s_endpgm")

def gen_ln(g):
    NR = 2
    g(f"""
    s_load_dwordx2 s[4:5], s[0:1], 0
    s_lshl_b32 s6, s2, 4
    s_lshl_b32 s7, s3, 1
    s_add_u32 s6, s6, s7
    s_lshl_b32 s7, s6, 10
    v_lshlrev_b32 v3, 4, v1
    s_waitcnt lgkmcnt(0)
    """)
    g.srd(8, 4, 2048*1024)
    g.srd(16, 22, 2048*1024, WS_XT)
    for i in range(NR):
        g(f"buffer_load_dwordx4 v[{16+4*i}:{19+4*i}], v3, s[8:11], s7 offen offset:{1024*i}")
    g("s_waitcnt vmcnt(0)")
    X = 32
    for i in range(NR):
        for j in range(4):
            g(f"v_lshlrev_b32 v{X+8*i+2*j}, 16, v{16+4*i+j}")
            g(f"v_and_b32 v{X+8*i+2*j+1}, 0xffff0000, v{16+4*i+j}")
    def reduce(base):
        for mod in DPP:
            for i in range(NR):
                g(f"v_add_f32_dpp v{base+i}, v{base+i}, v{base+i} {mod}")
            g("s_nop 0")
    for i in range(NR):
        b = X+8*i
        g(f"v_add_f32 v{4+i}, v{b}, v{b+1}")
        g(f"v_add_f32 v{8+i}, v{b+2}, v{b+3}")
        g(f"v_add_f32 v{12+i}, v{b+4}, v{b+5}")
        g(f"v_add_f32 v{64+i}, v{b+6}, v{b+7}")
    for i in range(NR):
        g(f"v_add_f32 v{4+i}, v{4+i}, v{8+i}")
        g(f"v_add_f32 v{12+i}, v{12+i}, v{64+i}")
    for i in range(NR):
        g(f"v_add_f32 v{4+i}, v{4+i}, v{12+i}")
    g("s_nop 1")
    reduce(4)
    for i in range(NR):
        g(f"v_readlane_b32 s{32+i}, v{4+i}, 63")
    g("s_nop 1")
    for i in range(NR):
        g(f"v_mov_b32 v{4+i}, s{32+i}")
    for i in range(NR):
        g(f"v_mul_f32 v{4+i}, {fhex(1.0/512)}, v{4+i}")
    for i in range(NR):
        for j in range(8):
            g(f"v_sub_f32 v{64+j}, v{X+8*i+j}, v{4+i}")
        g(f"v_mul_f32 v{8+i}, v64, v64")
        g(f"v_mul_f32 v{12+i}, v65, v65")
        for j in range(2, 8):
            g(f"v_fma_f32 v{8+i+4*(j&1)}, v{64+j}, v{64+j}, v{8+i+4*(j&1)}")
        g(f"v_add_f32 v{8+i}, v{8+i}, v{12+i}")
    g("s_nop 1")
    reduce(8)
    for i in range(NR):
        g(f"v_readlane_b32 s{32+i}, v{8+i}, 63")
    g("s_nop 1")
    for i in range(NR):
        g(f"v_mov_b32 v{8+i}, s{32+i}")
    for i in range(NR):
        g(f"v_mul_f32 v{8+i}, {fhex(1.0/512)}, v{8+i}")
    for i in range(NR):
        g(f"v_cvt_pk_bf16_f32 v{12+i}, v{4+i}, v{8+i}")
    for i in range(NR):
        g(f"v_lshlrev_b32 v{4+i}, 16, v{12+i}")
        g(f"v_and_b32 v{8+i}, 0xffff0000, v{12+i}")
    for i in range(NR):
        g(f"v_add_f32 v{8+i}, {fhex(1e-5)}, v{8+i}")
    for i in range(NR):
        g(f"v_cvt_pk_bf16_f32 v{8+i}, v{8+i}, v{8+i}")
    for i in range(NR):
        g(f"v_lshlrev_b32 v{8+i}, 16, v{8+i}")
    for i in range(NR):
        g(f"v_sqrt_f32 v{8+i}, v{8+i}")
    g("s_nop 0")
    for i in range(NR):
        g(f"v_cvt_pk_bf16_f32 v{8+i}, v{8+i}, v{8+i}")
    for i in range(NR):
        g(f"v_lshlrev_b32 v{8+i}, 16, v{8+i}")
    for i in range(NR):
        g(f"v_rcp_f32 v{12+i}, v{8+i}")
    g("s_nop 0")
    for i in range(NR):
        g(f"v_fma_f32 v{64+i}, -v{8+i}, v{12+i}, 1.0")
    for i in range(NR):
        g(f"v_fma_f32 v{17+2*i}, v{64+i}, v{12+i}, v{12+i}")
    for i in range(NR):
        g(f"v_mul_f32 v{16+2*i}, v{4+i}, v{17+2*i}")
    g(f"""
    s_lshl_b32 s42, s6, 3
    v_mov_b32 v24, s42
    s_add_u32 s44, s22, {WS_ST}
    s_addc_u32 s45, s23, 0
    v_cmp_eq_u32 vcc, 0, v1
    s_and_saveexec_b64 s[46:47], vcc
    global_store_dwordx4 v24, v[16:19], s[44:45] sc1
    s_mov_b64 exec, s[46:47]
    s_mul_i32 s36, s3, {NR*LNP}
    s_add_u32 s36, s36, {L_T}
    v_add_u32 v2, s36, v3
    """)
    for i in range(NR):
        b = X+8*i
        for j in range(8):
            g(f"v_sub_f32 v{b+j}, v{b+j}, v{4+i}")
        for j in range(4):
            g(f"v_cvt_pk_bf16_f32 v{64+j}, v{b+2*j}, v{b+2*j+1}")
        for j in range(4):
            g(f"v_lshlrev_b32 v{b+2*j}, 16, v{64+j}")
            g(f"v_and_b32 v{b+2*j+1}, 0xffff0000, v{64+j}")
        for j in range(8):
            g(f"v_mul_f32 v{64+j}, v{b+j}, v{12+i}")
        for j in range(8):
            g(f"v_fma_f32 v{b+j}, -v{64+j}, v{8+i}, v{b+j}")
        for j in range(8):
            g(f"v_fma_f32 v{64+j}, v{b+j}, v{12+i}, v{64+j}")
        for j in range(4):
            g(f"v_cvt_pk_bf16_f32 v{72+j}, v{64+2*j}, v{64+2*j+1}")
        for j in range(4):
            g(f"v_lshlrev_b32 v{64+2*j}, 16, v{72+j}")
            g(f"v_and_b32 v{64+2*j+1}, 0xffff0000, v{72+j}")
        o = 76 + 4*(i & 1)
        for j in range(4):
            g(f"v_cvt_pk_f16_f32 v{o+j}, v{64+2*j}, v{64+2*j+1}")
        g(f"ds_write_b128 v2, v[{o}:{o+3}] offset:{i*LNP}")
    g("s_waitcnt lgkmcnt(0)\ns_barrier")
    g(f"""
    v_and_b32 v4, 15, v1
    v_lshrrev_b32 v5, 4, v1
    v_and_b32 v6, 1, v5
    v_lshrrev_b32 v5, 1, v5
    v_lshlrev_b32 v7, 3, v6
    v_lshrrev_b32 v8, 2, v4
    v_add_u32 v7, v7, v8
    v_mul_u32_u24 v7, {LNP}, v7
    v_and_b32 v8, 3, v4
    v_lshlrev_b32 v8, 3, v8
    v_add_u32 v7, v7, v8
    v_lshlrev_b32 v8, 5, v5
    v_add_u32 v7, v7, v8
    s_lshl_b32 s36, s3, 7
    s_add_u32 s36, s36, {L_T}
    v_add_u32 v7, s36, v7
    ds_read_b64_tr_b16 v[16:17], v7
    ds_read_b64_tr_b16 v[18:19], v7 offset:{4*LNP}
    ds_read_b64_tr_b16 v[20:21], v7 offset:64
    ds_read_b64_tr_b16 v[22:23], v7 offset:{4*LNP+64}
    v_lshlrev_b32 v8, 4, v5
    v_add_u32 v8, v8, v4
    v_lshlrev_b32 v8, 5, v8
    v_lshlrev_b32 v9, 4, v6
    v_add_u32 v8, v8, v9
    s_lshl_b32 s36, s2, 14
    s_lshl_b32 s37, s3, 11
    s_add_u32 s36, s36, s37
    s_waitcnt lgkmcnt(0)
    buffer_store_dwordx4 v[16:19], v8, s[16:19], s36 offen sc1
    buffer_store_dwordx4 v[20:23], v8, s[16:19], s36 offen offset:1024 sc1
    """)
    g(f"""
    s_and_b32 s55, s2, 63
    s_lshl_b32 s55, s55, 2
    s_lshr_b32 s37, s2, 6
    s_mul_i32 s37, s37, {29*4096}
    s_add_u32 s55, s55, s37
    s_add_u32 s55, s55, {WS_FL}
    v_mov_b32 v4, 0
    global_load_dword v117, v4, s[20:21] sc1
    """)

def gen_w2f(g):
    g(f"""
    s_load_dwordx2 s[6:7], s[0:1], 96
    v_and_b32 v4, 15, v1
    v_lshrrev_b32 v5, 4, v1
    s_sub_u32 s38, s2, {KA_NL}
    s_lshr_b32 s24, s38, 2
    s_and_b32 s25, s38, 3
    v_lshlrev_b32 v8, 4, v1
    s_lshl_b32 s28, s25, 3
    s_add_u32 s28, s28, s3
    s_mul_i32 s28, s28, 56
    s_lshl_b32 s29, s24, 1
    s_add_u32 s28, s28, s29
    s_lshl_b32 s28, s28, 10
    v_lshrrev_b32 v3, 4, v0
    v_and_b32 v6, 15, v0
    v_lshlrev_b32 v7, 10, v3
    v_lshlrev_b32 v6, 4, v6
    v_add_u32 v7, v7, v6
    s_lshl_b32 s30, s24, 16
    s_lshl_b32 s31, s25, 8
    s_add_u32 s30, s30, s31
    s_add_u32 s31, s30, 32768
    s_waitcnt lgkmcnt(0)
    """)
    g.srd(8, 6, 512*1792*2)
    g.srd(12, 22, 512*1792*2, WS_W2F)
    g(f"""
    buffer_load_dwordx4 v[12:15], v7, s[8:11], s30 offen
    buffer_load_dwordx4 v[16:19], v7, s[8:11], s31 offen
    v_mul_u32_u24 v10, {TRP}, v3
    v_add_u32 v10, v10, v6
    v_add_u32 v10, {L_T}, v10
    v_lshlrev_b32 v6, 3, v5
    v_lshrrev_b32 v7, 2, v4
    v_add_u32 v6, v6, v7
    v_mul_u32_u24 v6, {TRP}, v6
    v_and_b32 v7, 3, v4
    v_lshlrev_b32 v7, 3, v7
    v_add_u32 v6, v6, v7
    s_lshl_b32 s36, s3, 5
    s_add_u32 s36, s36, {L_T}
    v_add_u32 v6, s36, v6
    s_waitcnt vmcnt(0)
    ds_write_b128 v10, v[12:15]
    ds_write_b128 v10, v[16:19] offset:{32*TRP}
    s_waitcnt lgkmcnt(0)
    s_barrier
    ds_read_b64_tr_b16 v[20:21], v6
    ds_read_b64_tr_b16 v[22:23], v6 offset:{4*TRP}
    ds_read_b64_tr_b16 v[24:25], v6 offset:{32*TRP}
    ds_read_b64_tr_b16 v[26:27], v6 offset:{36*TRP}
    s_waitcnt lgkmcnt(0)
    buffer_store_dwordx4 v[20:23], v8, s[12:15], s28 offen sc1
    buffer_store_dwordx4 v[24:27], v8, s[12:15], s28 offen offset:1024 sc1
    s_add_u32 s55, s25, 1
    s_lshl_b32 s55, s55, 12
    s_lshl_b32 s37, s24, 2
    s_add_u32 s55, s55, s37
    s_add_u32 s55, s55, {WS_FL}
    v_mov_b32 v4, 0
    global_load_dword v117, v4, s[20:21] sc1
    """)

def gen_cs(g):
    g(f"""
    s_load_dwordx4 s[4:7], s[0:1], 80
    s_sub_u32 s38, s2, {KA_NL+KA_NW}
    v_lshrrev_b32 v7, 4, v0
    v_and_b32 v8, 15, v0
    v_mul_u32_u24 v9, {16*3584}, v7
    v_lshlrev_b32 v8, 4, v8
    v_add_u32 v9, v9, v8
    s_lshl_b32 s40, s38, 8
    v_and_b32 v10, 127, v0
    v_lshlrev_b32 v10, 1, v10
    v_add_u32 v10, s40, v10
    s_waitcnt lgkmcnt(0)
    """)
    g.srd(8, 4, 512*3584)
    g("global_load_ushort v11, v10, s[6:7]")
    for r in range(16):
        g(f"s_add_u32 s41, s40, {r*3584}")
        g(f"buffer_load_dwordx4 v[{16+4*r}:{19+4*r}], v9, s[8:11], s41 offen")
    g("s_waitcnt vmcnt(0)")
    for j in range(4):
        g(f"v_lshlrev_b32 v{80+2*j}, 16, v{16+j}")
        g(f"v_and_b32 v{80+2*j+1}, 0xffff0000, v{16+j}")
    for r in range(1, 16):
        for j in range(4):
            g(f"v_lshlrev_b32 v12, 16, v{16+4*r+j}")
            g(f"v_and_b32 v13, 0xffff0000, v{16+4*r+j}")
            g(f"v_add_f32 v{80+2*j}, v{80+2*j}, v12")
            g(f"v_add_f32 v{80+2*j+1}, v{80+2*j+1}, v13")
    g(f"""
    v_lshlrev_b32 v12, 9, v7
    v_lshlrev_b32 v13, 1, v8
    v_add_u32 v12, v12, v13
    v_add_u32 v12, {L_T}, v12
    ds_write_b128 v12, v[80:83]
    ds_write_b128 v12, v[84:87] offset:16
    v_and_b32 v13, 127, v0
    v_lshlrev_b32 v13, 2, v13
    v_add_u32 v14, {L_T}, v13
    s_waitcnt lgkmcnt(0)
    s_barrier
    s_cmp_ge_u32 s3, 2
    s_cbranch_scc1 CS_DONE
    """)
    for r in range(32):
        g(f"ds_read_b32 v{16+r}, v14 offset:{512*r}")
    g("s_waitcnt lgkmcnt(0)")
    for st in [16, 8, 4, 2, 1]:
        for r in range(st):
            g(f"v_add_f32 v{16+r}, v{16+r}, v{16+st+r}")
    g(f"""
    s_add_u32 s44, s22, {WS_CS}
    s_addc_u32 s45, s23, 0
    s_lshl_b32 s41, s38, 9
    v_add_u32 v13, s41, v13
    v_add_u32 v14, {1792*4}, v13
    v_lshlrev_b32 v11, 16, v11
    global_store_dword v13, v16, s[44:45] sc1
    global_store_dword v14, v11, s[44:45] sc1
    """)
    g.label("CS_DONE")
    g(f"""
    s_lshl_b32 s55, s38, 2
    s_add_u32 s55, s55, {WS_FL+30*4096}
    v_mov_b32 v4, 0
    global_load_dword v117, v4, s[20:21] sc1
    """)

L_SC = 2*TCH
L_P = L_SC + 64
L_T = L_P + 3072
L_R = L_T + 16384
def gen_kgen_setup(g):
    g(f"""
    s_lshr_b32 s31, s3, 2
    s_and_b32 s30, s3, 3
    s_mov_b32 s40, 0
    s_mov_b32 s41, {fhex(16.0)}
    s_mov_b32 s42, 0
    s_mov_b32 s43, {fhex(1.0)}
    s_cmp_eq_u32 s30, 1
    s_cselect_b32 s40, {fhex(256.0)}, s40
    s_cselect_b32 s42, {fhex(8.0)}, s42
    s_cmp_eq_u32 s30, 2
    s_cselect_b32 s40, {fhex(512.0)}, s40
    s_cmp_eq_u32 s30, 3
    s_cselect_b32 s40, {fhex(1536.0)}, s40
    s_cselect_b32 s42, {fhex(32.0)}, s42
    s_cmp_ge_u32 s30, 2
    s_cselect_b32 s41, {fhex(64.0)}, s41
    s_cselect_b32 s43, {fhex(4.0)}, s43
    s_mul_i32 s32, s31, {TCH}
    s_mul_i32 s28, s30, {16*TP}
    s_add_u32 s28, s28, s32
    s_mul_i32 s29, s30, {8*TP}
    s_add_u32 s29, s29, {64*TP}
    s_add_u32 s29, s29, s32
    v_lshlrev_b32 v6, 2, v1
    v_add_u32 v7, s29, v6
    v_add_u32 v6, s28, v6
    v_and_b32 v8, 15, v1
    v_lshrrev_b32 v9, 4, v1
    v_mul_u32_u24 v8, {TP}, v8
    v_lshlrev_b32 v9, 4, v9
    v_add_u32 v8, v8, v9
    s_lshr_b32 s33, s30, 1
    s_mul_i32 s33, s33, {16*TP}
    s_add_u32 s33, s33, {64*TP}
    s_add_u32 s33, s33, s32
    v_add_u32 v9, s33, v8
    v_add_u32 v8, s28, v8
    v_and_b32 v10, 15, v1
    v_lshrrev_b32 v11, 4, v1
    v_lshlrev_b32 v11, 8, v11
    v_lshlrev_b32 v10, 2, v10
    v_add_u32 v10, v10, v11
    s_lshl_b32 s28, s30, 10
    s_lshl_b32 s29, s31, 12
    s_add_u32 s28, s28, s29
    s_add_u32 s28, s28, {L_T}
    v_add_u32 v10, s28, v10
    v_lshlrev_b32 v11, 2, v0
    v_sub_u32 v11, 2047, v11
    """)
    for j in range(4):
        g(f"""
        v_subrev_u32 v{16+j}, {j}, v11
        v_cvt_f32_u32 v{16+j}, v{16+j}
        v_cvt_pk_bf16_f32 v{16+j}, v{16+j}, v{16+j}
        v_lshlrev_b32 v{16+j}, 16, v{16+j}
        v_cvt_u32_f32 v{16+j}, v{16+j}
        v_subrev_u32 v12, 512, v{16+j}
        v_lshrrev_b32 v12, 2, v12
        v_add_u32 v12, 512, v12
        v_cmp_gt_u32 vcc, 512, v{16+j}
        s_nop 1
        v_cndmask_b32 v{16+j}, v12, v{16+j}, vcc
        v_lshlrev_b32 v{16+j}, 2, v{16+j}
        v_add_u32 v{16+j}, {L_T}, v{16+j}
        """)

def gen_kgen(g, dd):
    b = 52 + 8*dd
    def direct(sl, vare, vaim, vr, vi, t0, t1):
        g(f"""
        v_mul_f32 v{t0}, s{sl}, v{vare}
        v_mul_f32 v{t1}, s{sl}, v{vaim}
        v_exp_f32 v{t0}, v{t0}
        v_fract_f32 v{t1}, v{t1}
        v_cos_f32 v{vr}, v{t1}
        v_sin_f32 v{vi}, v{t1}
        s_nop 0
        v_mul_f32 v{vr}, v{t0}, v{vr}
        v_mul_f32 v{vi}, v{t0}, v{vi}
        """)
    def cmul(dr, di, ar, ai, br, bi):
        g(f"""
        v_mul_f32 v{dr}, v{ar}, v{br}
        v_mul_f32 v{di}, v{ar}, v{bi}
        v_fma_f32 v{dr}, -v{ai}, v{bi}, v{dr}
        v_fma_f32 v{di}, v{ai}, v{br}, v{di}
        """)
    def emit(zr, zi, vaddr, row, t):
        g(f"""
        v_cvt_pk_f16_f32 v{t}, v{zr}, v{zi}
        ds_write_b32 v{vaddr}, v{t} offset:{row*TP}
        """)
    g(f"""
    v_lshlrev_b32 v5, 16, v{b+6}
    v_mul_f32 v5, {fhex(LOG2E)}, v5
    v_exp_f32 v5, v5
    s_nop 0
    v_cvt_pk_bf16_f32 v5, v5, v5
    v_lshlrev_b32 v5, 16, v5
    """)
    for i in range(6):
        g(f"v_lshlrev_b32 v{b+i}, 16, v{b+i}")
    g(f"""
    v_mul_f32 v24, v5, v{b}
    v_mul_f32 v25, v5, v{b+1}
    v_mul_f32 v24, {fhex(LOG2E)}, v24
    v_mul_f32 v25, {fhex(INV2PI)}, v25
    v_sub_f32 v26, 0, v25
    v_mul_f32 v27, v5, v{b+2}
    v_mul_f32 v28, v5, v{b+3}
    """)
    cmul(29, 30, b+4, b+5, 27, 28)
    g(f"""
    v_max_f32 v31, abs(v29), abs(v30)
    v_max_f32 v31, {fhex(1e-30)}, v31
    """)
    direct(40, 24, 26, 32, 33, 40, 41)
    g(f"v_max_f32_dpp v31, v31, v31 {DPP[0]}")
    direct(41, 24, 26, 34, 35, 40, 41)
    g(f"v_max_f32_dpp v31, v31, v31 {DPP[1]}")
    direct(42, 24, 25, 44, 45, 40, 41)
    g(f"v_max_f32_dpp v31, v31, v31 {DPP[2]}")
    direct(43, 24, 25, 46, 47, 40, 41)
    for mod in DPP[3:]:
        g(f"v_max_f32_dpp v31, v31, v31 {mod}\ns_nop 1")
    g(f"""
    v_readlane_b32 s34, v31, 63
    s_nop 3
    v_mov_b32 v31, s34
    v_rcp_f32 v40, v31
    s_lshl_b32 s34, s31, 2
    s_add_u32 s34, s34, {L_SC + 8*dd}
    v_mov_b32 v41, s34
    ds_write_b32 v41, v31
    v_mul_f32 v29, v29, v40
    v_mul_f32 v30, v30, v40
    v_sub_f32 v30, 0, v30
    v_mov_b32 v68, 0
    v_mov_b32 v69, 0
    v_mov_b32 v70, 0
    v_mov_b32 v71, 0
    """)
    cmul(36, 37, 29, 30, 32, 33)
    if dd == 1:
        g("s_barrier")
    z = (36, 37); zn = (38, 39)
    y = (44, 45); yn = (48, 49)
    for k in range(16):
        emit(z[0], z[1], 6, k, 42 + (k & 1))
        if k < 8:
            emit(y[0], y[1], 7, k, 50 + (k & 1))
        if k < 15:
            cmul(zn[0], zn[1], z[0], z[1], 34, 35)
            z, zn = zn, z
        if k < 7:
            cmul(yn[0], yn[1], y[0], y[1], 46, 47)
            y, yn = yn, y
    g("s_waitcnt lgkmcnt(0)\ns_barrier")
    for gi in range(4):
        g(f"ds_read_b128 v[{72+8*gi}:{75+8*gi}], v8 offset:{64*gi}")
        g(f"ds_read_b128 v[{76+8*gi}:{79+8*gi}], v9 offset:{64*gi}")
    g(f"v_mov_b32 v12, {L_SC+8*dd}\nds_read_b64 v[14:15], v12")
    for gi in range(4):
        g(f"s_waitcnt lgkmcnt({7-2*gi})")
        g(f"v_mfma_f32_16x16x32_f16 v[68:71], v[{72+8*gi}:{75+8*gi}], v[{76+8*gi}:{79+8*gi}], v[68:71]")
    g(f"""
    s_waitcnt lgkmcnt(0)
    v_add_f32 v{104+dd}, v14, v15
    v_rcp_f32 v{106+dd}, v{104+dd}
    s_nop 6
    v_mul_f32 v68, v68, v31
    v_mul_f32 v69, v69, v31
    v_mul_f32 v70, v70, v31
    v_mul_f32 v71, v71, v31
    ds_write_b32 v10, v68 offset:{8192*dd}
    ds_write_b32 v10, v69 offset:{8192*dd+64}
    ds_write_b32 v10, v70 offset:{8192*dd+128}
    ds_write_b32 v10, v71 offset:{8192*dd+192}
    """)

NST = 5
def gen_gemm1(g):
    if os.environ.get('PRIO'): g("s_setprio 2")
    g(f"""
    s_load_dwordx2 s[4:5], s[0:1], 88
    s_load_dwordx2 s[6:7], s[0:1], 0
    s_load_dwordx2 s[36:37], s[0:1], 80
    s_lshr_b32 s25, s2, 3
    s_mul_i32 s26, s25, 37
    s_lshr_b32 s26, s26, 8
    s_mul_i32 s27, s26, 7
    s_sub_u32 s25, s25, s27
    s_and_b32 s24, s2, 6
    s_lshl_b32 s24, s24, 1
    s_add_u32 s24, s24, s26
    s_and_b32 s27, s2, 1
    s_mul_i32 s27, s27, 7
    s_add_u32 s25, s25, s27
    """)
    g(f"""
    v_lshrrev_b32 v3, 4, v1
    v_and_b32 v4, 15, v1
    v_lshlrev_b32 v5, 2, v3
    v_xor_b32 v4, v4, v5
    v_lshlrev_b32 v4, 4, v4
    s_lshl_b32 s26, s3, 2
    v_add_u32 v3, s26, v3
    v_mul_u32_u24 v3, 3584, v3
    v_add_u32 v3, v3, v4
    s_lshl_b32 s26, s25, 8
    """)
    if os.environ.get('E1'): g("s_mov_b32 s26, 0")
    g(f"""
    v_add_u32 v8, s26, v3
    v_lshrrev_b32 v3, 2, v1
    v_and_b32 v4, 3, v1
    v_lshrrev_b32 v5, 2, v3
    v_xor_b32 v4, v4, v5
    v_lshlrev_b32 v4, 4, v4
    s_lshl_b32 s26, s3, 4
    v_add_u32 v3, s26, v3
    v_lshlrev_b32 v3, 10, v3
    v_add_u32 v3, v3, v4
    s_lshl_b32 s26, s24, 17
    """)
    if os.environ.get('E1'): g("s_mov_b32 s26, 0")
    g(f"""
    v_add_u32 v9, s26, v3
    s_lshl_b32 s28, s3, 10
    s_waitcnt lgkmcnt(0)
    """)
    g.srd(8, 36, 512*3584)
    g.srd(12, 6, 2048*1024)
    g.srd(16, 22, 2048*3584, WS_ACT)
    g.stamp(1)
    def issue(k):
        buf = (k % NST) * 16384
        g(f"""
        s_mov_b32 s30, {32*3584*k}
        s_mov_b32 s31, {64*k}
        s_add_u32 m0, s28, {buf}
        s_nop 0
        buffer_load_dwordx4 v8, s[8:11], s30 offen lds
        s_add_u32 m0, s28, {buf + 8192}
        s_nop 0
        buffer_load_dwordx4 v9, s[12:15], s31 offen lds
        """)
    NI = int(os.environ.get('NI', NST))
    for k in range(NI):
        issue(k)
        if k < 2 and os.environ.get('ISB'): g("s_barrier")
    if os.environ.get('IPF'):
        g(f"""
        v_lshrrev_b32 v10, 1, v0
        v_add_u32 v10, 160, v10
        v_mul_u32_u24 v10, 3584, v10
        v_and_b32 v11, 1, v0
        v_lshlrev_b32 v11, 7, v11
        v_add_u32 v10, v10, v11
        s_lshl_b32 s26, s25, 8
        buffer_load_dword v63, v10, s[8:11], s26 offen
        v_lshrrev_b32 v10, 2, v0
        v_lshlrev_b32 v10, 10, v10
        v_and_b32 v11, 3, v0
        v_lshlrev_b32 v11, 7, v11
        v_add_u32 v10, v10, v11
        s_lshl_b32 s26, s24, 17
        s_add_u32 s26, s26, 512
        buffer_load_dword v63, v10, s[12:15], s26 offen
        """)
    g(f"""
    v_lshrrev_b32 v3, 4, v1
    v_and_b32 v4, 15, v1
    v_lshrrev_b32 v5, 2, v4
    v_lshrrev_b32 v6, 1, v3
    v_lshlrev_b32 v6, 3, v6
    v_add_u32 v6, v6, v5
    v_lshlrev_b32 v6, 8, v6
    v_and_b32 v7, 1, v4
    v_lshlrev_b32 v7, 3, v7
    v_add_u32 v6, v6, v7
    v_and_b32 v7, 1, v3
    v_lshlrev_b32 v7, 1, v7
    v_bfe_u32 v10, v4, 1, 1
    v_add_u32 v7, v7, v10
    s_and_b32 s29, s3, 1
    s_lshl_b32 s29, s29, 3
    v_add_u32 v7, s29, v7
    v_lshlrev_b32 v5, 2, v5
    v_xor_b32 v10, v7, v5
    v_lshlrev_b32 v10, 4, v10
    v_add_u32 v16, v6, v10
    v_add_u32 v7, 4, v7
    v_xor_b32 v10, v7, v5
    v_lshlrev_b32 v10, 4, v10
    v_add_u32 v17, v6, v10
    v_and_b32 v3, 31, v1
    v_lshrrev_b32 v4, 5, v1
    v_lshrrev_b32 v5, 2, v3
    v_and_b32 v5, 3, v5
    v_lshlrev_b32 v6, 6, v3
    s_lshr_b32 s30, s3, 1
    s_lshl_b32 s30, s30, 11
    s_add_u32 s30, s30, 8192
    v_add_u32 v6, s30, v6
    v_xor_b32 v7, v4, v5
    v_lshlrev_b32 v7, 4, v7
    v_add_u32 v18, v6, v7
    v_add_u32 v7, 2, v4
    v_xor_b32 v7, v7, v5
    v_lshlrev_b32 v7, 4, v7
    v_add_u32 v19, v6, v7
    """)
    A0 = 64
    for i in range(32):
        g(f"v_mov_b32 v{A0+i}, 0")
    for i in range(4):
        g(f"v_add_u32 v{11+i}, 0x10000, v{16+i}")
    FS = [96, 26]
    PK = int(os.environ.get('PK', 11))
    B2 = [8, 12, 16, 60]
    def rd(k, kk):
        buf = (k % NST) * 16384
        F = FS[k & 1]
        vb = 16
        if buf >= 65536:
            buf -= 65536; vb = 11
        f = F + 12*kk
        for mt in range(2):
            g(f"ds_read_b64_tr_b16 v[{f+4*mt}:{f+4*mt+1}], v{vb+mt} offset:{buf+4096*kk}")
            g(f"ds_read_b64_tr_b16 v[{f+4*mt+2}:{f+4*mt+3}], v{vb+mt} offset:{buf+4096*kk+1024}")
        g(f"ds_read_b128 v[{f+8}:{f+11}], v{vb+2+kk} offset:{buf}")
    g(f"""
    v_mov_b32 v58, 0
    v_mov_b32 v59, 0
    v_mov_b32 v61, 0
    v_mov_b32 v62, 0
    s_mov_b32 s33, 0x3f803f80
    s_lshr_b32 s34, s3, 1
    s_add_u32 s44, s22, {WS_ST}
    s_addc_u32 s45, s23, 0
    s_lshl_b32 s26, s24, 7
    s_lshl_b32 s27, s34, 5
    s_add_u32 s26, s26, s27
    v_add_u32 v22, s26, v3
    v_lshlrev_b32 v22, 3, v22
    s_and_b32 s40, s24, 7
    s_lshl_b32 s40, s40, 5
    s_lshr_b32 s41, s24, 3
    s_mul_i32 s41, s41, {29*4096}
    s_add_u32 s40, s40, s41
    s_add_u32 s40, s40, {WS_FL}
    s_waitcnt vmcnt({2*(NI-1) + (2 if os.environ.get('IPF') else 0)})
    s_barrier
    """)
    for k in range(NI, NST):
        issue(k)
    g.stamp(2)
    rd(0, 0); rd(0, 1)
    for k in range(16):
        F = FS[k & 1]
        def mf(kk, mt):
            f = F + 12*kk
            a = A0 + 16*mt
            g(f"v_mfma_f32_32x32x16_bf16 v[{a}:{a+15}], v[{f+4*mt}:{f+4*mt+3}], v[{f+8}:{f+11}], v[{a}:{a+15}]")
        if k < 15:
            younger = 2*(min(k+NST-1, 15) - (k+1))
            if k > PK+1: younger += 1
            if os.environ.get('IPF') and k + 1 < NST: younger += 2
            g(f"s_waitcnt vmcnt({younger}) lgkmcnt(0)")
            g("s_barrier")
            if k < 3: g.stamp(3+k)
            if k == 8: g.stamp(7)
            if k == 8 and os.environ.get('GPRIO') == '3': g("s_setprio 0")
            mf(0, 0)
            rd(k+1, 0)
            mf(0, 1)
            rd(k+1, 1)
            mf(1, 0)
            if k + NST < 16 and not os.environ.get('E2'):
                issue(k + NST)
            mf(1, 1)
        else:
            g("s_waitcnt lgkmcnt(0)")
            mf(0, 0); mf(0, 1); mf(1, 0); mf(1, 1)
        if k == 7:
            g("s_cmp_lg_u32 s3, 0\ns_cbranch_scc1 G1_NOZL\nv_mov_b32 v23, 0\nglobal_load_dword v61, v23, s[20:21] sc1")
            g.label("G1_NOZL")
        if k == PK:
            g("s_cmp_lg_u32 s3, 0\ns_cbranch_scc1 G1_NOPOLL")
            g(f"""
            s_waitcnt vmcnt(0)
            v_cmp_eq_u32 vcc, 0, v61
            s_nop 3
            s_cmp_eq_u64 vcc, 0
            s_cbranch_scc1 G1_ZOK
            """)
            wait_zero(g, "g1p", 20, 21)
            g.label("G1_ZOK")
            g(f"""
            v_cmp_le_u32 vcc, 28, v1
            s_nop 1
            v_cndmask_b32 v20, 0, 1, vcc
            v_mul_u32_u24 v21, 28, v20
            v_sub_u32 v21, v1, v21
            v_lshlrev_b32 v21, 2, v21
            v_lshlrev_b32 v20, 12, v20
            v_add_u32 v20, v20, v21
            v_add_u32 v21, {WS_FL+3*4096}, v20
            v_add_u32 v20, {WS_FL+4096}, v20
            v_subrev_u32 v23, 56, v1
            v_lshlrev_b32 v23, 2, v23
            v_add_u32 v23, s40, v23
            s_lshl_b32 s41, s25, 2
            s_add_u32 s41, s41, {WS_FL+30*4096}
            v_mov_b32 v24, s41
            v_cmp_le_u32 vcc, 56, v1
            s_nop 1
            v_cndmask_b32 v20, v20, v23, vcc
            v_cndmask_b32 v21, v21, v24, vcc
            v_mov_b32 v23, 0
            s_mov_b32 s41, 0x01010101
            """)
            g.label("POLL_g1c")
            g(f"""
            global_load_dword v25, v20, s[22:23] sc1
            global_load_dword v60, v21, s[22:23] sc1
            s_waitcnt vmcnt(0)
            v_cmp_ne_u32 vcc, s41, v25
            v_cmp_ne_u32 s[42:43], s41, v60
            s_nop 3
            s_or_b64 vcc, vcc, s[42:43]
            s_cmp_eq_u64 vcc, 0
            s_cbranch_scc1 POLLD_g1c
            s_sleep 8
            s_branch POLL_g1c
            """)
            g.label("POLLD_g1c")
            g.label("G1_NOPOLL")
        if k == PK+1:
            g("global_load_dwordx2 v[20:21], v22, s[44:45] sc1")
            g(f"""
            s_cmp_ge_u32 s3, 2
            s_cbranch_scc1 G1_NOCSL
            s_mul_i32 s30, s3, {1792*4}
            s_lshl_b32 s31, s25, 9
            s_add_u32 s30, s30, s31
            s_add_u32 s30, s30, {WS_CS}
            v_and_b32 v23, 31, v1
            v_lshlrev_b32 v23, 4, v23
            v_add_u32 v23, s30, v23
            s_lshl_b32 s31, s3, 10
            s_add_u32 m0, s31, 16384
            s_nop 0
            global_load_lds_dwordx4 v23, s[22:23] sc1
            """)
            g.label("G1_NOCSL")
        if k == 15:
            g(f"""
            s_lshr_b32 s30, s2, 3
            s_mul_i32 s30, s30, {64*1024}
            s_add_u32 s30, s30, {WS_W2F}
            v_lshlrev_b32 v23, 7, v0
            v_add_u32 v23, s30, v23
            global_load_dword v59, v23, s[22:23] sc1
            """)
    g.stamp(6)
    if os.environ.get('GPRIO') == '2': g("s_setprio 0")
    g(f"""
    s_and_b32 s27, s3, 1
    s_lshl_b32 s27, s27, 8
    v_lshlrev_b32 v25, 4, v4
    v_add_u32 v25, s27, v25
    s_waitcnt vmcnt(1)
    s_barrier
    """)
    for mt in range(2):
        for gi in range(4):
            g(f"ds_read_b128 v[{96+16*mt+4*gi}:{99+16*mt+4*gi}], v25 offset:{16384+128*mt+32*gi}")
    for gi in range(4):
        g(f"ds_read_b128 v[{26+4*gi}:{29+4*gi}], v25 offset:{16384+1024+32*gi}")
    for gi in range(4):
        g(f"ds_read_b128 v[{B2[gi]}:{B2[gi]+3}], v25 offset:{16384+1024+128+32*gi}")
    g(f"""
    s_lshl_b32 s26, s24, 3
    s_lshr_b32 s27, s3, 1
    s_lshl_b32 s27, s27, 1
    s_add_u32 s26, s26, s27
    v_lshrrev_b32 v5, 4, v3
    v_add_u32 v5, s26, v5
    v_mul_u32_u24 v5, {56*1024}, v5
    v_and_b32 v6, 15, v3
    v_lshlrev_b32 v6, 4, v6
    v_add_u32 v5, v5, v6
    v_lshlrev_b32 v6, 8, v4
    v_add_u32 v5, v5, v6
    s_lshl_b32 s26, s25, 2
    s_and_b32 s27, s3, 1
    s_lshl_b32 s27, s27, 1
    s_add_u32 s26, s26, s27
    s_lshl_b32 s26, s26, 10
    s_mov_b32 s27, {fhex(LOG2E)}
    s_waitcnt lgkmcnt(0)
    """)
    g.stamp(8)
    T = 42
    for mt in range(2):
        a = A0 + 16*mt
        for half in range(2):
            R = [a + 8*half + i for i in range(8)]
            CSv = [96 + 16*mt + 8*half + i for i in range(8)]
            Bv = [26 + 8*half + i for i in range(8)] if mt == 0 else [B2[2*half + (i>>2)] + (i&3) for i in range(8)]
            for j in range(8):
                g(f"v_fma_f32 v{CSv[j]}, -v20, v{CSv[j]}, v{Bv[j]}")
            for j in range(8):
                g(f"v_fma_f32 v{R[j]}, v{R[j]}, v21, v{CSv[j]}")
            for j in range(4):
                g(f"v_cvt_pk_bf16_f32 v{T+j}, v{R[2*j]}, v{R[2*j+1]}")
            for j in range(4):
                g(f"v_lshlrev_b32 v{R[2*j]}, 16, v{T+j}")
                g(f"v_and_b32 v{R[2*j+1]}, 0xffff0000, v{T+j}")
            for j in range(8):
                g(f"v_mul_f32 v{T+j}, s27, v{R[j]}")
            for j in range(8):
                g(f"v_exp_f32 v{T+j}, v{T+j}")
            for j in range(8):
                g(f"v_add_f32 v{T+8+j}, 2.0, v{T+j}")
            for j in range(8):
                g(f"v_fma_f32 v{T+j}, v{T+j}, v{T+8+j}, 2.0")
            for j in range(8):
                g(f"v_rcp_f32 v{T+j}, v{T+j}")
            for j in range(8):
                g(f"v_fma_f32 v{T+j}, -2.0, v{T+j}, 1.0")
            for j in range(8):
                g(f"v_mul_f32 v{T+j}, v{T+j}, v{R[j]}")
            for j in range(4):
                g(f"v_cvt_pk_bf16_f32 v{R[j]}, v{T+2*j}, v{T+2*j+1}")
            g(f"""
            s_nop 1
            v_permlane32_swap_b32 v{R[0]}, v{R[2]}
            v_permlane32_swap_b32 v{R[1]}, v{R[3]}
            s_nop 0
            buffer_store_dwordx4 v[{R[0]}:{R[3]}], v5, s[16:19], s26 offen offset:{1024*mt+512*half} sc1
            """)
    g.stamp(9)
    if TL: g("s_memtime s[84:85]")
    g.dbmark(7)
    g(f"""
    s_lshl_b32 s60, s24, 1
    s_lshl_b32 s62, s25, 2
    s_mov_b32 s61, 1
    {'s_setprio 0' if os.environ.get('GPRIO') == '1' else ''}
    """)

KB_NG = 256
KB_NC = 256
KB_TOTAL = KB_NG + KB_NC
KB_LDS = 81920
CV_COPY = 8*KR_PITCH
CV_U = 95*80
CV_D = CV_COPY + CV_U

def gen_conv(g):
    g(f"""
    s_lshr_b32 s24, s3, 2
    s_lshl_b32 s25, s2, 1
    s_add_u32 s25, s25, s24
    s_and_b32 s26, s3, 3
    s_mul_i32 s27, s24, {CV_D}
    v_and_b32 v3, 255, v0
    v_and_b32 v5, 31, v1
    v_lshlrev_b32 v5, 4, v5
    s_waitcnt lgkmcnt(0)
    s_mov_b32 s35, s52
    s_mov_b32 s36, s53
    """)
    g.stamp(1)
    g.srd(12, 22, 2048*1024, WS_XT)
    g.srd(16, 22, 2048*1024, WS_AT)
    g(f"""
    v_lshrrev_b32 v116, 1, v3
    v_lshlrev_b32 v116, 14, v116
    v_and_b32 v8, 1, v3
    v_lshlrev_b32 v8, 4, v8
    v_add_u32 v116, v116, v8
    s_lshl_b32 s54, s25, 5
    s_min_u32 s37, s3, 5
    s_lshl_b32 s37, s37, 9
    s_add_u32 s37, s37, {L_P}
    v_add_u32 v56, s37, v5
    """)
    gen_kgen_setup(g)
    g(f"""
    ds_write_b128 v56, v[112:115]
    v_lshlrev_b32 v12, 1, v1
    s_lshl_b32 s28, s31, 7
    s_add_u32 s28, s28, {L_P}
    v_add_u32 v12, s28, v12
    s_waitcnt vmcnt(0) lgkmcnt(0)
    s_barrier
    s_cmp_lg_u32 s3, 7
    s_cbranch_scc1 KG_NOSIG
    s_cmp_eq_u32 s55, 0
    s_cbranch_scc1 KG_NOSIG
    v_cmp_eq_u32 vcc, 0, v117
    s_nop 3
    s_cmp_eq_u64 vcc, 0
    s_cbranch_scc1 KG_ZOK
    """)
    wait_zero(g, "kg", 117, 118)
    g.label("KG_ZOK")
    set_flag(g, 55, 117, 118)
    g.label("KG_NOSIG")
    g(f"s_setprio {os.environ.get('CPRIO','0')}")
    for dd in range(2):
        for i in range(6):
            g(f"ds_read_u16 v{52+8*dd+i}, v12 offset:{512*i+256*dd}")
    g(f"""
    s_and_b32 s28, s35, 0xffff
    s_lshr_b32 s29, s35, 16
    v_mov_b32 v58, s28
    v_mov_b32 v66, s29
    s_waitcnt lgkmcnt(0)
    """)
    g.stamp(2)
    gen_kgen(g, 0)
    gen_kgen(g, 1)
    g("s_cmp_lg_u32 s3, 0\ns_cbranch_scc1 CV_NOPOLL")
    wait_zero(g, "cv", 20, 21)
    g(f"s_mov_b32 s48, {WS_FL}")
    poll_flags(g, "cv", 48, 64, 20, 21, base="s[22:23]", slp=8)
    g(f"s_mov_b32 s48, {WS_FL+29*4096}")
    poll_flags(g, "cv2", 48, 64, 20, 21, base="s[22:23]", slp=8)
    g.label("CV_NOPOLL")
    g("s_waitcnt lgkmcnt(0)\ns_barrier")
    g("buffer_load_dwordx4 v[108:111], v116, s[12:15], s54 offen sc1")
    g.stamp(3)
    for dd in range(2):
        for j in range(4):
            g(f"ds_read_b32 v{20+8*dd+j}, v{16+j} offset:{8192*dd}")
            g(f"ds_read_b32 v{24+8*dd+j}, v{16+j} offset:{8192*dd+4096}")
    g(f"""
    v_lshlrev_b32 v12, 3, v0
    v_add_u32 v12, {L_R}, v12
    v_mov_b32 v40, 0
    v_mov_b32 v41, 0
    v_mov_b32 v42, 0
    v_mov_b32 v43, 0
    v_lshlrev_b32 v4, 4, v3
    s_mul_i32 s28, s24, {KR_PITCH}
    s_add_u32 s28, s28, {L_R}
    v_add_u32 v13, s28, v4
    s_waitcnt lgkmcnt(0)
    """)
    for dd in range(2):
        for j in range(4):
            g(f"v_add_f32 v{20+8*dd+j}, v{20+8*dd+j}, v{24+8*dd+j}")
        for j in range(4):
            g(f"v_mul_f32 v{20+8*dd+j}, v{20+8*dd+j}, v{106+dd}")
        g(f"v_cvt_pk_f16_f32 v{36+2*dd}, v{20+8*dd}, v{21+8*dd}")
        g(f"v_cvt_pk_f16_f32 v{37+2*dd}, v{22+8*dd}, v{23+8*dd}")
        g(f"ds_write_b64 v12, v[{36+2*dd}:{37+2*dd}] offset:{KR_PITCH*dd}")
    g(f"""
    v_cmp_gt_u32 vcc, 8, v0
    s_and_saveexec_b64 s[30:31], vcc
    ds_write_b64 v12, v[40:41] offset:4096
    ds_write_b64 v12, v[40:41] offset:{KR_PITCH+4096}
    s_mov_b64 exec, s[30:31]
    s_waitcnt lgkmcnt(0)
    s_barrier
    ds_read_b128 v[64:67], v13
    ds_read_b128 v[68:71], v13 offset:16
    v_lshrrev_b32 v5, 2, v3
    v_and_b32 v6, 3, v3
    v_lshlrev_b32 v6, 4, v6
    v_mul_u32_u24 v5, {KR_PITCH}, v5
    v_add_u32 v5, v5, v6
    v_add_u32 v5, 4096, v5
    v_add_u32 v5, s27, v5
    v_add_u32 v6, s27, v4
    v_lshrrev_b32 v24, 2, v3
    v_and_b32 v25, 3, v3
    v_mul_u32_u24 v24, 80, v24
    v_lshlrev_b32 v25, 4, v25
    v_add_u32 v24, v24, v25
    v_add_u32 v24, s27, v24
    s_waitcnt lgkmcnt(0)
    s_barrier
    v_cmp_gt_u32 vcc, 155, v3
    s_and_saveexec_b64 s[30:31], vcc
    ds_write_b128 v6, v[40:43] offset:{CV_COPY}
    s_mov_b64 exec, s[30:31]
    v_cmp_gt_u32 vcc, 32, v3
    s_and_saveexec_b64 s[30:31], vcc
    ds_write_b128 v5, v[40:43]
    s_mov_b64 exec, s[30:31]
    ds_write_b128 v6, v[64:67]
    ds_write_b128 v6, v[66:69] offset:{4*KR_PITCH}
    """)
    for j in range(1, 7):
        g(f"v_mov_b32 v{73+j}, v{64+j}")
    for j in range(7):
        g(f"v_alignbit_b32 v{80+j}, v{65+j}, v{64+j}, 16")
    for j in range(1, 7):
        g(f"v_alignbit_b32 v{87+j}, v{65+j}, v{64+j}, 16")
    g(f"""
    ds_write_b128 v6, v[74:77] offset:{2*KR_PITCH}
    ds_write_b128 v6, v[76:79] offset:{6*KR_PITCH}
    ds_write_b128 v6, v[80:83] offset:{1*KR_PITCH}
    ds_write_b128 v6, v[82:85] offset:{5*KR_PITCH}
    ds_write_b128 v6, v[88:91] offset:{3*KR_PITCH}
    ds_write_b128 v6, v[90:93] offset:{7*KR_PITCH}
    s_waitcnt vmcnt(0)
    ds_write_b128 v24, v[108:111] offset:{CV_COPY+31*80}
    s_lshr_b32 s30, s36, 16
    s_and_b32 s31, s36, 0xffff
    s_cmp_eq_u32 s24, 0
    s_cselect_b32 s36, s31, s30
    v_mov_b32 v60, s36
    s_cselect_b64 vcc, -1, 0
    v_cndmask_b32 v61, v105, v104, vcc
    """)
    g(f"""
    v_and_b32 v3, 31, v1
    v_lshrrev_b32 v4, 5, v1
    v_and_b32 v5, 7, v3
    v_sub_u32 v5, 7, v5
    v_mul_u32_u24 v5, {KR_PITCH}, v5
    v_lshrrev_b32 v6, 3, v3
    v_sub_u32 v6, v4, v6
    v_lshlrev_b32 v6, 4, v6
    v_add_u32 v5, v5, v6
    s_lshl_b32 s28, s26, 9
    s_sub_u32 s28, {4080 - 64*39}, s28
    s_add_u32 s28, s28, s27
    v_add_u32 v5, s28, v5
    v_mul_u32_u24 v6, 80, v3
    v_lshlrev_b32 v7, 4, v4
    v_add_u32 v6, v6, v7
    s_mul_i32 s28, s26, {8*80}
    s_sub_u32 s28, {CV_COPY + 24*80}, s28
    s_add_u32 s28, s28, s27
    v_add_u32 v6, s28, v6
    """)
    for i in range(32):
        g(f"v_mov_b32 v{24+i}, 0")
    g("s_waitcnt lgkmcnt(0)\ns_barrier")
    g.stamp(4)
    AC = 24
    def rd(step):
        dl, kk = step >> 1, step & 1
        ao = (7-dl)*64 + 32*kk
        bo = (7-dl)*80 + 32*kk
        f = 64 + 16*(step % 3)
        g(f"ds_read_b128 v[{f}:{f+3}], v5 offset:{ao+2048}")
        g(f"ds_read_b128 v[{f+4}:{f+7}], v5 offset:{ao}")
        g(f"ds_read_b128 v[{f+8}:{f+11}], v6 offset:{bo}")
        g(f"ds_read_b128 v[{f+12}:{f+15}], v6 offset:{bo+2560}")
    rd(0); rd(1)
    for step in range(16):
        if step + 2 < 16:
            rd(step+2)
            g("s_waitcnt lgkmcnt(8)")
        elif step + 1 < 16:
            g("s_waitcnt lgkmcnt(4)")
        else:
            g("s_waitcnt lgkmcnt(0)")
        f = 64 + 16*(step % 3)
        g(f"v_mfma_f32_32x32x16_f16 v[{AC}:{AC+15}], v[{f}:{f+3}], v[{f+8}:{f+11}], v[{AC}:{AC+15}]")
        g(f"v_mfma_f32_32x32x16_f16 v[{AC+16}:{AC+31}], v[{f}:{f+3}], v[{f+12}:{f+15}], v[{AC+16}:{AC+31}]")
        g(f"v_mfma_f32_32x32x16_f16 v[{AC+16}:{AC+31}], v[{f+4}:{f+7}], v[{f+8}:{f+11}], v[{AC+16}:{AC+31}]")
    g.stamp(5)
    g(f"""
    s_barrier
    v_lshlrev_b32 v7, 4, v1
    s_lshl_b32 s28, s26, 13
    s_add_u32 s28, s28, s27
    v_add_u32 v8, s28, v7
    v_lshrrev_b32 v11, 2, v1
    v_and_b32 v17, 3, v1
    s_and_b32 s29, s26, 1
    s_lshl_b32 s29, s29, 4
    v_add_u32 v11, s29, v11
    v_lshlrev_b32 v9, 10, v17
    v_lshlrev_b32 v10, 4, v11
    v_add_u32 v9, v9, v10
    s_lshr_b32 s28, s26, 1
    s_lshl_b32 s29, s28, 12
    s_add_u32 s29, s29, s27
    v_add_u32 v9, s29, v9
    v_mul_u32_u24 v10, 80, v11
    v_lshlrev_b32 v17, 4, v17
    v_add_u32 v10, v10, v17
    s_mul_i32 s28, s28, 2560
    s_add_u32 s28, s28, {CV_COPY + 31*80}
    s_add_u32 s28, s28, s27
    v_add_u32 v10, s28, v10
    s_nop 4
    """)
    for i in range(8):
        g(f"ds_write_b128 v8, v[{AC+4*i}:{AC+4*i+3}] offset:{1024*i}")
    g("ds_read_b128 v[12:15], v10")
    g.stamp(7)
    g("s_waitcnt lgkmcnt(0)\ns_barrier")
    g.stamp(8)
    for w in range(4):
        g(f"ds_read_b128 v[{64+8*w}:{67+8*w}], v9 offset:{8192*w}")
        g(f"ds_read_b128 v[{68+8*w}:{71+8*w}], v9 offset:{8192*w+512}")
    g(f"""
    v_lshlrev_b32 v60, 16, v60
    v_lshlrev_b32 v16, 4, v1
    s_lshl_b32 s28, s26, 10
    s_lshl_b32 s29, s25, 12
    s_add_u32 s28, s28, s29
    v_cvt_f32_f16 v24, v12
    v_cvt_f32_f16_sdwa v25, v12 dst_sel:DWORD dst_unused:UNUSED_PAD src0_sel:WORD_1
    v_cvt_f32_f16 v26, v13
    v_cvt_f32_f16_sdwa v27, v13 dst_sel:DWORD dst_unused:UNUSED_PAD src0_sel:WORD_1
    v_cvt_f32_f16 v28, v14
    v_cvt_f32_f16_sdwa v29, v14 dst_sel:DWORD dst_unused:UNUSED_PAD src0_sel:WORD_1
    v_cvt_f32_f16 v30, v15
    v_cvt_f32_f16_sdwa v31, v15 dst_sel:DWORD dst_unused:UNUSED_PAD src0_sel:WORD_1
    """)
    for i in range(8):
        g(f"v_mul_f32 v{24+i}, v{24+i}, v60")
    for j in range(4):
        g(f"v_cvt_pk_bf16_f32 v{32+j}, v{24+2*j}, v{24+2*j+1}")
    for j in range(4):
        g(f"v_lshlrev_b32 v{24+2*j}, 16, v{32+j}")
        g(f"v_and_b32 v{24+2*j+1}, 0xffff0000, v{32+j}")
    g("s_waitcnt lgkmcnt(0)")
    for i in range(8):
        g(f"v_add_f32 v{64+i}, v{64+i}, v{72+i}")
        g(f"v_add_f32 v{80+i}, v{80+i}, v{88+i}")
    for i in range(8):
        g(f"v_add_f32 v{64+i}, v{64+i}, v{80+i}")
    for i in range(8):
        g(f"v_mul_f32 v{64+i}, v{64+i}, v61")
    for j in range(4):
        g(f"v_cvt_pk_bf16_f32 v{32+j}, v{64+2*j}, v{64+2*j+1}")
    for j in range(4):
        g(f"v_lshlrev_b32 v{64+2*j}, 16, v{32+j}")
        g(f"v_and_b32 v{64+2*j+1}, 0xffff0000, v{32+j}")
    for i in range(8):
        g(f"v_add_f32 v{64+i}, v{64+i}, v{24+i}")
    for j in range(4):
        g(f"v_cvt_pk_bf16_f32 v{32+j}, v{64+2*j}, v{64+2*j+1}")
    g(f"""
    buffer_store_dwordx4 v[32:35], v16, s[16:19], s28 offen sc1
    """)
    g.stamp(9)
    g(f"""
    s_waitcnt vmcnt(0)
    """)
    g.stamp(10)
    g(f"""
    s_barrier
    s_cmp_lg_u32 s3, 0
    s_cbranch_scc1 CV_NOSIG
    s_lshr_b32 s28, s2, 5
    s_and_b32 s29, s2, 31
    s_lshl_b32 s29, s29, 2
    s_add_u32 s29, s29, 64
    v_mov_b32 v13, s28
    """)
    cons_addr(g, 1, 13, 12, 14)
    g(f"""
    v_add_u32 v12, s29, v12
    v_mov_b32 v13, 0x01010101
    v_cmp_gt_u32 vcc, 32, v1
    s_and_saveexec_b64 s[30:31], vcc
    global_store_dword v12, v13, s[22:23] sc1
    s_mov_b64 exec, s[30:31]
    """)
    g.label("CV_NOSIG")
    g.stamp(6)
    g.stamp_end(11, "cv")
    g("s_endpgm")

def gen_gemm2(g):
    g(f"""
    s_and_b32 s25, s2, 7
    s_lshl_b32 s25, s25, 2
    s_lshr_b32 s24, s2, 3
    s_lshr_b32 s26, s24, 3
    s_add_u32 s25, s25, s26
    s_and_b32 s24, s24, 7
    s_mul_i32 s36, s3, {7*1024}
    v_lshlrev_b32 v5, 4, v1
    v_add_u32 v8, s36, v5
    v_add_u32 v9, 4096, v8
    s_mul_i32 s40, s24, {4*56*1024}
    s_add_u32 s41, s40, {56*1024}
    s_add_u32 s42, s40, {2*56*1024}
    s_add_u32 s43, s40, {3*56*1024}
    s_mul_i32 s44, s25, {4*56*1024}
    s_add_u32 s45, s44, {56*1024}
    s_add_u32 s46, s44, {2*56*1024}
    s_add_u32 s47, s44, {3*56*1024}
    """)
    g.srd(8, 22, 512*3584, WS_W2F)
    g.srd(12, 22, 2048*3584, WS_ACT)
    g.srd(16, 22, 2048*1024, WS_AT)
    g.srd(28, 56, 2048*1024)
    g.srd(32, 58, 2048*1024)
    AC = 16
    AR = [80, 96]
    BR = 112
    def ldA(st):
        fb = AR[st & 1]; va = 8 + (st >> 2)
        for i in range(4):
            g(f"buffer_load_dwordx4 v[{fb+4*i}:{fb+4*i+3}], v{va}, s[8:11], s{40+i} offen offset:{1024*(st&3)} sc1")
    def ldB(st, j):
        va = 8 + (st >> 2)
        g(f"buffer_load_dwordx4 v[{BR+4*j}:{BR+4*j+3}], v{va}, s[12:15], s{44+j} offen offset:{1024*(st&3)} sc1")
    ldA(0)
    ldA(1)
    g(f"""
    v_and_b32 v3, 15, v1
    v_lshrrev_b32 v4, 4, v1
    s_lshl_b32 s37, s25, 6
    s_lshr_b32 s38, s3, 1
    s_lshl_b32 s38, s38, 4
    s_add_u32 s37, s37, s38
    v_add_u32 v6, s37, v3
    v_lshlrev_b32 v7, 10, v6
    v_lshlrev_b32 v14, 3, v4
    v_add_u32 v7, v7, v14
    s_lshl_b32 s38, s24, 7
    s_and_b32 s39, s3, 1
    s_lshl_b32 s48, s39, 6
    s_add_u32 s38, s38, s48
    v_add_u32 v7, s38, v7
    buffer_load_dwordx2 v[10:11], v7, s[28:31], 0 offen
    buffer_load_dwordx2 v[12:13], v7, s[28:31], 0 offen offset:32
    s_cmp_eq_u32 s61, 0
    s_cbranch_scc1 G2_NOSIG
    s_waitcnt vmcnt(10)
    """)
    g.stamp(1)
    g(f"""
    s_barrier
    """)
    g.stamp(2)
    g(f"""
    s_cmp_lg_u32 s3, 0
    s_cbranch_scc1 G2_NOSIG
    """)
    g(f"""
    v_lshrrev_b32 v16, 3, v1
    v_add_u32 v16, s60, v16
    v_and_b32 v17, 7, v1
    """)
    cons_addr(g, 16, 17, 18, 19)
    g(f"""
    v_add_u32 v18, s62, v18
    v_mov_b32 v19, 0x01010101
    v_cmp_gt_u32 vcc, 16, v1
    s_and_saveexec_b64 s[50:51], vcc
    global_store_dword v18, v19, s[22:23] sc1
    s_mov_b64 exec, s[50:51]
    """)
    g.label("G2_NOSIG")
    for i in range(64):
        g(f"v_mov_b32 v{AC+i}, 0")
    g(f"""
    s_mul_i32 s37, s3, 224
    s_lshr_b32 s38, s37, 7
    s_add_u32 s37, s37, 223
    s_lshr_b32 s37, s37, 7
    s_lshl_b32 s48, s2, 8
    s_add_u32 s48, s48, {WS_F2}
    v_add_u32 v15, s38, v1
    v_min_u32 v15, s37, v15
    v_lshlrev_b32 v15, 2, v15
    v_add_u32 v15, s48, v15
    s_mov_b32 s49, 0x01010101
    """)
    g.label("POLL_g2a")
    g(f"""
    global_load_dword v2, v15, s[22:23] sc1
    s_waitcnt vmcnt(0)
    v_cmp_ne_u32 vcc, s49, v2
    s_nop 3
    s_cmp_eq_u64 vcc, 0
    s_cbranch_scc1 POLLD_g2a
    s_sleep {os.environ.get('GSL','8')}
    s_branch POLL_g2a
    """)
    g.label("POLLD_g2a")
    g.stamp(10)
    for j in range(4): ldB(0, j)
    order = ['A0']*1
    seq = [('A',0)]*4 + [('A',1)]*4 + [('B',0,j) for j in range(4)]
    for st in range(7):
        for j in range(4):
            last = max(i for i, e in enumerate(seq) if (e[0]=='A' and e[1]==st) or (e[0]=='B' and e[1]==st and e[2]==j))
            g(f"s_waitcnt vmcnt({len(seq)-1-last})")
            fa = AR[st & 1]
            for i in range(4):
                a = AC + 4*(4*i+j)
                g(f"v_mfma_f32_16x16x32_bf16 v[{a}:{a+3}], v[{fa+4*i}:{fa+4*i+3}], v[{BR+4*j}:{BR+4*j+3}], v[{a}:{a+3}]")
            if st + 1 < 7:
                ldB(st+1, j); seq.append(('B', st+1, j))
        if st + 2 < 7:
            ldA(st+2); seq += [('A', st+2)]*4
    g.stamp(11)
    g(f"""
    v_lshlrev_b32 v14, 14, v4
    v_lshlrev_b32 v6, 1, v6
    v_add_u32 v14, v14, v6
    s_and_b32 s39, s3, 1
    s_lshl_b32 s38, s24, 18
    s_lshl_b32 s48, s39, 17
    s_add_u32 s38, s38, s48
    v_add_u32 v14, s38, v14
    v_add_u32 v112, 4096, v14
    v_add_u32 v113, 8192, v14
    v_add_u32 v114, 12288, v14
    v_mov_b32 v115, v7
    s_and_b32 s36, s3, 3
    s_lshl_b32 s36, s36, 14
    v_add_u32 v6, s36, v5
    s_lshl_b32 s48, s2, 8
    s_add_u32 s48, s48, {WS_F2+64}
    s_cmp_lt_u32 s3, 4
    s_cbranch_scc1 G2_LOW1
    """)
    for t in range(8):
        g(f"ds_write_b128 v6, v[{AC+4*t}:{AC+4*t+3}] offset:{t*1024}")
    g("s_branch G2_J1")
    g.label("G2_LOW1")
    for t in range(8, 16):
        g(f"ds_write_b128 v6, v[{AC+4*t}:{AC+4*t+3}] offset:{t*1024}")
    g("s_cmp_lg_u32 s3, 0\ns_cbranch_scc1 G2_J1")
    poll_flags(g, "g2", 48, 32, 2, 15, base="s[22:23]", slp=4)
    g.label("G2_J1")
    g("s_waitcnt lgkmcnt(0)\ns_barrier")
    g.stamp(3)
    g("s_mov_b32 s39, 65536")
    for i in range(2):
        for r in range(4):
            va = [14, 112, 113, 114][r]
            g(f"buffer_load_ushort v{116+4*i+r}, v{va}, s[16:19], {'0' if i == 0 else 's39'} offen sc1")
    g("s_cmp_ge_u32 s3, 4\ns_cbranch_scc1 G2_HI2")
    for h in range(2):
        if h == 1:
            g("s_branch G2_J2")
            g.label("G2_HI2")
        for t in range(8):
            g(f"ds_read_b128 v[{80+4*t}:{83+4*t}], v6 offset:{(8*h+t)*1024}")
        for t in range(8):
            g(f"s_waitcnt lgkmcnt({7-t})")
            for r in range(4):
                g(f"v_add_f32 v{AC+32*h+4*t+r}, v{AC+32*h+4*t+r}, v{80+4*t+r}")
        for t in range(8):
            g(f"ds_write_b128 v6, v[{AC+32*h+4*t}:{AC+32*h+4*t+3}] offset:{(8*h+t)*1024}")
    g.label("G2_J2")
    g(f"""
    s_and_b32 s37, s3, 1
    s_lshl_b32 s37, s37, 13
    s_lshr_b32 s38, s3, 1
    s_lshl_b32 s38, s38, 10
    s_add_u32 s37, s37, s38
    v_add_u32 v7, s37, v5
    s_waitcnt lgkmcnt(0)
    s_barrier
    """)
    for i in range(2):
        for w in range(4):
            g(f"ds_read_b128 v[{16+16*i+4*w}:{19+16*i+4*w}], v7 offset:{w*16384+i*4096}")
    g("s_waitcnt lgkmcnt(0)")
    for i in range(2):
        for r in range(4):
            b = 16+16*i+r
            g(f"v_add_f32 v{b}, v{b}, v{b+4}")
            g(f"v_add_f32 v{b+8}, v{b+8}, v{b+12}")
        for r in range(4):
            b = 16+16*i+r
            g(f"v_add_f32 v{b}, v{b}, v{b+8}")
    g.stamp(4)
    g("s_waitcnt vmcnt(0)")
    g.stamp(5)
    for i in range(2):
        b = 16+16*i
        g(f"""
        v_cvt_pk_bf16_f32 v{b+4}, v{b}, v{b+1}
        v_cvt_pk_bf16_f32 v{b+5}, v{b+2}, v{b+3}
        v_lshlrev_b32 v{b}, 16, v{b+4}
        v_and_b32 v{b+1}, 0xffff0000, v{b+4}
        v_lshlrev_b32 v{b+2}, 16, v{b+5}
        v_and_b32 v{b+3}, 0xffff0000, v{b+5}
        v_lshlrev_b32 v{b+4}, 16, v{10+2*i}
        v_and_b32 v{b+5}, 0xffff0000, v{10+2*i}
        v_lshlrev_b32 v{b+6}, 16, v{11+2*i}
        v_and_b32 v{b+7}, 0xffff0000, v{11+2*i}
        v_lshlrev_b32 v{b+8}, 16, v{116+4*i}
        v_lshlrev_b32 v{b+9}, 16, v{117+4*i}
        v_lshlrev_b32 v{b+10}, 16, v{118+4*i}
        v_lshlrev_b32 v{b+11}, 16, v{119+4*i}
        v_add_f32 v{b+4}, v{b+4}, v{b+8}
        v_add_f32 v{b+5}, v{b+5}, v{b+9}
        v_add_f32 v{b+6}, v{b+6}, v{b+10}
        v_add_f32 v{b+7}, v{b+7}, v{b+11}
        v_cvt_pk_bf16_f32 v{b+8}, v{b+4}, v{b+5}
        v_cvt_pk_bf16_f32 v{b+9}, v{b+6}, v{b+7}
        v_lshlrev_b32 v{b+4}, 16, v{b+8}
        v_and_b32 v{b+5}, 0xffff0000, v{b+8}
        v_lshlrev_b32 v{b+6}, 16, v{b+9}
        v_and_b32 v{b+7}, 0xffff0000, v{b+9}
        v_add_f32 v{b+4}, v{b+4}, v{b}
        v_add_f32 v{b+5}, v{b+5}, v{b+1}
        v_add_f32 v{b+6}, v{b+6}, v{b+2}
        v_add_f32 v{b+7}, v{b+7}, v{b+3}
        v_cvt_pk_bf16_f32 v{b+8}, v{b+4}, v{b+5}
        v_cvt_pk_bf16_f32 v{b+9}, v{b+6}, v{b+7}
        buffer_store_dwordx2 v[{b+8}:{b+9}], v115, s[32:35], 0 offen offset:{32*i}
        """)
    g.stamp_end(12, "g2")
    g("s_endpgm")

HEADER = open("parallel_sum__ssm_conv_s4__dense_activation_mish__prompt.s.ref").read().split("; Override launch")[0]

def build():
    g = G()
    g.raw(HEADER.rstrip("\n"))
    g.raw(f"; @launch grid=(512,1,1) block=(512,1,1) lds=81920")
    g.raw('.amdgcn_target "amdgcn-amd-amdhsa--gfx950"')
    g.raw(".text")
    gen_mega(g)
    g.raw('.section .rodata,"a"')
    g.raw(".p2align 6")
    g.raw(kernel_desc("parallel_sum__ssm_conv_s4__dense_activation_mish__prompt_kernel", 128))
    return g.text()

if __name__ == "__main__":
    out = sys.argv[1] if len(sys.argv) > 1 else "parallel_sum__ssm_conv_s4__dense_activation_mish__prompt.s"
    txt = build()
    if os.environ.get('LIST'):
        txt = txt.replace("; @launch grid=(512,1,1)", "; @launch kernel=parallel_sum__ssm_conv_s4__dense_activation_mish__prompt_kernel grid=(512,1,1)")
    open(out, "w").write(txt)
    print("written", out)
```
